```python
import torch

def _softmax(x, axis=-1):
    return torch.softmax(x, dim=axis)
def _gelu(x):
    return torch.nn.functional.gelu(x, approximate="tanh")
def _silu(x):
    return torch.nn.functional.silu(x)
def _sigmoid(x):
    return torch.sigmoid(x)
def _layernorm(x, axis=-1, eps=1e-5):
    m = x.mean(dim=axis, keepdim=True)
    v = x.var(dim=axis, keepdim=True, unbiased=False)
    return (x - m) / torch.sqrt(v + eps)
def _scatter_add(tgt, idx, src, axis=0):
    return tgt.clone().index_add_(axis, idx, src)
def _segment_sum(src, seg, n):
    out = torch.zeros((n,) + src.shape[1:], dtype=src.dtype)
    return out.index_add_(0, seg, src)
def _pad(x, pw):
    flat = tuple(v for pair in reversed(pw) for v in pair)
    return torch.nn.functional.pad(x, flat)

kernel_name = 'gated_mix__sliding_block_cached__glu_gated_swiglu__decode'

def setup_inputs():

    _w = (lambda a: (lambda t: t.to(torch.bfloat16) if t.is_floating_point() else t)(torch.as_tensor(a)))
    def _A_setup():
        B, Sq, D = 4, 1, 512
        Hq, Hkv, Sk, Dh = 32, 8, 8192, 128
        assert Hq % Hkv == 0, (Hq, Hkv)
        return {
            "x": _w((lambda *s: torch.randn(*s, dtype=torch.bfloat16) * 0.05)(B, Sq, D)),
            "k_cache": _w((lambda *s: torch.randn(*s, dtype=torch.bfloat16) * 6.4)(B, Hkv, Sk, Dh)),
            "v_cache": _w((lambda *s: torch.randn(*s, dtype=torch.bfloat16) * 0.05)(B, Hkv, Sk, Dh)),
            "wq": _w((lambda *s: torch.randn(*s, dtype=torch.bfloat16) * 6.4)(D, Hq * Dh) * (D ** -0.5)),
            "wo": _w((lambda *s: torch.randn(*s, dtype=torch.bfloat16) * 0.05)(Hq * Dh, D) * ((Hq * Dh) ** -0.5)),
        }
    _A_in = _A_setup()

    def _B_setup():
        B, S, D, F = 4, 1, 512, 1792
        return {
            "x": _w((lambda *s: torch.randn(*s, dtype=torch.bfloat16) * 0.05)(B, S, D)),
            "w1": _w((lambda *s: torch.randn(*s, dtype=torch.bfloat16) * 0.4)(D, F) * (2.0 / D) ** 0.5),
            "w3": _w((lambda *s: torch.randn(*s, dtype=torch.bfloat16) * 0.4)(D, F) * (2.0 / D) ** 0.5),
            "w2": _w((lambda *s: torch.randn(*s, dtype=torch.bfloat16) * 0.4)(F, D) * (2.0 / F) ** 0.5),
        }
    _B_in = _B_setup()

    return {
        "A_x": _A_in["x"],
        "A_k_cache": _A_in["k_cache"],
        "A_v_cache": _A_in["v_cache"],
        "A_wq": _A_in["wq"],
        "A_wo": _A_in["wo"],
        "B_x": _B_in["x"],
        "B_w1": _B_in["w1"],
        "B_w3": _B_in["w3"],
        "B_w2": _B_in["w2"],
        "gate_w": _w((lambda *s: torch.randn(*s, dtype=torch.bfloat16) * 0.05)(512) * 16.0),
    }

def reference(A_x, A_k_cache, A_v_cache, A_wq, A_wo, B_x, B_w1, B_w3, B_w2, gate_w):
    def _A_ref(x, k_cache, v_cache, wq, wo):
        B, Sq, D = x.shape
        Hq, Dh = 32, 128
        Hkv, Sk = k_cache.shape[1], k_cache.shape[2]
        W = min(4096, max(256, Sk // 4))
        rep = Hq // Hkv
        q = (lambda x, *d: x.permute(*d))((x @ wq).reshape(B, Sq, Hq, Dh), 0, 2, 1, 3)
        k = (lambda x, n, axis: torch.repeat_interleave(x, n, dim=axis))(k_cache[:, :, Sk - W:, :], rep, axis=1)
        v = (lambda x, n, axis: torch.repeat_interleave(x, n, dim=axis))(v_cache[:, :, Sk - W:, :], rep, axis=1)
        scores = torch.einsum("bhqd,bhkd->bhqk", q, k) * (Dh ** -0.5)
        p = _softmax(scores, axis=-1)
        o = torch.einsum("bhqk,bhkd->bhqd", p, v)
        return (lambda x, *d: x.permute(*d))(o, 0, 2, 1, 3).reshape(B, Sq, Hq * Dh) @ wo

    def _B_ref(x, w1, w3, w2):
        gate = torch.einsum("bsd,df->bsf", x, w1)
        up = torch.einsum("bsd,df->bsf", x, w3)
        h = _silu(gate) * up
        out = torch.einsum("bsf,fd->bsd", h, w2)
        return out

    x = A_x
    g = _sigmoid((x * gate_w).sum(-1, keepdims=True))
    a = _A_ref(x, A_k_cache, A_v_cache, A_wq, A_wo)
    b = _B_ref(x, B_w1, B_w3, B_w2)
    return g * a + (1 - g) * b
```

```python
NAME = "gated_mix__sliding_block_cached__glu_gated_swiglu__decode"

HEADER = """; Kernarg layout for this problem (104 bytes, ptrs only, base s[0:1]):
"""

class Asm:
    def __init__(self):
        self.lines = []
        self.nlabel = 0
    def __call__(self, s):
        for ln in s.strip("\n").split("\n"):
            self.lines.append("    " + ln.strip())
    def label(self, name):
        self.lines.append(name + ":")
    def newlabel(self, prefix="L"):
        self.nlabel += 1
        return f"{prefix}_{self.nlabel}"
    def comment(self, s):
        self.lines.append("    ; " + s)
    def text(self):
        return "\n".join(self.lines) + "\n"

def vr(base, n=1):
    return f"v{base}" if n == 1 else f"v[{base}:{base+n-1}]"
def sr(base, n=1):
    return f"s{base}" if n == 1 else f"s[{base}:{base+n-1}]"
def ar(base, n=1):
    return f"a{base}" if n == 1 else f"a[{base}:{base+n-1}]"

def wrap(body, grid, block, lds, nvgpr, nsgpr, accum=None, extra_header=""):
    if accum is None:
        accum = (nvgpr + 3) // 4 * 4
    s = HEADER + extra_header
    s += f"; @launch grid=({grid},1,1) block=({block},1,1) lds={lds}\n"
    s += f""".amdgcn_target "amdgcn-amd-amdhsa--gfx950"
.text
.globl {NAME}_kernel
.p2align 8
.type {NAME}_kernel,@function
{NAME}_kernel:
"""
    s += body
    s += f"""    s_endpgm
.section .rodata,"a"
.p2align 6
.amdhsa_kernel {NAME}_kernel
  .amdhsa_next_free_vgpr {nvgpr}
  .amdhsa_next_free_sgpr {nsgpr}
  .amdhsa_accum_offset {accum}
  .amdhsa_group_segment_fixed_size 0
  .amdhsa_kernarg_size 104
  .amdhsa_user_sgpr_count 2
  .amdhsa_user_sgpr_kernarg_segment_ptr 1
  .amdhsa_system_sgpr_workgroup_id_x 1
.end_amdhsa_kernel
"""
    return s
```

```python
import re

def _regs(tok):
    tok = tok.strip()
    neg = tok.lstrip('-')
    m = re.fullmatch(r'(?:abs\()?([vsa])(\d+)\)?', neg)
    if m: return [(m.group(1), int(m.group(2)))]
    m = re.fullmatch(r'([vsa])\[(\d+):(\d+)\]', neg)
    if m: return [(m.group(1), i) for i in range(int(m.group(2)), int(m.group(3)) + 1)]
    if neg == 'vcc': return [('s', 106), ('s', 107)]
    if neg == 'exec': return [('s', 126), ('s', 127)]
    if neg == 'm0': return [('s', 124)]
    return []

TRANS = ('v_exp_f32', 'v_log_f32', 'v_rcp_f32', 'v_rsq_f32', 'v_sqrt_f32', 'v_sin_f32', 'v_cos_f32')

class I:
    def __init__(self, text):
        self.text = text
        t = text.split(';')[0].strip()
        self.op = t.split()[0] if t else ''
        rest = t[len(self.op):].strip()
        ops = [o.strip() for o in rest.split(',')] if rest else []
        self.mods = ''
        if ops:
            parts = ops[-1].split()
            if len(parts) > 1:
                ops[-1] = parts[0]; self.mods = ' '.join(parts[1:])
        self.ops = ops
        op = self.op
        self.valu = op.startswith('v_') and not op.startswith('v_mfma')
        self.mfma = op.startswith('v_mfma')
        self.trans = any(op.startswith(x) for x in TRANS)
        self.dpp = 'row_' in self.mods or 'quad_perm' in self.mods or op.endswith('_dpp')
        self.vmem = op.startswith('buffer_') or op.startswith('global_')
        self.ds = op.startswith('ds_')
        self.salu = op.startswith('s_')
        self.w = []; self.r = []
        R = [_regs(o) for o in ops]
        if self.mfma:
            self.w = R[0]; self.r = R[1] + R[2] + R[3]; self.srcc = R[3]; self.srcab = R[1] + R[2]
        elif self.valu:
            if op.startswith('v_cmp'):
                self.w = R[0]; self.r = sum(R[1:], [])
                if op.endswith('_e32') or ops[0] == 'vcc': pass
            elif op.startswith('v_permlane') and 'swap' in op:
                self.w = R[0] + R[1]; self.r = R[0] + R[1]
            elif op.startswith('v_readfirstlane') or op.startswith('v_readlane'):
                self.w = R[0]; self.r = sum(R[1:], [])
            elif op.startswith(('v_add_co', 'v_sub_co', 'v_addc_co', 'v_subb_co')):
                self.w = R[0] + R[1]; self.r = sum(R[2:], [])
            else:
                self.w = R[0]; self.r = sum(R[1:], [])
                if op.startswith(('v_fmac', 'v_mac', 'v_dot2c', 'v_pk_fmac')): self.r += R[0]
                if op.startswith('v_cndmask') and len(ops) == 3: self.r += _regs('vcc')
        elif self.vmem:
            if 'load' in op:
                self.w = R[0]; self.r = sum(R[1:], [])
            else:
                self.r = sum(R, [])
                self.store_data = R[0] if op.startswith('buffer_') else R[1]
        elif self.ds:
            if op.startswith('ds_read') or op.startswith('ds_bpermute') or op.startswith('ds_swizzle') or '_rtn' in op:
                self.w = R[0]; self.r = sum(R[1:], [])
            else:
                self.r = sum(R, [])
        elif self.salu:
            if op.startswith(('s_cmp', 's_cbranch', 's_branch', 's_waitcnt', 's_nop', 's_barrier', 's_sleep', 's_setprio', 's_endpgm', 's_bitcmp')):
                self.r = sum(R, [])
            else:
                self.w = R[0] if R else []; self.r = sum(R[1:], [])
        self.nstates = 1
        if op == 's_nop':
            self.nstates = int(ops[0], 0) + 1

def vset(l): return set(x for x in l if x[0] in 'va')
def sset(l): return set(x for x in l if x[0] == 's')

def need(prod, cons):
    n = 0
    pw = set(prod.w); cr = set(cons.r); cw = set(cons.w)
    if prod.mfma:
        passes = 8 if '32x32' in prod.op else 4
        d = vset(prod.w)
        if cons.mfma:
            if d & set(cons.srcab): n = max(n, passes + 4)
            if d & set(cons.srcc):
                if set(cons.srcc) == d and ('32x32' in cons.op) == ('32x32' in prod.op): pass
                else: n = max(n, passes + 2)
        elif cons.valu or cons.vmem or cons.ds:
            if d & (cr | cw): n = max(n, passes + 4)
        if cons.valu and (set(prod.srcc) & cw): n = max(n, passes - 1)
    if prod.valu:
        if cons.mfma and (vset(prod.w) & cr): n = max(n, 2)
        if cons.valu and cons.dpp and (vset(prod.w) & vset(cons.r)): n = max(n, 2)
        if cons.valu and cons.op.startswith('v_permlane') and (vset(prod.w) & vset(cons.r)): n = max(n, 2)
        if cons.valu and cons.op.startswith(('v_readfirstlane', 'v_readlane')) and (vset(prod.w) & vset(cons.r)): n = max(n, 1)
        if prod.trans and cons.valu and not cons.trans and (vset(prod.w) & cr): n = max(n, 1)
        if prod.trans and (cons.vmem or cons.ds or cons.mfma) and (vset(prod.w) & cr): n = max(n, 2)
        sw = sset(prod.w)
        if sw:
            if cons.vmem and (sw & cr): n = max(n, 5)
            if cons.valu and (sw & cr): n = max(n, 2)
            if cons.valu and cons.op.startswith(('v_readlane', 'v_writelane')) and (sw & cr): n = max(n, 4)
            if cons.salu and (sw & cr): n = max(n, 4)
        if prod.dpp or 'op_sel' in prod.mods or 'sdwa' in prod.op.lower() or 'dst_sel' in prod.mods:
            if 'dst_sel' in prod.mods or 'op_sel' in prod.mods:
                if cons.valu and (vset(prod.w) & (cr | cw)): n = max(n, 1)
    if prod.vmem and 'store' in prod.op and ('x4' in prod.op or 'x3' in prod.op):
        if (cons.valu or cons.mfma) and (set(prod.store_data) & cw): n = max(n, 2)
        elif set(prod.store_data) & cw: n = max(n, 1)
    if prod.salu and ('s', 126) in prod.w or (prod.salu and ('s', 127) in prod.w):
        pass
    return n

def fix(text, window=24, verbose=False):
    out = []; hist = []
    nins = 0
    for line in text.split('\n'):
        s = line.strip()
        if not s or s.startswith(';') or s.startswith('.'):
            out.append(line); continue
        if s.endswith(':') and ' ' not in s:
            out.append(line); continue
        ins = I(s)
        req = 0
        dist = 0
        for p in reversed(hist):
            nd = need(p, ins)
            if nd > dist: req = max(req, nd - dist)
            dist += p.nstates
            if dist > window: break
        if ins.op.startswith(('s_cbranch', 's_branch')):
            dist = 0; worst = 0
            for p in reversed(hist):
                w = 0
                if p.mfma: w = (8 if '32x32' in p.op else 4) + 4
                elif p.valu:
                    w = 5 if sset(p.w) else 2
                elif p.vmem and 'store' in p.op: w = 2
                if w - dist > worst: worst = w - dist
                dist += p.nstates
                if dist > window: break
            req = max(req, worst - 1)
        while req > 0:
            k = min(req, 16)
            nop = I(f's_nop {k-1}')
            out.append(f'    s_nop {k-1}')
            hist.append(nop); req -= k; nins += 1
        out.append(line)
        hist.append(ins)
        if len(hist) > 64: hist = hist[-64:]
    if verbose: print("hazard pass inserted", nins, "nops")
    return '\n'.join(out)
```

```python
import sys
from asmgen import *
import hazard

opt = dict(a.split("=") for a in sys.argv[2:])
def O(name, default): return type(default)(opt.get(name, default)) if not isinstance(default, bool) else opt.get(name, "1" if default else "0") == "1"
STAMPS = O("stamps", False)
MIMIC = O("mimic", True)
NT = O("nt", True)
NTW = O("ntw", True)
NTO = O("nto", False)
PRIO = O("prio", True)
SPINMAX = O("spinmax", 200000)
ntf = " nt" if NT else ""
ntw = " nt" if NTW else ""
nto = " nt" if NTO else ""

WS_E   = 0
WS_QP  = 0x10000
WS_HP  = 0x100000
WS_ML  = 0x200000
WS_OP  = 0x210000
WS_FP  = 0x400000
WS_SIZE = 268435456
STAMPOFF = 0x8000000
NST = 14
L_TAG = 0
L_QRDY = 8
L_HRDY = 12
L_VISS = 16
L_MXC = 20
L_LSC = 24
L_OWC = 28
L_OCR = 32
L_GRDY = 36
L_Q = 0x100
L_MX = 0x500
L_LS = 0x600
L_H = 0x700
L_G = 0x740
L_OC = 0x780
L_OW = 0x800
LDS_BYTES = 0x2800

A = Asm()
stamp_idx = {}
def stamp(k):
    if STAMPS: A(f"s_memrealtime s[{70+2*k}:{71+2*k}]")

def srd_consts(d, size):
    A(f"s_mov_b32 s{d+2}, {size}\ns_mov_b32 s{d+3}, 0x20000")

def lds_wait(addr, val, vt, cmp="eq", name="w"):
    L = A.newlabel("Lw_" + name); Ld = A.newlabel("Lwd_" + name)
    A(f"v_mov_b32 v{vt+1}, {addr}")
    A(f"s_mov_b32 s15, 0")
    A.label(L)
    A(f"""
ds_read_b32 v{vt}, v{vt+1}
s_waitcnt lgkmcnt(0)
v_readfirstlane_b32 s14, v{vt}
s_add_u32 s15, s15, 1
s_cmp_ge_u32 s14, {val}
s_cbranch_scc1 {Ld}
s_cmp_lt_u32 s15, {SPINMAX*16}
s_sleep 1
s_cbranch_scc1 {L}
""")
    A.label(Ld)

def get_tag(vt):
    L = A.newlabel("Ltag"); Ld = A.newlabel("Ltagd")
    A(f"v_mov_b32 v{vt+2}, {L_TAG}\ns_mov_b32 s15, 0")
    A.label(L)
    A(f"""
ds_read_b64 v[{vt}:{vt+1}], v{vt+2}
s_waitcnt lgkmcnt(0)
v_readfirstlane_b32 s14, v{vt+1}
v_readfirstlane_b32 s64, v{vt}
s_add_u32 s15, s15, 1
s_cmp_eq_u32 s14, 1
s_cbranch_scc1 {Ld}
s_cmp_lt_u32 s15, {SPINMAX*16}
s_sleep 1
s_cbranch_scc1 {L}
""")
    A.label(Ld)

def transpose_mfma(raw, acc, aop, tmp, first, order=None):
    def P(j):
        k = j // 2; sel = "s66" if j % 2 == 0 else "s67"
        t = tmp + 4 * (j % 3)
        for p in range(4):
            A(f"v_perm_b32 v{t+p}, v{raw+(2*p+1)*4+k}, v{raw+(2*p)*4+k}, {sel}")
    def M(j):
        t = tmp + 4 * (j % 3)
        c = "0" if first else f"v[{acc+4*j}:{acc+4*j+3}]"
        A(f"v_mfma_f32_16x16x32_bf16 v[{acc+4*j}:{acc+4*j+3}], v[{aop}:{aop+3}], v[{t}:{t+3}], {c}")
    P(0); P(1); M(0)
    for j in range(2, 8):
        P(j); M(j - 1)
    M(7)

def transpose_only(raw, dst):
    for j in range(8):
        k = j // 2; sel = "s66" if j % 2 == 0 else "s67"
        for p in range(4):
            A(f"v_perm_b32 v{dst+4*j+p}, v{raw+(2*p+1)*4+k}, v{raw+(2*p)*4+k}, {sel}")

def tagcheck(regs, vmin, vmax):
    first = True
    for r in regs:
        if first:
            A(f"v_min_u32 v{vmin}, v{r+1}, v{r+3}\nv_max_u32 v{vmax}, v{r+1}, v{r+3}"); first = False
        else:
            A(f"v_min3_u32 v{vmin}, v{vmin}, v{r+1}, v{r+3}\nv_max3_u32 v{vmax}, v{vmax}, v{r+1}, v{r+3}")
    A(f"v_xor_b32 v{vmin}, s64, v{vmin}\nv_xor_b32 v{vmax}, s64, v{vmax}\nv_or_b32 v{vmin}, v{vmin}, v{vmax}\nv_cmp_ne_u32 vcc, 0, v{vmin}")

def poll_loop(name, emit_loads, regs, vmin, vmax, sleep=2, cntreg=None):
    L = A.newlabel("Lp_" + name); Ld = A.newlabel("Lpd_" + name)
    A("s_mov_b32 s15, 0")
    A.label(L)
    emit_loads()
    A("s_waitcnt vmcnt(0)")
    tagcheck(regs, vmin, vmax)
    A(f"""
s_add_u32 s15, s15, 1
s_cbranch_vccz {Ld}
s_cmp_lt_u32 s15, {SPINMAX}
s_sleep {sleep}
s_cbranch_scc1 {L}
""")
    A.label(Ld)
    if cntreg is not None: A(f"s_mov_b32 s{cntreg}, s15")

A("""
s_cmp_ge_u32 s2, 256
s_cbranch_scc1 L_end
v_lshrrev_b32 v1, 6, v0
v_and_b32 v2, 63, v0
v_readfirstlane_b32 s3, v1
s_and_b32 s4, s2, 7
s_lshr_b32 s5, s2, 3                     ; r
s_lshr_b32 s6, s5, 3                     ; b
s_and_b32 s7, s5, 7                      ; s (split)
s_mov_b32 s66, 0x05040100
s_mov_b32 s67, 0x07060302
""")
stamp(0)
A("""
s_cmp_ge_u32 s3, 4
s_cbranch_scc1 L_A
s_cmp_ge_u32 s3, 2
s_cbranch_scc1 L_W23
""")
A("s_load_dwordx2 s[48:49], s[0:1], 0")
A("s_load_dwordx2 s[52:53], s[0:1], 96")
if PRIO: A("s_setprio 3")
A("""
s_cmp_eq_u32 s3, 0
s_cbranch_scc0 L_W1setup
s_load_dwordx2 s[44:45], s[0:1], 24
s_mov_b32 s46, 4194304
s_movk_i32 s10, 8192                     ; row stride
s_lshl_b32 s9, s6, 20                    ; ks(=b) * 128 rows * 8192
s_lshl_b32 s11, s7, 7                    ; cb(=s) * 128 B
s_add_u32 s9, s9, s11
s_lshl_b32 s11, s4, 10                   ; x * 1024 B
s_add_u32 s9, s9, s11                    ; W soffset base
s_lshl_b32 s11, s6, 8                    ; x-vector offset ks*256 B
; publish base: QP + ((x*4+b')*4+ks)*4096 + cb*512 ; b' stride = 16384
s_lshl_b32 s12, s4, 16
s_lshl_b32 s13, s6, 12
s_add_u32 s12, s12, s13
s_lshl_b32 s13, s7, 9
s_add_u32 s12, s12, s13
""" + f"""
s_add_u32 s12, s12, {WS_QP}
s_movk_i32 s13, 16384
s_branch L_prod
""")
A.label("L_W1setup")
A(f"""
s_and_b32 s8, s2, 1                      ; mt
s_cmp_eq_u32 s8, 0
s_cbranch_scc0 L_W1b
s_load_dwordx2 s[44:45], s[0:1], 48
s_branch L_W1c
""")
A.label("L_W1b")
A("s_load_dwordx2 s[44:45], s[0:1], 56")
A.label("L_W1c")
A(f"""
s_mov_b32 s46, 1835008
s_movk_i32 s10, 3584
s_lshr_b32 s9, s2, 1                     ; u 0..127
s_mul_i32 s11, s9, 2341
s_lshr_b32 s11, s11, 16                  ; ks = u/28  (u<112 -> 0..3; u>=112 -> 4)
s_mul_i32 s12, s11, 28
s_sub_u32 s12, s9, s12                   ; cb
s_mul_i32 s9, s11, {128*3584}
s_lshl_b32 s13, s12, 7
s_add_u32 s9, s9, s13
s_mul_i32 s13, s8, 229376
s_lshl_b32 s12, s12, 9
s_add_u32 s12, s12, s13
s_mul_i32 s13, s11, 57344
s_add_u32 s12, s12, s13
s_add_u32 s12, s12, {WS_HP}
s_movk_i32 s13, 14336
s_lshl_b32 s11, s11, 8
""")
A.label("L_prod")
srd_consts(48, 4096); srd_consts(52, WS_SIZE)
A(f"""
s_mov_b32 s47, 0x20000
v_lshrrev_b32 v3, 3, v2                  ; l/8
v_and_b32 v4, 7, v2
v_lshlrev_b32 v4, 4, v4
s_lshl_b32 s8, s10, 3
v_mul_lo_u32 v5, v3, s8
v_add_u32 v5, v5, v4                     ; voffW
v_and_b32 v6, 15, v2                     ; m
v_lshrrev_b32 v7, 2, v6                  ; b'
v_lshlrev_b32 v7, 10, v7
v_and_b32 v8, 1, v2                      ; sub&1
v_lshrrev_b32 v9, 4, v2                  ; g
v_lshl_add_u32 v8, v9, 1, v8             ; 2g+sub
v_lshl_add_u32 v7, v8, 4, v7             ; voffX
v_mul_lo_u32 v10, v9, s13                ; (l/16)*bstride
v_lshl_add_u32 v10, v6, 4, v10           ; voffStore
v_cmp_le_u32 s[68:69], 8, v6
s_barrier
s_waitcnt lgkmcnt(0)
""")
A("""
s_cmp_eq_u32 s3, 1
s_movk_i32 s15, 224
s_cselect_b32 s14, s15, 256
s_cmp_ge_u32 s2, s14
s_cbranch_scc1 L_prod_done
""")
XA = 112
A(f"buffer_load_dwordx4 v[{XA}:{XA+3}], v7, s[48:51], s11 offen")
A(f"buffer_load_dwordx4 v[{XA+4}:{XA+7}], v7, s[48:51], s11 offen offset:128")
RAW = 16
A("s_mov_b32 s14, s9")
for e in range(2):
    for i in range(8):
        r = RAW + (e * 8 + i) * 4
        A(f"buffer_load_dwordx4 v[{r}:{r+3}], v5, s[44:47], s14 offen{ntw}")
        if not (e == 1 and i == 7):
            if i == 7: A(f"s_mul_i32 s15, s10, 57\ns_add_u32 s14, s14, s15")
            else: A("s_add_u32 s14, s14, s10")
A("""
s_cmp_eq_u32 s3, 0
s_cbranch_scc0 L_prod_notag
""" + f"""
s_load_dword s64, s[52:53], {WS_E}
s_waitcnt lgkmcnt(0)
s_mul_i32 s64, s64, 0x9E3779B1
s_add_u32 s64, s64, 0x7F4A7C15
v_mov_b32 v120, s64
v_mov_b32 v121, 1
v_mov_b32 v122, {L_TAG}
ds_write_b64 v122, v[120:121]
""")
A.label("L_prod_notag")
stamp(1)
ACC = 144; TMP = 128
A("s_waitcnt vmcnt(8)")
transpose_mfma(RAW, ACC, XA, TMP, True)
A("s_waitcnt vmcnt(0)")
stamp(2)
transpose_mfma(RAW + 32, ACC, XA + 4, TMP, False)
get_tag(120)
PUB = 16
for k in range(4):
    A(f"v_cndmask_b32 v{128+k}, v{ACC+4*k+0}, v{ACC+4*(4+k)+1}, s[68:69]")
    A(f"v_cndmask_b32 v{132+k}, v{ACC+4*(4+k)+0}, v{ACC+4*k+1}, s[68:69]")
for k in range(4):
    A(f"v_mov_b32 v{PUB+2*k+1}, s64")
for k in range(4):
    A(f"v_add_f32_dpp v{PUB+2*k}, v{132+k}, v{128+k} row_ror:8 row_mask:0xf bank_mask:0xf")
A(f"buffer_store_dwordx4 v[{PUB}:{PUB+3}], v10, s[52:55], s12 offen sc1")
A(f"buffer_store_dwordx4 v[{PUB+4}:{PUB+7}], v10, s[52:55], s12 offen offset:256 sc1")
A.label("L_prod_done")
stamp(3)
get_tag(120)
A("""
s_cmp_eq_u32 s3, 0
s_cbranch_scc0 L_hgather
""")
A(f"""
s_lshl_b32 s8, s4, 2
s_add_u32 s8, s8, s6
s_lshl_b32 s8, s8, 14
s_add_u32 s8, s8, {WS_QP}
v_lshlrev_b32 v3, 4, v2                  ; l*16
""")
G = 24
def qloads():
    for n in range(16):
        if n % 4 == 0: A(f"s_add_u32 s9, s8, {(n//4)*4096}")
        r = G + 4 * n
        A(f"buffer_load_dwordx4 v[{r}:{r+3}], v3, s[52:55], s9 offen offset:{(n%4)*1024} sc1")
poll_loop("q", qloads, [G + 4 * n for n in range(16)], 4, 5, cntreg=96)
stamp(4)
for hd in range(4):
    for c in (0, 2):
        A(f"v_add_f32 v{G+4*hd+c}, v{G+4*hd+c}, v{G+4*(4+hd)+c}")
        A(f"v_add_f32 v{G+4*(8+hd)+c}, v{G+4*(8+hd)+c}, v{G+4*(12+hd)+c}")
for hd in range(4):
    for c in (0, 2):
        A(f"v_add_f32 v{G+4*hd+c}, v{G+4*hd+c}, v{G+4*(8+hd)+c}")
A(f"""
v_lshrrev_b32 v4, 5, v2
v_lshlrev_b32 v4, 7, v4
v_and_b32 v5, 7, v2
v_lshl_add_u32 v4, v5, 4, v4
v_bfe_u32 v5, v2, 3, 1
v_lshl_add_u32 v4, v5, 3, v4
v_bfe_u32 v5, v2, 4, 1
v_lshl_add_u32 v4, v5, 2, v4
""")
for hd in range(4):
    A(f"v_cvt_pk_bf16_f32 v{8+hd}, v{G+4*hd}, v{G+4*hd+2}")
for hd in range(4):
    A(f"ds_write_b32 v4, v{8+hd} offset:{L_Q+hd*256}")
A(f"v_mov_b32 v5, {L_QRDY}\nv_mov_b32 v6, 1\nds_write_b32 v5, v6")
stamp(5)
A("s_branch L_O")
A.label("L_hgather")
A(f"""
s_lshl_b32 s8, s4, 3
s_add_u32 s8, s8, s7                     ; j
s_mul_i32 s9, s8, 28
v_and_b32 v3, 31, v2
v_min_u32 v3, 13, v3
v_lshl_add_u32 v3, v3, 1, s9             ; col
v_lshrrev_b32 v4, 6, v3                  ; cbk
v_lshlrev_b32 v4, 9, v4                  ; *512
v_bfe_u32 v5, v3, 1, 1                   ; kk
v_lshl_add_u32 v4, v5, 8, v4             ; + kk*256
v_bfe_u32 v5, v3, 2, 1                   ; half
v_lshl_add_u32 v4, v5, 7, v4             ; + half*128
v_bfe_u32 v5, v3, 3, 3                   ; c
v_lshl_add_u32 v4, v5, 4, v4             ; + c*16
v_lshrrev_b32 v5, 5, v2                  ; mt
s_mov_b32 s9, 229376
v_mul_lo_u32 v5, v5, s9
v_add_u32 v4, v4, v5
s_mul_i32 s8, s6, 14336
s_add_u32 s8, s8, {WS_HP}
""")
G = 24
def hloads():
    for ks in range(4):
        A(f"s_add_u32 s9, s8, {ks*57344}")
        r = G + 4 * ks
        A(f"buffer_load_dwordx4 v[{r}:{r+3}], v4, s[52:55], s9 offen sc1")
poll_loop("h", hloads, [G + 4 * n for n in range(4)], 6, 7, cntreg=96)
stamp(4)
for c in (0, 2):
    A(f"v_add_f32 v{G+c}, v{G+c}, v{G+4+c}\nv_add_f32 v{G+8+c}, v{G+8+c}, v{G+12+c}")
for c in (0, 2):
    A(f"v_add_f32 v{G+c}, v{G+c}, v{G+8+c}")
A(f"""
v_cvt_pk_bf16_f32 v8, v{G}, v{G+2}
v_mov_b32 v9, v8
v_permlane32_swap_b32 v8, v9
""")
A("""
v_lshlrev_b32 v10, 16, v8                ; g0
v_and_b32 v11, 0xffff0000, v8            ; g1
v_lshlrev_b32 v12, 16, v9                ; u0
v_and_b32 v13, 0xffff0000, v9            ; u1
v_mul_f32 v14, 0xbfb8aa3b, v10           ; -log2e*g
v_mul_f32 v15, 0xbfb8aa3b, v11
v_exp_f32 v14, v14
v_exp_f32 v15, v15
v_add_f32 v14, 1.0, v14
v_add_f32 v15, 1.0, v15
v_rcp_f32 v14, v14
v_rcp_f32 v15, v15
v_mul_f32 v14, v10, v14                  ; silu
v_mul_f32 v15, v11, v15
v_cvt_pk_bf16_f32 v14, v14, v15
v_lshlrev_b32 v15, 16, v14
v_and_b32 v14, 0xffff0000, v14
v_mul_f32 v15, v15, v12
v_mul_f32 v14, v14, v13
v_cvt_pk_bf16_f32 v14, v15, v14          ; h pair (lo = even col)
v_and_b32 v3, 31, v2
v_cmp_gt_u32 vcc, 14, v3
v_cndmask_b32 v14, 0, v14, vcc           ; zero for p>=14
v_min_u32 v3, 15, v3
v_lshlrev_b32 v3, 2, v3
""" + f"""
v_cmp_gt_u32 vcc, 16, v2
s_and_saveexec_b64 s[20:21], vcc
ds_write_b32 v3, v14 offset:{L_H}
s_mov_b64 exec, s[20:21]
v_mov_b32 v5, {L_HRDY}
v_mov_b32 v6, 1
ds_write_b32 v5, v6
""")
stamp(5)
A("s_branch L_O")
A.label("L_W23")
A("s_load_dwordx2 s[52:53], s[0:1], 96")
if PRIO: A("s_setprio 3")
srd_consts(52, WS_SIZE)
A("""
s_cmp_eq_u32 s3, 3
s_cbranch_scc1 L_W3
s_barrier
s_branch L_O
""")
A.label("L_W3")
A(f"""
s_load_dwordx2 s[48:49], s[0:1], 0       ; x
s_load_dwordx2 s[44:45], s[0:1], 72      ; gate_w
v_mov_b32 v4, 0
v_mov_b32 v5, 0
v_mov_b32 v6, 0
v_mov_b32 v7, 0
v_mov_b32 v8, 0
ds_write_b128 v8, v[4:7]
ds_write_b128 v8, v[4:7] offset:16
ds_write_b128 v8, v[4:7] offset:32
s_mov_b32 s50, 4096
s_mov_b32 s51, 0x20000
s_mov_b32 s46, 1024
s_mov_b32 s47, 0x20000
v_lshlrev_b32 v3, 4, v2
s_lshl_b32 s8, s6, 10
s_waitcnt lgkmcnt(0)
s_barrier
buffer_load_dwordx4 v[16:19], v3, s[48:51], s8 offen
buffer_load_dwordx4 v[20:23], v3, s[44:47], 0 offen
s_waitcnt vmcnt(0)
""")
for k in range(4):
    A(f"""
v_lshlrev_b32 v{24+2*k}, 16, v{16+k}
v_and_b32 v{25+2*k}, 0xffff0000, v{16+k}
v_lshlrev_b32 v{32+2*k}, 16, v{20+k}
v_and_b32 v{33+2*k}, 0xffff0000, v{20+k}
v_mul_f32 v{24+2*k}, v{24+2*k}, v{32+2*k}
v_mul_f32 v{25+2*k}, v{25+2*k}, v{33+2*k}
v_cvt_pk_bf16_f32 v{40+k}, v{24+2*k}, v{25+2*k}
""")
A("v_mov_b32 v44, 0")
for k in range(4):
    A(f"""
v_lshlrev_b32 v24, 16, v{40+k}
v_and_b32 v25, 0xffff0000, v{40+k}
v_add_f32 v44, v44, v24
v_add_f32 v44, v44, v25
""")
for sh in (1, 2, 4, 8):
    A(f"v_add_f32_dpp v45, v44, v44 row_ror:{sh} row_mask:0xf bank_mask:0xf\nv_mov_b32 v44, v45")
A("""
v_mov_b32 v45, v44
v_permlane16_swap_b32 v44, v45
v_add_f32 v44, v44, v45
v_mov_b32 v45, v44
v_permlane32_swap_b32 v44, v45
v_add_f32 v44, v44, v45
v_cvt_pk_bf16_f32 v44, v44, v44
v_lshlrev_b32 v44, 16, v44               ; z (bf16)
v_mul_f32 v45, 0xbfb8aa3b, v44
v_exp_f32 v45, v45
v_add_f32 v45, 1.0, v45
v_rcp_f32 v45, v45
v_cvt_pk_bf16_f32 v45, v45, v45
v_lshlrev_b32 v46, 16, v45               ; g (bf16)
v_sub_f32 v47, 1.0, v46
v_cvt_pk_bf16_f32 v47, v47, v47
v_lshlrev_b32 v47, 16, v47               ; 1-g (bf16)
""" + f"""
v_mov_b32 v4, {L_G}
ds_write_b64 v4, v[46:47]
v_mov_b32 v5, {L_GRDY}
v_mov_b32 v6, 1
ds_write_b32 v5, v6
""")
stamp(3)
A.label("L_O")
A("""
s_load_dwordx2 s[56:57], s[0:1], 32      ; wo
s_load_dwordx2 s[60:61], s[0:1], 64      ; w2
""")
srd_consts(56, 4194304); srd_consts(60, 1835008)
A(f"""
v_and_b32 v3, 15, v2                     ; c
v_lshrrev_b32 v4, 4, v2                  ; g
v_lshrrev_b32 v7, 1, v4
v_and_b32 v8, 1, v4
v_lshlrev_b32 v5, 17, v7
v_lshl_add_u32 v5, v8, 13, v5
v_lshl_add_u32 v5, v3, 4, v5             ; voffO
v_lshlrev_b32 v6, 13, v4
v_lshl_add_u32 v6, v3, 4, v6             ; voffW2
s_lshl_b32 s9, s4, 19
s_lshl_b32 s10, s7, 14
s_add_u32 s9, s9, s10
s_lshl_b32 s10, s3, 8                    ; cg*256
s_add_u32 s9, s9, s10
s_lshl_b32 s11, s4, 3
s_add_u32 s11, s11, s7                   ; j
s_mul_i32 s11, s11, {28*1024}
s_add_u32 s11, s11, s10                  ; w2 base
""")
lds_wait(L_VISS, 4, 8, name="viss")
stamp(6)
RW2 = 16; R0 = 48; R1 = 80; SP = 112; ACC = 144; TMP = 176
for hi in range(2):
    A(f"s_add_u32 s12, s11, {hi*4096}")
    for i4 in range(4):
        r = RW2 + (hi * 4 + i4) * 4
        A(f"buffer_load_dwordx4 v[{r}:{r+3}], v6, s[60:63], s12 offen offset:{i4*1024}{nto}")
for kb, RB in ((0, R0), (1, R1)):
    for hi in range(2):
        A(f"s_add_u32 s12, s9, {kb*2*128*1024 + hi*4096}")
        for i4 in range(4):
            r = RB + (hi * 4 + i4) * 4
            A(f"buffer_load_dwordx4 v[{r}:{r+3}], v5, s[56:59], s12 offen offset:{i4*1024}{nto}")
A("""
s_cmp_eq_u32 s3, 3
s_cbranch_scc0 L_noML
""")
get_tag(8)
lds_wait(L_LSC, 256, 8, name="lsc")
A(f"""
v_and_b32 v8, 3, v2                      ; head
v_lshlrev_b32 v9, 6, v8
ds_read_b128 v[192:195], v9 offset:{L_LS}
ds_read_b128 v[196:199], v9 offset:{L_LS+16}
ds_read_b128 v[200:203], v9 offset:{L_LS+32}
ds_read_b128 v[204:207], v9 offset:{L_LS+48}
ds_read_b128 v[208:211], v9 offset:{L_MX}
ds_read_b128 v[212:215], v9 offset:{L_MX+16}
ds_read_b128 v[216:219], v9 offset:{L_MX+32}
ds_read_b128 v[220:223], v9 offset:{L_MX+48}
s_waitcnt lgkmcnt(0)
""")
for k in range(1, 16):
    A(f"v_add_f32 v192, v192, v{192+k}")
A("v_max_f32 v208, v208, v209")
for k in range(1, 8):
    A(f"v_max3_f32 v208, v208, v{208+2*k}, v{209+2*k}")
A(f"""
s_lshl_b32 s12, s6, 3
s_add_u32 s12, s12, s4
s_lshl_b32 s12, s12, 3
s_add_u32 s12, s12, s7
s_lshl_b32 s12, s12, 6
s_add_u32 s12, s12, {WS_ML}
v_mov_b32 v224, v208
v_mov_b32 v225, s64
v_mov_b32 v226, v192
v_mov_b32 v227, s64
v_lshlrev_b32 v9, 4, v8
v_cmp_gt_u32 vcc, 4, v2
s_and_saveexec_b64 s[20:21], vcc
buffer_store_dwordx4 v[224:227], v9, s[52:55], s12 offen sc1
s_mov_b64 exec, s[20:21]
""")
A.label("L_noML")
lds_wait(L_HRDY, 1, 8, name="hrdy")
A(f"""
v_lshlrev_b32 v9, 4, v4                  ; g*16
ds_read_b128 v[188:191], v9 offset:{L_H}
""")
lds_wait(L_GRDY, 1, 10, name="grdy")
A(f"""
v_mov_b32 v10, {L_G}
ds_read_b64 v[12:13], v10                ; g, 1-g
s_waitcnt lgkmcnt(0)
""")
A("s_waitcnt vmcnt(16)")
transpose_mfma(RW2, ACC, 188, TMP, True)
A("""
v_cmp_eq_u32 s[20:21], 1, v4
v_cmp_eq_u32 s[22:23], 2, v4
v_cmp_eq_u32 s[24:25], 3, v4
""")
def select(dst, e):
    A(f"v_cndmask_b32 v{dst}, v{ACC+4*(0+e)}, v{ACC+4*(2+e)}, s[20:21]")
    A(f"v_cndmask_b32 v{dst}, v{dst}, v{ACC+4*(4+e)}, s[22:23]")
    A(f"v_cndmask_b32 v{dst}, v{dst}, v{ACC+4*(6+e)}, s[24:25]")
select(14, 0); select(15, 1)
A("v_mul_f32 v14, v14, v13\nv_mul_f32 v15, v15, v13")
A("s_waitcnt vmcnt(8)")
transpose_only(R0, SP)
A("s_waitcnt vmcnt(0)")
transpose_only(R1, RW2)
stamp(7)
A("""
s_cmp_eq_u32 s3, 2
s_cbranch_scc0 L_waitoc
""")
get_tag(8)
A(f"""
s_lshl_b32 s12, s6, 3
s_add_u32 s12, s12, s4                   ; b*8+x
s_lshl_b32 s13, s12, 9
s_add_u32 s13, s13, {WS_ML}
s_lshl_b32 s12, s12, 15
s_lshl_b32 s8, s7, 12
s_add_u32 s12, s12, s8
s_add_u32 s12, s12, {WS_OP}
v_lshrrev_b32 v8, 5, v2                  ; ph
v_bfe_u32 v9, v2, 3, 2                   ; hh
v_lshlrev_b32 v8, 6, v8
v_lshl_add_u32 v8, v9, 4, v8
v_lshlrev_b32 v10, 4, v2                 ; l*16
""")
GM = 192; GO = 208
def mlloads():
    for i in range(4):
        A(f"buffer_load_dwordx4 v[{GM+4*i}:{GM+4*i+3}], v8, s[52:55], s13 offen offset:{i*128} sc1")
poll_loop("ml", mlloads, [GM + 4 * i for i in range(4)], 224, 225)
A(f"""
v_max_f32 v224, v{GM}, v{GM+4}
v_max3_f32 v224, v224, v{GM+8}, v{GM+12}
v_mov_b32 v225, v224
v_permlane32_swap_b32 v224, v225
v_max_f32 v224, v224, v225               ; M
""")
for i in range(4):
    A(f"v_sub_f32 v{GM+4*i}, v{GM+4*i}, v224")
for i in range(4):
    A(f"v_exp_f32 v{GM+4*i}, v{GM+4*i}")
A(f"""
v_mul_f32 v226, v{GM}, v{GM+2}
v_fmac_f32 v226, v{GM+4}, v{GM+6}
v_fmac_f32 v226, v{GM+8}, v{GM+10}
v_fmac_f32 v226, v{GM+12}, v{GM+14}
v_mov_b32 v227, v226
v_permlane32_swap_b32 v226, v227
v_add_f32 v226, v226, v227
v_rcp_f32 v226, v226
""")
for i in range(4):
    A(f"v_mul_f32 v{228+i}, v{GM+4*i}, v226")
stamp(8)
def oloads():
    for i in range(4):
        A(f"buffer_load_dwordx4 v[{GO+4*i}:{GO+4*i+3}], v10, s[52:55], s12 offen offset:{i*1024} sc1")
poll_loop("o", oloads, [GO + 4 * i for i in range(4)], 224, 225, sleep=1, cntreg=96)
stamp(9)
A(f"""
v_mul_f32 v232, v228, v{GO}
v_mul_f32 v233, v228, v{GO+2}
""")
for i in range(1, 4):
    A(f"v_fmac_f32 v232, v{228+i}, v{GO+4*i}\nv_fmac_f32 v233, v{228+i}, v{GO+4*i+2}")
A(f"""
v_mov_b32 v234, v232
v_mov_b32 v235, v233
v_permlane32_swap_b32 v232, v234
v_permlane32_swap_b32 v233, v235
v_add_f32 v232, v232, v234
v_add_f32 v233, v233, v235
v_cvt_pk_bf16_f32 v232, v232, v233
v_and_b32 v8, 31, v2
v_lshlrev_b32 v8, 2, v8                  ; (hh*8+dp)*4
ds_write_b32 v8, v232 offset:{L_OC}
v_mov_b32 v8, {L_OCR}
v_mov_b32 v9, 1
ds_write_b32 v8, v9
""")
A.label("L_waitoc")
get_tag(8)
lds_wait(L_OCR, 1, 8, name="ocr")
A(f"""
v_lshlrev_b32 v9, 4, v4
ds_read_b128 v[188:191], v9 offset:{L_OC}
ds_read_b128 v[192:195], v9 offset:{L_OC+64}
s_waitcnt lgkmcnt(0)
""")
for j in range(8):
    A(f"v_mfma_f32_16x16x32_bf16 v[{ACC+4*j}:{ACC+4*j+3}], v[188:191], v[{SP+4*j}:{SP+4*j+3}], 0")
for j in range(8):
    A(f"v_mfma_f32_16x16x32_bf16 v[{ACC+4*j}:{ACC+4*j+3}], v[192:195], v[{RW2+4*j}:{RW2+4*j+3}], v[{ACC+4*j}:{ACC+4*j+3}]")
select(8, 0); select(10, 1)
A(f"""
v_fma_f32 v8, v8, v12, v14
v_fma_f32 v10, v10, v12, v15
v_mov_b32 v9, s64
v_mov_b32 v11, s64
v_lshrrev_b32 v16, 2, v2
v_lshlrev_b32 v16, 12, v16
v_and_b32 v17, 3, v2
v_lshl_add_u32 v16, v17, 4, v16
s_lshl_b32 s12, s6, 18                   ; b*64*4096
s_lshl_b32 s13, s3, 16                   ; cg*16*4096
s_add_u32 s12, s12, s13
s_lshl_b32 s13, s4, 3
s_add_u32 s13, s13, s7                   ; j
s_lshl_b32 s8, s13, 6
s_add_u32 s12, s12, s8
s_add_u32 s12, s12, {WS_FP}
buffer_store_dwordx4 v[8:11], v16, s[52:55], s12 offen sc1
""")
stamp(10)
A("""
s_cmp_eq_u32 s3, 3
s_cbranch_scc0 L_stamp
""")
A(f"""
s_load_dwordx2 s[44:45], s[0:1], 80      ; out
s_lshl_b32 s12, s6, 18
s_lshl_b32 s8, s13, 12
s_add_u32 s12, s12, s8
s_add_u32 s12, s12, {WS_FP}
v_lshlrev_b32 v10, 4, v2
s_mov_b32 s46, 4096
s_mov_b32 s47, 0x20000
""")
GF = 16
def floads():
    for i in range(4):
        A(f"buffer_load_dwordx4 v[{GF+4*i}:{GF+4*i+3}], v10, s[52:55], s12 offen offset:{i*1024} sc1")
poll_loop("f", floads, [GF + 4 * i for i in range(4)], 8, 9, sleep=1, cntreg=96)
for c in (0, 2):
    A(f"v_add_f32 v{GF+c}, v{GF+c}, v{GF+4+c}\nv_add_f32 v{GF+8+c}, v{GF+8+c}, v{GF+12+c}")
for c in (0, 2):
    A(f"v_add_f32 v{GF+c}, v{GF+c}, v{GF+8+c}")
for sh in (4, 8):
    for c in (0, 2):
        A(f"v_add_f32_dpp v{GF+4+c}, v{GF+c}, v{GF+c} row_ror:{sh} row_mask:0xf bank_mask:0xf")
    for c in (0, 2):
        A(f"v_mov_b32 v{GF+c}, v{GF+4+c}")
for sw in ("16", "32"):
    for c in (0, 2):
        A(f"v_mov_b32 v{GF+4+c}, v{GF+c}")
    for c in (0, 2):
        A(f"v_permlane{sw}_swap_b32 v{GF+c}, v{GF+4+c}")
    for c in (0, 2):
        A(f"v_add_f32 v{GF+c}, v{GF+c}, v{GF+4+c}")
A(f"""
v_cvt_pk_bf16_f32 v8, v{GF}, v{GF+2}
s_lshr_b32 s8, s13, 4                    ; cg
s_lshl_b32 s8, s8, 8                     ; 128cg*2
s_and_b32 s9, s13, 3                     ; cq
s_lshl_b32 s9, s9, 6                     ; 8*4cq*2
s_add_u32 s8, s8, s9
s_bfe_u32 s9, s13, 0x20002               ; u
s_lshl_b32 s9, s9, 2
s_add_u32 s8, s8, s9
s_lshl_b32 s9, s6, 10
s_add_u32 s8, s8, s9
v_lshlrev_b32 v9, 4, v2                  ; t*16
v_cmp_gt_u32 vcc, 4, v2
s_waitcnt lgkmcnt(0)
s_and_saveexec_b64 s[20:21], vcc
buffer_store_dword v8, v9, s[44:47], s8 offen
s_mov_b64 exec, s[20:21]
""")
A(f"""
s_cmp_eq_u32 s2, 0
s_cbranch_scc0 L_stamp
v_mov_b32 v8, s64
v_mov_b32 v9, {WS_E}
v_cmp_eq_u32 vcc, 0, v2
s_and_saveexec_b64 s[20:21], vcc
buffer_store_dword v8, v9, s[52:55], 0 offen
s_mov_b64 exec, s[20:21]
s_branch L_stamp
""")
A.label("L_A")
A(f"""
s_load_dwordx2 s[44:45], s[0:1], 8       ; K
s_load_dwordx2 s[48:49], s[0:1], 16      ; V
s_load_dwordx2 s[52:53], s[0:1], 96      ; ws
s_sub_u32 s3, s3, 4                      ; a
""")
srd_consts(44, 67108864); srd_consts(48, 67108864); srd_consts(52, WS_SIZE)
A(f"""
s_lshl_b32 s8, s6, 3
s_add_u32 s8, s8, s4
s_lshl_b32 s8, s8, 21
s_add_u32 s8, s8, 0x180000
s_lshl_b32 s9, s7, 16
s_add_u32 s8, s8, s9
s_lshl_b32 s9, s3, 14
s_add_u32 s8, s8, s9
v_and_b32 v3, 15, v2
v_lshrrev_b32 v4, 4, v2
v_lshlrev_b32 v5, 8, v3
v_lshl_add_u32 v5, v4, 4, v5             ; voffK
v_lshlrev_b32 v6, 10, v4
v_lshl_add_u32 v6, v3, 4, v6             ; voffV
s_barrier
s_waitcnt lgkmcnt(0)
""")
KR = 16; VR = 80; QB = 144; S = 160; ACC = 192; TMP = 224; PB = 236
reg = KR
for t in range(4):
    A(f"s_add_u32 s10, s8, {t*4096}")
    for i in range(4):
        A(f"buffer_load_dwordx4 v[{reg}:{reg+3}], v5, s[44:47], s10 offen offset:{i*64}{ntf}")
        reg += 4
for u in range(2):
    for hi in range(2):
        A(f"s_add_u32 s10, s8, {u*8192+hi*4096}")
        for i4 in range(4):
            A(f"buffer_load_dwordx4 v[{reg}:{reg+3}], v6, s[48:51], s10 offen offset:{i4*256}{ntf}")
            reg += 4
A(f"v_mov_b32 v7, {L_VISS}\nv_mov_b32 v8, 1\ns_mov_b64 exec, 1\nds_add_u32 v7, v8\ns_mov_b64 exec, -1")
stamp(1)
lds_wait(L_QRDY, 1, 8, name="qrdy")
stamp(2)
A(f"""
v_and_b32 v8, 3, v2
v_lshlrev_b32 v9, 8, v8
v_lshl_add_u32 v9, v4, 4, v9
""")
for i in range(4):
    A(f"ds_read_b128 v[{QB+4*i}:{QB+4*i+3}], v9 offset:{L_Q+i*64}")
A("s_waitcnt lgkmcnt(0)")
for t in range(4):
    A(f"s_waitcnt vmcnt({16 + 4*(3-t)})")
    for i in range(4):
        r = KR + (t * 4 + i) * 4
        c = "0" if i == 0 else f"v[{S+4*t}:{S+4*t+3}]"
        A(f"v_mfma_f32_16x16x32_bf16 v[{S+4*t}:{S+4*t+3}], v[{r}:{r+3}], v[{QB+4*i}:{QB+4*i+3}], {c}")
stamp(3)
A("s_mov_b32 s20, 0x3db504f3\ns_mov_b32 s21, 0x3fb8aa3b\ns_mov_b32 s22, 0xffff0000")
for k in range(0, 16, 2):
    a, b = S + k, S + k + 1
    if MIMIC:
        A(f"""
v_cvt_pk_bf16_f32 v8, v{a}, v{b}
v_lshlrev_b32 v{a}, 16, v8
v_and_b32 v{b}, s22, v8
v_mul_f32 v{a}, s20, v{a}
v_mul_f32 v{b}, s20, v{b}
v_cvt_pk_bf16_f32 v8, v{a}, v{b}
v_lshlrev_b32 v{a}, 16, v8
v_and_b32 v{b}, s22, v8
v_mul_f32 v{a}, s21, v{a}
v_mul_f32 v{b}, s21, v{b}
""")
    else:
        A(f"v_mul_f32 v{a}, 0x3e0293ee, v{a}\nv_mul_f32 v{b}, 0x3e0293ee, v{b}")
A(f"v_max_f32 v10, v{S}, v{S+1}")
for k in range(1, 8):
    A(f"v_max3_f32 v10, v10, v{S+2*k}, v{S+2*k+1}")
A("s_lshl_b32 s9, s3, 4")
A(f"""
v_and_b32 v8, 3, v2
v_lshlrev_b32 v11, 6, v8                 ; head*64
v_lshl_add_u32 v12, v4, 2, v11           ; + g*4
v_add_u32 v12, s9, v12                   ; + a*16
ds_write_b32 v12, v10 offset:{L_MX}
v_mov_b32 v13, {L_MXC}
v_mov_b32 v14, 1
ds_add_u32 v13, v14
""")
lds_wait(L_MXC, 256, 8, name="mxc")
A(f"""
ds_read_b128 v[{KR}:{KR+3}], v11 offset:{L_MX}
ds_read_b128 v[{KR+4}:{KR+7}], v11 offset:{L_MX+16}
ds_read_b128 v[{KR+8}:{KR+11}], v11 offset:{L_MX+32}
ds_read_b128 v[{KR+12}:{KR+15}], v11 offset:{L_MX+48}
s_waitcnt lgkmcnt(0)
v_max_f32 v10, v{KR}, v{KR+1}
""")
for k in range(1, 8):
    A(f"v_max3_f32 v10, v10, v{KR+2*k}, v{KR+2*k+1}")
for k in range(16):
    A(f"v_sub_f32 v{S+k}, v{S+k}, v10")
for k in range(16):
    A(f"v_exp_f32 v{S+k}, v{S+k}")
A(f"v_add_f32 v10, v{S}, v{S+1}")
for k in range(2, 16):
    A(f"v_add_f32 v10, v10, v{S+k}")
A(f"""
ds_write_b32 v12, v10 offset:{L_LS}
v_mov_b32 v13, {L_LSC}
ds_add_u32 v13, v14
""")
for k in range(8):
    A(f"v_cvt_pk_bf16_f32 v{PB+k}, v{S+2*k}, v{S+2*k+1}")
stamp(4)
A("s_waitcnt vmcnt(8)")
transpose_mfma(VR, ACC, PB, TMP, True)
A("s_waitcnt vmcnt(0)")
stamp(5)
transpose_mfma(VR + 32, ACC, PB + 4, TMP, False)
A(f"""
s_lshl_b32 s9, s3, 11
v_lshlrev_b32 v8, 4, v3
v_add_u32 v8, s9, v8
s_mov_b64 exec, 0xffff
""")
for j in range(8):
    A(f"ds_write_b128 v8, v[{ACC+4*j}:{ACC+4*j+3}] offset:{L_OW+j*256}")
A(f"""
v_mov_b32 v13, {L_OWC}
ds_add_u32 v13, v14
s_mov_b64 exec, -1
""")
get_tag(16)
lds_wait(L_OWC, 64, 8, name="owc")
A(f"""
v_and_b32 v8, 3, v2
v_lshlrev_b32 v8, 9, v8
v_lshrrev_b32 v9, 2, v2
v_lshl_add_u32 v8, v9, 4, v8
s_lshl_b32 s9, s3, 2
s_add_u32 s9, s9, {L_OW}
v_add_u32 v8, s9, v8
""")
for w in range(4):
    A(f"ds_read2st64_b32 v[{16+2*w}:{17+2*w}], v8 offset0:{w*8} offset1:{w*8+1}")
A(f"""
s_waitcnt lgkmcnt(0)
v_add_f32 v16, v16, v18
v_add_f32 v17, v17, v19
v_add_f32 v20, v20, v22
v_add_f32 v21, v21, v23
v_add_f32 v24, v16, v20
v_add_f32 v26, v17, v21
v_mov_b32 v25, s64
v_mov_b32 v27, s64
s_lshl_b32 s12, s6, 3
s_add_u32 s12, s12, s4
s_lshl_b32 s12, s12, 15
s_lshl_b32 s13, s7, 9
s_add_u32 s12, s12, s13
s_lshl_b32 s13, s3, 7
s_add_u32 s12, s12, s13
s_add_u32 s12, s12, {WS_OP}
v_lshrrev_b32 v8, 3, v2
v_lshlrev_b32 v8, 12, v8
v_and_b32 v9, 7, v2
v_lshl_add_u32 v8, v9, 4, v8
buffer_store_dwordx4 v[24:27], v8, s[52:55], s12 offen sc1
""")
stamp(6)
A("s_add_u32 s3, s3, 4")
A.label("L_stamp")
if STAMPS:
    A("s_memrealtime s[94:95]")
    A("s_waitcnt lgkmcnt(0)")
    A(f"""
s_lshl_b32 s9, s2, 3
s_add_u32 s9, s9, s3
s_mul_i32 s9, s9, {NST*8}
s_add_u32 s9, s9, {STAMPOFF}
v_mov_b32 v4, 0
s_mov_b64 exec, 1
""")
    for k in range(0, NST, 2):
        A(f"v_mov_b32 v10, s{70+2*k}\nv_mov_b32 v11, s{71+2*k}\nv_mov_b32 v12, s{72+2*k}\nv_mov_b32 v13, s{73+2*k}")
        A(f"buffer_store_dwordx4 v[10:13], v4, s[52:55], s9 offen offset:{k*8}")
        A("s_nop 1")
A.label("L_end")
body = A.text()
if STAMPS:
    z = "".join(f"    s_mov_b64 s[{70+2*k}:{71+2*k}], 0\n" for k in range(NST))
    body = z + body
body = hazard.fix(body, verbose=True)
open(sys.argv[1], "w").write(wrap(body, 256, 512, LDS_BYTES, 248, 102))
```

```python
import sys
from asmgen import *
import hazard

opt = dict(a.split("=") for a in sys.argv[2:])
def O(name, default): return type(default)(opt.get(name, default)) if not isinstance(default, bool) else opt.get(name, "1" if default else "0") == "1"
STAMPS = O("stamps", False)
MIMIC = O("mimic", True)
NT = O("nt", True)
NTW = O("ntw", True)
NTO = O("nto", False)
QPOS = O("qpos", 8)
SPINMAX = O("spinmax", 20000)
FAST = O("fast", True)
FDELAY = O("fdelay", 0)
CLK = O("clk", False)
ROT = O("rot", True)
FINE = O("fine", True)
ntf = " nt" if NT else ""
ntw = " nt" if NTW else ""
nto = " nt" if NTO else ""

WS_E   = 0
WS_QP  = 0x10000
WS_HP  = 0x100000
WS_ML  = 0x180000
WS_OP  = 0x200000
WS_FP  = 0x300000
FASTD  = 0x400000
WS_SIZE = 268435456
STAMPOFF = 0x8000000
NST = 14
L_TAG = 0
L_QRDY = 8
L_HRDY = 12
L_VISS = 16
L_MLC = 20
L_FRDY = 24
L_OWC = 28
L_OCR = 32
L_GRDY = 36
L_OPUB = 40
L_PRDY = 48
L_Q = 0x100
L_ML = 0x500
L_F = 0x580
L_H = 0x600
L_G = 0x680
L_OC = 0x700
L_OW = 0x800
L_P = 0x2800
LDS_BYTES = 0x4800

A = Asm()
def stamp(k):
    if STAMPS: A(f"s_memrealtime s[{70+2*k}:{71+2*k}]")
def srd_consts(d, size):
    A(f"s_mov_b32 s{d+2}, {size}\ns_mov_b32 s{d+3}, 0x20000")

def lds_wait(addr, val, vt, name="w", sleep=1, addr_is_vreg=None):
    L = A.newlabel("Lw_" + name); Ld = A.newlabel("Lwd_" + name)
    if addr_is_vreg is None:
        A(f"v_mov_b32 v{vt+1}, {addr}"); av = vt + 1
    else: av = addr_is_vreg
    A(f"s_mov_b32 s15, 0")
    A.label(L)
    A(f"""
ds_read_b32 v{vt}, v{av}
s_waitcnt lgkmcnt(0)
v_readfirstlane_b32 s14, v{vt}
s_add_u32 s15, s15, 1
s_cmp_ge_u32 s14, {val}
s_cbranch_scc1 {Ld}
s_cmp_lt_u32 s15, {SPINMAX*16}
""" + (f"s_sleep {sleep}\n" if sleep else "") + f"s_cbranch_scc1 {L}")
    A.label(Ld)

def get_tag(vt):
    L = A.newlabel("Ltag"); Ld = A.newlabel("Ltagd")
    A(f"v_mov_b32 v{vt+2}, {L_TAG}\ns_mov_b32 s15, 0")
    A.label(L)
    A(f"""
ds_read_b64 v[{vt}:{vt+1}], v{vt+2}
s_waitcnt lgkmcnt(0)
v_readfirstlane_b32 s14, v{vt+1}
v_readfirstlane_b32 s64, v{vt}
s_add_u32 s15, s15, 1
s_cmp_eq_u32 s14, 1
s_cbranch_scc1 {Ld}
s_cmp_lt_u32 s15, {SPINMAX*16}
s_sleep 1
s_cbranch_scc1 {L}
""")
    A.label(Ld)

def Pj(raw, j, t, npair=4):
    k = j // 2; sel = "s66" if j % 2 == 0 else "s67"
    for p in range(npair):
        A(f"v_perm_b32 v{t+p}, v{raw+(2*p+1)*4+k}, v{raw+(2*p)*4+k}, {sel}")

def transpose_mfma(raw, acc, aop, tmp, first):
    def P(j): Pj(raw, j, tmp + 4 * (j % 3))
    def M(j):
        t = tmp + 4 * (j % 3)
        c = "0" if first else f"v[{acc+4*j}:{acc+4*j+3}]"
        A(f"v_mfma_f32_16x16x32_bf16 v[{acc+4*j}:{acc+4*j+3}], v[{aop}:{aop+3}], v[{t}:{t+3}], {c}")
    P(0); P(1); M(0)
    for j in range(2, 8):
        P(j); M(j - 1)
    M(7)

def transpose_only(raw, dst):
    for j in range(8): Pj(raw, j, dst + 4 * j)

def tagcheck(regs, vmin, vmax):
    first = True
    for r in regs:
        if first:
            A(f"v_min_u32 v{vmin}, v{r+1}, v{r+3}\nv_max_u32 v{vmax}, v{r+1}, v{r+3}"); first = False
        else:
            A(f"v_min3_u32 v{vmin}, v{vmin}, v{r+1}, v{r+3}\nv_max3_u32 v{vmax}, v{vmax}, v{r+1}, v{r+3}")
    A(f"v_xor_b32 v{vmin}, s64, v{vmin}\nv_xor_b32 v{vmax}, s64, v{vmax}\nv_or_b32 v{vmin}, v{vmin}, v{vmax}\nv_cmp_ne_u32 vcc, 0, v{vmin}")

def poll_loop(name, emit_loads, regs, vmin, vmax, sleep=2, cntreg=None, preissued=None, fast=False):
    L = A.newlabel("Lp_" + name); Ld = A.newlabel("Lpd_" + name); Lc = A.newlabel("Lpc_" + name)
    A("s_mov_b32 s15, 0")
    if preissued is not None:
        A(f"s_waitcnt vmcnt({preissued})")
        A(f"s_branch {Lc}")
    A.label(L)
    if fast:
        A(f"s_and_b32 s14, s15, 3\ns_cmp_eq_u32 s14, 3\ns_cselect_b32 s27, 0, {FASTD}")
    emit_loads()
    A("s_waitcnt vmcnt(0)")
    A.label(Lc)
    tagcheck(regs, vmin, vmax)
    A(f"""
s_add_u32 s15, s15, 1
s_cbranch_vccz {Ld}
s_cmp_lt_u32 s15, {SPINMAX}
""" + (f"s_sleep {sleep}\n" if sleep else "") + f"s_cbranch_scc1 {L}")
    A.label(Ld)
    if cntreg is not None: A(f"s_mov_b32 s{cntreg}, s15")

def pub(regs, voff, soff, off=0, fast=True):
    o = f" offset:{off}" if off else ""
    if fast and FAST:
        A(f"s_add_u32 s29, s{soff}, {FASTD}")
        A(f"buffer_store_dwordx4 {regs}, v{voff}, s[52:55], s29 offen{o}")
    A(f"buffer_store_dwordx4 {regs}, v{voff}, s[52:55], s{soff} offen{o} sc1")

D0 = FASTD if FAST else 0
A("""
s_cmp_ge_u32 s2, 256
s_cbranch_scc1 L_end
v_lshrrev_b32 v1, 6, v0
v_and_b32 v2, 63, v0
v_readfirstlane_b32 s3, v1
s_and_b32 s4, s2, 7
s_lshr_b32 s5, s2, 3                     ; r
s_lshr_b32 s6, s5, 3                     ; b
s_and_b32 s7, s5, 7                      ; s (split)
s_lshl_b32 s18, s4, 3
s_add_u32 s18, s18, s7                   ; j = x*8 + s
s_mov_b32 s66, 0x05040100
s_mov_b32 s67, 0x07060302
s_load_dwordx2 s[52:53], s[0:1], 96      ; ws
""")
stamp(0)
if CLK: A("s_memtime s[90:91]")
srd_consts(52, WS_SIZE)
A("""
s_mov_b32 s30, s3
s_cmp_lt_u32 s3, 4
s_cbranch_scc1 L_K
s_cmp_ge_u32 s3, 8
s_cbranch_scc1 L_O
s_load_dwordx2 s[40:41], s[0:1], 16      ; V
s_sub_u32 s3, s3, 4                      ; a
s_cmp_ge_u32 s3, 2
s_cbranch_scc1 L_V23
""")
A("s_load_dwordx2 s[48:49], s[0:1], 0")
A("s_setprio 3")
A("""
s_cmp_eq_u32 s3, 0
s_cbranch_scc0 L_W1setup
s_load_dwordx2 s[44:45], s[0:1], 24
s_mov_b32 s46, 4194304
s_movk_i32 s10, 8192
s_lshl_b32 s9, s6, 20
s_lshl_b32 s11, s7, 7
s_add_u32 s9, s9, s11
s_lshl_b32 s11, s4, 10
s_add_u32 s9, s9, s11
s_lshl_b32 s11, s6, 8
s_lshl_b32 s12, s4, 16
s_lshl_b32 s13, s6, 12
s_add_u32 s12, s12, s13
s_lshl_b32 s13, s7, 9
s_add_u32 s12, s12, s13
""" + f"""
s_add_u32 s12, s12, {WS_QP}
s_movk_i32 s13, 16384
s_movk_i32 s16, 256
s_branch L_prod
""")
A.label("L_W1setup")
A(f"""
s_and_b32 s8, s2, 1
s_cmp_eq_u32 s8, 0
s_cbranch_scc0 L_W1b
s_load_dwordx2 s[44:45], s[0:1], 48
s_branch L_W1c
""")
A.label("L_W1b")
A("s_load_dwordx2 s[44:45], s[0:1], 56")
A.label("L_W1c")
A(f"""
s_mov_b32 s46, 1835008
s_movk_i32 s10, 3584
s_lshr_b32 s9, s2, 1
s_mul_i32 s11, s9, 2341
s_lshr_b32 s11, s11, 16
s_mul_i32 s12, s11, 28
s_sub_u32 s12, s9, s12
s_mul_i32 s9, s11, {128*3584}
s_lshl_b32 s13, s12, 7
s_add_u32 s9, s9, s13
s_mul_i32 s13, s8, 229376
s_lshl_b32 s12, s12, 9
s_add_u32 s12, s12, s13
s_mul_i32 s13, s11, 57344
s_add_u32 s12, s12, s13
s_add_u32 s12, s12, {WS_HP}
s_movk_i32 s13, 14336
s_lshl_b32 s11, s11, 8
s_movk_i32 s16, 224
""")
A.label("L_prod")
srd_consts(48, 4096)
A(f"""
s_mov_b32 s47, 0x20000
v_lshrrev_b32 v3, 3, v2
v_and_b32 v4, 7, v2
v_lshlrev_b32 v4, 4, v4
s_lshl_b32 s8, s10, 3
v_mul_lo_u32 v5, v3, s8
v_add_u32 v5, v5, v4
v_and_b32 v6, 15, v2
v_lshrrev_b32 v7, 2, v6
v_lshlrev_b32 v7, 10, v7
v_and_b32 v8, 1, v2
v_lshrrev_b32 v9, 4, v2
v_lshl_add_u32 v8, v9, 1, v8
v_lshl_add_u32 v7, v8, 4, v7
v_mul_lo_u32 v10, v9, s13
v_lshl_add_u32 v10, v6, 4, v10
v_cmp_le_u32 s[68:69], 8, v6
s_mul_i32 s17, s10, 57
s_cmp_ge_u32 s2, s16
s_waitcnt lgkmcnt(0)
s_cbranch_scc1 L_prod_skip
""")
XA = 80
RAW = 16
A(f"buffer_load_dwordx4 v[{XA}:{XA+3}], v7, s[48:51], s11 offen")
A(f"buffer_load_dwordx4 v[{XA+4}:{XA+7}], v7, s[48:51], s11 offen offset:128")
A("s_mov_b32 s14, s9")
for e in range(2):
    for i in range(8):
        r = RAW + (e * 8 + i) * 4
        A(f"buffer_load_dwordx4 v[{r}:{r+3}], v5, s[44:47], s14 offen{ntw}")
        if not (e == 1 and i == 7):
            A("s_add_u32 s14, s14, s17" if i == 7 else "s_add_u32 s14, s14, s10")
A(f"s_load_dword s65, s[52:53], {WS_E}")
A("s_barrier")
A(f"""
s_cmp_eq_u32 s3, 0
s_cbranch_scc0 L_prod_notag
s_waitcnt lgkmcnt(0)
s_mul_i32 s64, s65, 0x9E3779B1
s_add_u32 s64, s64, 0x7F4A7C15
v_mov_b32 v96, s64
v_mov_b32 v97, 1
v_mov_b32 v98, {L_TAG}
ds_write_b64 v98, v[96:97]
s_branch L_prod_havetag
""")
A.label("L_prod_notag")
get_tag(96)
A.label("L_prod_havetag")
PUB = 88
for k in range(4):
    A(f"v_mov_b32 v{PUB+2*k+1}, s64")
stamp(1)
ACC = 112; TMP = 96
A("s_waitcnt vmcnt(8)")
transpose_mfma(RAW, ACC, XA, TMP, True)
A("s_waitcnt vmcnt(0)")
transpose_mfma(RAW + 32, ACC, XA + 4, TMP, False)
for k in range(4):
    A(f"v_cndmask_b32 v{144+k}, v{ACC+4*k+0}, v{ACC+4*(4+k)+1}, s[68:69]")
    A(f"v_cndmask_b32 v{148+k}, v{ACC+4*(4+k)+0}, v{ACC+4*k+1}, s[68:69]")
for k in range(4):
    A(f"v_add_f32_dpp v{PUB+2*k}, v{148+k}, v{144+k} row_ror:8 row_mask:0xf bank_mask:0xf")
if FAST:
    A(f"s_cmp_eq_u32 s3, 0\ns_cbranch_scc0 L_nofastq\ns_add_u32 s29, s12, {FASTD}")
    A(f"buffer_store_dwordx4 v[{PUB}:{PUB+3}], v10, s[52:55], s29 offen")
    A(f"buffer_store_dwordx4 v[{PUB+4}:{PUB+7}], v10, s[52:55], s29 offen offset:256")
    A.label("L_nofastq")
A(f"buffer_store_dwordx4 v[{PUB}:{PUB+3}], v10, s[52:55], s12 offen sc1")
A(f"buffer_store_dwordx4 v[{PUB+4}:{PUB+7}], v10, s[52:55], s12 offen offset:256 sc1")
stamp(2)
A("s_branch L_V")
A.label("L_prod_skip")
A("s_barrier\ns_branch L_V")
A.label("L_V23")
A("""
s_cmp_eq_u32 s3, 3
s_cbranch_scc1 L_W3
s_barrier
s_branch L_V
""")
A.label("L_W3")
A(f"""
s_load_dwordx2 s[48:49], s[0:1], 0       ; x
s_load_dwordx2 s[44:45], s[0:1], 72      ; gate_w
s_setprio 3
v_mov_b32 v4, 0
v_mov_b32 v5, 0
v_mov_b32 v6, 0
v_mov_b32 v7, 0
v_mov_b32 v8, 0
ds_write_b128 v8, v[4:7]
ds_write_b128 v8, v[4:7] offset:16
ds_write_b128 v8, v[4:7] offset:32
ds_write_b128 v8, v[4:7] offset:48
s_mov_b32 s50, 4096
s_mov_b32 s51, 0x20000
s_mov_b32 s46, 1024
s_mov_b32 s47, 0x20000
v_lshlrev_b32 v3, 4, v2
s_lshl_b32 s8, s6, 10
s_waitcnt lgkmcnt(0)
buffer_load_dwordx4 v[16:19], v3, s[48:51], s8 offen
buffer_load_dwordx4 v[20:23], v3, s[44:47], 0 offen
s_barrier
s_waitcnt vmcnt(0)
""")
for k in range(4):
    A(f"""
v_lshlrev_b32 v{24+2*k}, 16, v{16+k}
v_and_b32 v{25+2*k}, 0xffff0000, v{16+k}
v_lshlrev_b32 v{32+2*k}, 16, v{20+k}
v_and_b32 v{33+2*k}, 0xffff0000, v{20+k}
v_mul_f32 v{24+2*k}, v{24+2*k}, v{32+2*k}
v_mul_f32 v{25+2*k}, v{25+2*k}, v{33+2*k}
v_cvt_pk_bf16_f32 v{40+k}, v{24+2*k}, v{25+2*k}
""")
A("v_mov_b32 v44, 0")
for k in range(4):
    A(f"""
v_lshlrev_b32 v24, 16, v{40+k}
v_and_b32 v25, 0xffff0000, v{40+k}
v_add_f32 v44, v44, v24
v_add_f32 v44, v44, v25
""")
for sh in (1, 2, 4, 8):
    A(f"v_add_f32_dpp v45, v44, v44 row_ror:{sh} row_mask:0xf bank_mask:0xf\nv_mov_b32 v44, v45")
A("""
v_mov_b32 v45, v44
v_permlane16_swap_b32 v44, v45
v_add_f32 v44, v44, v45
v_mov_b32 v45, v44
v_permlane32_swap_b32 v44, v45
v_add_f32 v44, v44, v45
v_cvt_pk_bf16_f32 v44, v44, v44
v_lshlrev_b32 v44, 16, v44
v_mul_f32 v45, 0xbfb8aa3b, v44
v_exp_f32 v45, v45
v_add_f32 v45, 1.0, v45
v_rcp_f32 v45, v45
v_cvt_pk_bf16_f32 v45, v45, v45
v_lshlrev_b32 v46, 16, v45
v_sub_f32 v47, 1.0, v46
v_cvt_pk_bf16_f32 v47, v47, v47
v_lshlrev_b32 v47, 16, v47
""" + f"""
v_mov_b32 v4, {L_G}
ds_write_b64 v4, v[46:47]
v_mov_b32 v5, {L_GRDY}
v_mov_b32 v6, 1
ds_write_b32 v5, v6
""")
stamp(2)
A.label("L_V")
VR = 16; ACC = 112; TMP = 96; PB = 144
A("s_setprio 1")
A(f"""
s_waitcnt lgkmcnt(0)
s_mov_b32 s48, s40
s_mov_b32 s49, s41
s_mov_b32 s50, 67108864
s_mov_b32 s51, 0x20000
s_lshl_b32 s8, s6, 3
s_add_u32 s8, s8, s4                     ; b*8+x
s_lshl_b32 s16, s8, 15
s_lshl_b32 s8, s8, 21
s_add_u32 s8, s8, 0x180000
s_lshl_b32 s9, s7, 16
s_add_u32 s8, s8, s9
s_lshl_b32 s9, s3, 14
s_add_u32 s8, s8, s9                     ; V base
v_and_b32 v3, 15, v2
v_lshrrev_b32 v4, 4, v2
v_lshlrev_b32 v6, 10, v4
v_lshl_add_u32 v6, v3, 4, v6             ; voffV
""")
reg = VR
for u in range(2):
    for hi in range(2):
        A(f"s_add_u32 s10, s8, {u*8192+hi*4096}")
        for i4 in range(4):
            A(f"buffer_load_dwordx4 v[{reg}:{reg+3}], v6, s[48:51], s10 offen offset:{i4*256}{ntf}")
            reg += 4
A(f"v_mov_b32 v8, {L_VISS}\nv_mov_b32 v14, 1\ns_mov_b64 exec, 1\nds_add_u32 v8, v14\ns_mov_b64 exec, -1")
A("s_setprio 2")
stamp(3)
get_tag(8)
A(f"""
s_lshl_b32 s13, s7, 9
s_add_u32 s16, s16, s13
s_lshl_b32 s13, s3, 7
s_add_u32 s16, s16, s13
s_add_u32 s16, s16, {WS_OP}
s_lshl_b32 s9, s3, 11
v_lshlrev_b32 v10, 4, v3
v_add_u32 v10, s9, v10
v_and_b32 v11, 3, v2
v_lshlrev_b32 v11, 9, v11
v_lshrrev_b32 v9, 2, v2
v_lshl_add_u32 v11, v9, 4, v11
s_lshl_b32 s9, s3, 2
s_add_u32 s9, s9, {L_OW}
v_add_u32 v11, s9, v11
v_lshrrev_b32 v12, 3, v2
v_lshlrev_b32 v12, 12, v12
v_and_b32 v9, 7, v2
v_lshl_add_u32 v12, v9, 4, v12
v_mov_b32 v153, s64
v_mov_b32 v155, s64
v_mov_b32 v13, {L_OWC}
s_lshl_b32 s9, s3, 2
s_add_u32 s9, s9, {L_PRDY}
v_mov_b32 v15, s9
s_lshl_b32 s9, s3, 11
v_lshlrev_b32 v5, 4, v2
v_add_u32 v5, s9, v5
s_lshl_b32 s9, s3, 4
v_mov_b32 v7, s9
""")
lds_wait(None, 1, 8, name="prdy", sleep=1, addr_is_vreg=15)
A(f"""
ds_read_b128 v[{PB}:{PB+3}], v5 offset:{L_P}
ds_read_b128 v[{PB+4}:{PB+7}], v5 offset:{L_P+1024}
""")
stamp(5)
A("s_waitcnt vmcnt(8) lgkmcnt(0)")
transpose_mfma(VR, ACC, PB, TMP, True)
lds_wait(L_FRDY, 4, 8, name="frdy", sleep=0)
A(f"ds_read_b128 v[156:159], v7 offset:{L_F}")
if FINE:
    T1 = 64 if False else 120 + 40
    T1 = 16
    for p in range(4):
        A(f"s_waitcnt vmcnt({6-2*p})")
        for j in range(8):
            k = j // 2; sel = "s66" if j % 2 == 0 else "s67"
            A(f"v_perm_b32 v{T1+4*j+p}, v{VR+32+(2*p+1)*4+k}, v{VR+32+(2*p)*4+k}, {sel}")
    stamp(6)
    for j in range(8):
        A(f"v_mfma_f32_16x16x32_bf16 v[{ACC+4*j}:{ACC+4*j+3}], v[{PB+4}:{PB+7}], v[{T1+4*j}:{T1+4*j+3}], v[{ACC+4*j}:{ACC+4*j+3}]")
else:
    A("s_waitcnt vmcnt(0)")
    stamp(6)
    transpose_mfma(VR + 32, ACC, PB + 4, TMP, False)
A("s_mov_b64 exec, 0xffff")
for j in range(8):
    A(f"ds_write_b128 v10, v[{ACC+4*j}:{ACC+4*j+3}] offset:{L_OW+j*256}")
A(f"""
ds_add_u32 v13, v14
s_mov_b64 exec, -1
""")
lds_wait(L_OWC, 64, 8, name="owc", sleep=0)
for w in range(4):
    A(f"ds_read2st64_b32 v[{16+2*w}:{17+2*w}], v11 offset0:{w*8} offset1:{w*8+1}")
A(f"""
s_waitcnt lgkmcnt(0)
v_mul_f32 v152, v16, v156
v_mul_f32 v154, v17, v156
v_fmac_f32 v152, v18, v157
v_fmac_f32 v154, v19, v157
v_fmac_f32 v152, v20, v158
v_fmac_f32 v154, v21, v158
v_fmac_f32 v152, v22, v159
v_fmac_f32 v154, v23, v159
""")
pub("v[152:155]", 12, 16)
A(f"v_mov_b32 v8, {L_OPUB}\ns_mov_b64 exec, 1\nds_add_u32 v8, v14\ns_mov_b64 exec, -1")
stamp(7)
A("s_branch L_stamp")
A.label("L_O")
RW2 = 16; R0 = 48; R1 = 80; ACC = 112; TMP = 144; AH = 156; AO = 160
A(f"""
s_load_dwordx2 s[56:57], s[0:1], 32      ; wo
s_load_dwordx2 s[60:61], s[0:1], 64      ; w2
s_sub_u32 s3, s3, 8                      ; cg
s_mov_b32 s58, 4194304
s_mov_b32 s59, 0x20000
s_mov_b32 s62, 1835008
s_mov_b32 s63, 0x20000
v_and_b32 v3, 15, v2
v_lshrrev_b32 v4, 4, v2
v_lshrrev_b32 v7, 1, v4
v_and_b32 v8, 1, v4
v_lshlrev_b32 v5, 17, v7
v_lshl_add_u32 v5, v8, 13, v5
v_lshl_add_u32 v5, v3, 4, v5             ; voffO
v_lshlrev_b32 v6, 13, v4
v_lshl_add_u32 v6, v3, 4, v6             ; voffW2
s_lshl_b32 s9, s4, 19
s_lshl_b32 s10, s7, 14
s_add_u32 s9, s9, s10
s_lshl_b32 s10, s3, 8
s_add_u32 s9, s9, s10
s_mul_i32 s11, s18, {28*1024}
s_add_u32 s11, s11, s10                  ; w2 base
s_lshl_b32 s17, s6, 18
s_lshl_b32 s8, s3, 16
s_add_u32 s17, s17, s8
s_lshl_b32 s8, s18, 6
s_add_u32 s17, s17, s8
s_add_u32 s17, s17, {WS_FP}
v_cmp_eq_u32 s[20:21], 1, v4
v_cmp_eq_u32 s[22:23], 2, v4
v_cmp_eq_u32 s[24:25], 3, v4
""")
A("s_mov_b32 s31, s6" if ROT else "s_mov_b32 s31, 0")
A(f"s_lshl_b32 s8, s31, 2\ns_add_u32 s8, s8, {L_H}\nv_lshlrev_b32 v7, 5, v4\nv_add_u32 v7, s8, v7")
A("s_lshl_b32 s8, s31, 1")
for k in range(8):
    A(f"s_add_u32 s{32+k}, s8, {k}\ns_and_b32 s{32+k}, s{32+k}, 7\ns_lshl_b32 s{32+k}, s{32+k}, 10")
A("s_barrier")
lds_wait(L_VISS, 4, 8, name="viss", sleep=2)
stamp(3)
def oload(srd, voff, base_sreg, extra, reg0):
    for k in range(8):
        A(f"s_add_u32 s12, s{base_sreg}, s{32+k}")
        if extra: A(f"s_add_u32 s12, s12, {extra}")
        A(f"buffer_load_dwordx4 v[{reg0+4*k}:{reg0+4*k+3}], v{voff}, s[{srd}:{srd+3}], s12 offen{nto}")
oload(60, 6, 11, 0, RW2)
oload(56, 5, 9, 0, R0)
oload(56, 5, 9, 2*128*1024, R1)
A("s_setprio 2")
stamp(4)
get_tag(8)
A("""
v_lshrrev_b32 v10, 2, v2
v_lshlrev_b32 v10, 12, v10
v_and_b32 v8, 3, v2
v_lshl_add_u32 v10, v8, 4, v10
""")
lds_wait(L_HRDY, 1, 8, name="hrdy")
A(f"ds_read2_b32 v[{AH}:{AH+1}], v7 offset0:0 offset1:1\nds_read2_b32 v[{AH+2}:{AH+3}], v7 offset0:2 offset1:3")
lds_wait(L_GRDY, 1, 8, name="grdy")
A(f"""
v_mov_b32 v11, {L_G}
ds_read_b64 v[12:13], v11
s_waitcnt lgkmcnt(0)
s_waitcnt vmcnt(16)
""")
transpose_mfma(RW2, ACC, AH, TMP, True)
def select(dst, e):
    A(f"v_cndmask_b32 v{dst}, v{ACC+4*(0+e)}, v{ACC+4*(2+e)}, s[20:21]")
    A(f"v_cndmask_b32 v{dst}, v{dst}, v{ACC+4*(4+e)}, s[22:23]")
    A(f"v_cndmask_b32 v{dst}, v{dst}, v{ACC+4*(6+e)}, s[24:25]")
select(14, 0); select(15, 1)
A("v_mul_f32 v14, v14, v13\nv_mul_f32 v15, v15, v13")
A(f"s_waitcnt vmcnt(8)")
transpose_only(R0, RW2)
A(f"s_waitcnt vmcnt(0)")
transpose_only(R1, R0)
A(f"v_mov_b32 v81, s64\nv_mov_b32 v83, s64\nv_mov_b32 v11, {L_OPUB}\nv_mov_b32 v6, 1")
stamp(8)
lds_wait(L_OCR, 1, 8, name="ocr", sleep=0)
A(f"""
ds_read2_b32 v[{AO}:{AO+1}], v7 offset0:64 offset1:65
ds_read2_b32 v[{AO+2}:{AO+3}], v7 offset0:66 offset1:67
ds_read2_b32 v[{AO+4}:{AO+5}], v7 offset0:96 offset1:97
ds_read2_b32 v[{AO+6}:{AO+7}], v7 offset0:98 offset1:99
s_waitcnt lgkmcnt(0)
""")
for j in range(8):
    A(f"v_mfma_f32_16x16x32_bf16 v[{ACC+4*j}:{ACC+4*j+3}], v[{AO}:{AO+3}], v[{RW2+4*j}:{RW2+4*j+3}], 0")
for j in range(8):
    A(f"v_mfma_f32_16x16x32_bf16 v[{ACC+4*j}:{ACC+4*j+3}], v[{AO+4}:{AO+7}], v[{R0+4*j}:{R0+4*j+3}], v[{ACC+4*j}:{ACC+4*j+3}]")
select(80, 0); select(82, 1)
A(f"""
v_fma_f32 v80, v80, v12, v14
v_fma_f32 v82, v82, v12, v15
buffer_store_dwordx4 v[80:83], v10, s[52:55], s17 offen sc1
s_mov_b64 exec, 1
ds_add_u32 v11, v6
s_mov_b64 exec, -1
""")
stamp(9)
A("s_branch L_stamp")
A.label("L_K")
A(f"""
s_load_dwordx2 s[44:45], s[0:1], 8       ; K
s_setprio 2
""")
srd_consts(44, 67108864)
A(f"""
s_lshl_b32 s8, s6, 3
s_add_u32 s8, s8, s4                     ; b*8+x
s_lshl_b32 s17, s8, 9
s_lshl_b32 s8, s8, 21
s_add_u32 s8, s8, 0x180000
s_lshl_b32 s9, s7, 16
s_add_u32 s8, s8, s9
s_lshl_b32 s9, s3, 14
s_add_u32 s8, s8, s9                     ; K base
s_lshl_b32 s13, s7, 6
s_add_u32 s17, s17, s13
s_lshl_b32 s13, s3, 4
s_add_u32 s17, s17, s13
s_add_u32 s17, s17, {WS_ML}
s_lshl_b32 s12, s4, 2
s_add_u32 s12, s12, s6
s_lshl_b32 s12, s12, 14
s_lshl_b32 s13, s3, 10
s_add_u32 s12, s12, s13
s_add_u32 s12, s12, {WS_QP}
s_mov_b32 s27, {D0}
v_and_b32 v3, 15, v2
v_lshrrev_b32 v4, 4, v2
v_lshlrev_b32 v5, 8, v3
v_lshl_add_u32 v5, v4, 4, v5             ; voffK
v_lshlrev_b32 v7, 4, v2                  ; l*16
s_waitcnt lgkmcnt(0)
s_barrier
""")
KR = 16; QB = 80; S = 96; PB = 128; QG = 112
reg = KR
for t in range(4):
    A(f"s_add_u32 s10, s8, {t*4096}")
    for i in range(4):
        A(f"buffer_load_dwordx4 v[{reg}:{reg+3}], v5, s[44:47], s10 offen offset:{i*64}{ntf}")
        reg += 4
stamp(1)
def qloads():
    A("s_add_u32 s28, s12, s27")
    for ks in range(4):
        A(f"s_add_u32 s13, s28, {ks*4096}")
        A(f"buffer_load_dwordx4 v[{QG+4*ks}:{QG+4*ks+3}], v7, s[52:55], s13 offen sc1")
get_tag(8)
A(f"""
v_lshrrev_b32 v10, 5, v2
v_lshlrev_b32 v10, 7, v10
v_and_b32 v11, 7, v2
v_lshl_add_u32 v10, v11, 4, v10
v_bfe_u32 v11, v2, 3, 1
v_lshl_add_u32 v10, v11, 3, v10
v_bfe_u32 v11, v2, 4, 1
v_lshl_add_u32 v10, v11, 2, v10
s_lshl_b32 s9, s3, 8
v_add_u32 v10, s9, v10
v_and_b32 v8, 3, v2
v_lshlrev_b32 v9, 8, v8
v_lshl_add_u32 v15, v4, 4, v9
v_mov_b32 v14, 1
s_lshl_b32 s9, s3, 11
v_add_u32 v6, s9, v7
s_lshl_b32 s9, s3, 5
v_lshl_add_u32 v12, v8, 3, s9
s_lshl_b32 s9, s3, 2
s_add_u32 s9, s9, {L_PRDY}
v_mov_b32 v11, s9
""")
A(f"s_waitcnt vmcnt({QPOS})")
stamp(2)
qloads()
poll_loop("q", qloads, [QG + 4 * n for n in range(4)], 8, 9, sleep=1, cntreg=96, preissued=0, fast=FAST)
stamp(3)
for c in (0, 2):
    A(f"v_add_f32 v{QG+c}, v{QG+c}, v{QG+4+c}\nv_add_f32 v{QG+8+c}, v{QG+8+c}, v{QG+12+c}")
for c in (0, 2):
    A(f"v_add_f32 v{QG+c}, v{QG+c}, v{QG+8+c}")
A(f"""
v_cvt_pk_bf16_f32 v8, v{QG}, v{QG+2}
v_mov_b32 v13, {L_QRDY}
ds_write_b32 v10, v8 offset:{L_Q}
ds_add_u32 v13, v14
""")
lds_wait(L_QRDY, 256, 8, name="qrdy", sleep=0)
for i in range(4):
    A(f"ds_read_b128 v[{QB+4*i}:{QB+4*i+3}], v15 offset:{L_Q+i*64}")
A("s_waitcnt lgkmcnt(0)")
for i in range(4):
    for t in range(4):
        r = KR + (t * 4 + i) * 4
        c = "0" if i == 0 else f"v[{S+4*t}:{S+4*t+3}]"
        A(f"v_mfma_f32_16x16x32_bf16 v[{S+4*t}:{S+4*t+3}], v[{r}:{r+3}], v[{QB+4*i}:{QB+4*i+3}], {c}")
A("s_mov_b32 s24, 0x3db504f3\ns_mov_b32 s25, 0x3fb8aa3b\ns_mov_b32 s26, 0xffff0000")
if MIMIC:
    T = 16
    for k in range(8): A(f"v_cvt_pk_bf16_f32 v{T+k}, v{S+2*k}, v{S+2*k+1}")
    for k in range(8): A(f"v_lshlrev_b32 v{S+2*k}, 16, v{T+k}\nv_and_b32 v{S+2*k+1}, s26, v{T+k}")
    for k in range(16): A(f"v_mul_f32 v{S+k}, s24, v{S+k}")
    for k in range(8): A(f"v_cvt_pk_bf16_f32 v{T+k}, v{S+2*k}, v{S+2*k+1}")
    for k in range(8): A(f"v_lshlrev_b32 v{S+2*k}, 16, v{T+k}\nv_and_b32 v{S+2*k+1}, s26, v{T+k}")
    A(f"v_max3_f32 v10, v{S}, v{S+1}, v{S+2}\nv_max3_f32 v9, v{S+3}, v{S+4}, v{S+5}")
    A(f"v_max3_f32 v10, v10, v{S+6}, v{S+7}\nv_max3_f32 v9, v9, v{S+8}, v{S+9}")
    A(f"v_max3_f32 v10, v10, v{S+10}, v{S+11}\nv_max3_f32 v9, v9, v{S+12}, v{S+13}")
    A(f"v_max3_f32 v10, v10, v{S+14}, v{S+15}\nv_max_f32 v10, v10, v9")
    SC = "s25"
else:
    A(f"v_max3_f32 v10, v{S}, v{S+1}, v{S+2}\nv_max3_f32 v9, v{S+3}, v{S+4}, v{S+5}")
    A(f"v_max3_f32 v10, v10, v{S+6}, v{S+7}\nv_max3_f32 v9, v9, v{S+8}, v{S+9}")
    A(f"v_max3_f32 v10, v10, v{S+10}, v{S+11}\nv_max3_f32 v9, v9, v{S+12}, v{S+13}")
    A(f"v_max3_f32 v10, v10, v{S+14}, v{S+15}\nv_max_f32 v10, v10, v9")
    A("s_mov_b32 s25, 0x3e0293ee")
    SC = "s25"
A(f"""
v_mov_b32 v9, v10
v_permlane16_swap_b32 v10, v9
v_max_f32 v10, v10, v9
v_mov_b32 v9, v10
v_permlane32_swap_b32 v10, v9
v_max_f32 v10, v10, v9
v_mul_f32 v10, {SC}, v10
""")
for k in range(16):
    A(f"v_fma_f32 v{S+k}, v{S+k}, {SC}, -v10")
for k in range(16):
    A(f"v_exp_f32 v{S+k}, v{S+k}")
for k in range(8):
    A(f"v_cvt_pk_bf16_f32 v{PB+k}, v{S+2*k}, v{S+2*k+1}")
A(f"""
ds_write_b128 v6, v[{PB}:{PB+3}] offset:{L_P}
ds_write_b128 v6, v[{PB+4}:{PB+7}] offset:{L_P+1024}
ds_write_b32 v11, v14
""")
stamp(4)
A(f"v_add_f32 v9, v{S}, v{S+1}\nv_add_f32 v8, v{S+2}, v{S+3}")
for k in range(4, 16, 2):
    A(f"v_add_f32 v9, v9, v{S+k}\nv_add_f32 v8, v8, v{S+k+1}")
A(f"""
v_add_f32 v11, v9, v8
v_mov_b32 v9, v11
v_permlane16_swap_b32 v11, v9
v_add_f32 v11, v11, v9
v_mov_b32 v9, v11
v_permlane32_swap_b32 v11, v9
v_add_f32 v11, v11, v9                   ; l (wave)
v_mov_b32 v13, {L_MLC}
ds_write_b64 v12, v[10:11] offset:{L_ML}
ds_add_u32 v13, v14
""")
lds_wait(L_MLC, 256, 8, name="mlc", sleep=0)
A(f"""
s_lshl_b32 s9, s3, 3
v_mov_b32 v8, s9
ds_read_b64 v[16:17], v8 offset:{L_ML}
ds_read_b64 v[18:19], v8 offset:{L_ML+32}
ds_read_b64 v[20:21], v8 offset:{L_ML+64}
ds_read_b64 v[22:23], v8 offset:{L_ML+96}
s_waitcnt lgkmcnt(0)
v_max_f32 v24, v16, v18
v_max3_f32 v24, v24, v20, v22            ; M
v_sub_f32 v28, v16, v24
v_sub_f32 v29, v18, v24
v_sub_f32 v30, v20, v24
v_sub_f32 v31, v22, v24
v_exp_f32 v28, v28
v_exp_f32 v29, v29
v_exp_f32 v30, v30
v_exp_f32 v31, v31
v_mov_b32 v25, s64
v_mov_b32 v27, s64
v_mul_f32 v26, v28, v17
v_fmac_f32 v26, v29, v19
v_fmac_f32 v26, v30, v21
v_fmac_f32 v26, v31, v23                 ; L
s_lshl_b32 s9, s3, 4
v_mov_b32 v8, s9
v_mov_b32 v9, {L_FRDY}
s_mov_b64 exec, 1
ds_write_b128 v8, v[28:31] offset:{L_F}
ds_add_u32 v9, v14
v_mov_b32 v8, 0
""")
pub("v[24:27]", 8, 17)
A("s_mov_b64 exec, -1")
stamp(5)
A("""
s_cmp_eq_u32 s3, 1
s_cbranch_scc1 L_hg
s_cmp_eq_u32 s3, 2
s_cbranch_scc1 L_mo
s_cmp_eq_u32 s3, 3
s_cbranch_scc1 L_fin
s_branch L_stamp
""")
A.label("L_hg")
A(f"""
s_mul_i32 s8, s18, 28
v_and_b32 v152, 31, v2
v_min_u32 v152, 13, v152
v_lshl_add_u32 v152, v152, 1, s8
v_lshrrev_b32 v153, 6, v152
v_lshlrev_b32 v153, 9, v153
v_bfe_u32 v154, v152, 1, 1
v_lshl_add_u32 v153, v154, 8, v153
v_bfe_u32 v154, v152, 2, 1
v_lshl_add_u32 v153, v154, 7, v153
v_bfe_u32 v154, v152, 3, 3
v_lshl_add_u32 v153, v154, 4, v153
v_lshrrev_b32 v154, 5, v2
s_mov_b32 s8, 229376
v_mul_lo_u32 v154, v154, s8
v_add_u32 v153, v153, v154
s_mul_i32 s19, s6, 14336
s_add_u32 s19, s19, {WS_HP}
""")
G = 136
def hloads():
    for ks in range(4):
        A(f"s_add_u32 s8, s19, {ks*57344}")
        A(f"buffer_load_dwordx4 v[{G+4*ks}:{G+4*ks+3}], v153, s[52:55], s8 offen sc1")
poll_loop("h", hloads, [G + 4 * n for n in range(4)], 8, 9, cntreg=96)
for c in (0, 2):
    A(f"v_add_f32 v{G+c}, v{G+c}, v{G+4+c}\nv_add_f32 v{G+8+c}, v{G+8+c}, v{G+12+c}")
for c in (0, 2):
    A(f"v_add_f32 v{G+c}, v{G+c}, v{G+8+c}")
A(f"""
v_cvt_pk_bf16_f32 v156, v{G}, v{G+2}
v_mov_b32 v157, v156
v_permlane32_swap_b32 v156, v157
v_lshlrev_b32 v158, 16, v156
v_and_b32 v159, 0xffff0000, v156
v_lshlrev_b32 v160, 16, v157
v_and_b32 v161, 0xffff0000, v157
v_mul_f32 v162, 0xbfb8aa3b, v158
v_mul_f32 v163, 0xbfb8aa3b, v159
v_exp_f32 v162, v162
v_exp_f32 v163, v163
v_add_f32 v162, 1.0, v162
v_add_f32 v163, 1.0, v163
v_rcp_f32 v162, v162
v_rcp_f32 v163, v163
v_mul_f32 v162, v158, v162
v_mul_f32 v163, v159, v163
v_cvt_pk_bf16_f32 v162, v162, v163
v_lshlrev_b32 v163, 16, v162
v_and_b32 v162, 0xffff0000, v162
v_mul_f32 v163, v163, v160
v_mul_f32 v162, v162, v161
v_cvt_pk_bf16_f32 v162, v163, v162
v_and_b32 v164, 31, v2
v_cmp_gt_u32 vcc, 14, v164
v_cndmask_b32 v162, 0, v162, vcc
v_lshrrev_b32 v164, 2, v2
v_lshlrev_b32 v164, 5, v164
v_and_b32 v165, 3, v2
v_lshl_add_u32 v164, v165, 2, v164
v_cmp_gt_u32 vcc, 16, v2
s_and_saveexec_b64 s[20:21], vcc
ds_write_b32 v164, v162 offset:{L_H}
ds_write_b32 v164, v162 offset:{L_H+16}
s_mov_b64 exec, s[20:21]
v_mov_b32 v8, {L_HRDY}
v_mov_b32 v9, 1
ds_write_b32 v8, v9
""")
stamp(6)
A("s_branch L_stamp")
A.label("L_mo")
A(f"""
s_setprio 3
s_lshl_b32 s12, s6, 3
s_add_u32 s12, s12, s4
s_lshl_b32 s16, s12, 9
s_add_u32 s16, s16, {WS_ML}
s_lshl_b32 s12, s12, 15
s_lshl_b32 s8, s7, 12
s_add_u32 s12, s12, s8
s_add_u32 s12, s12, {WS_OP}
v_lshrrev_b32 v8, 5, v2
v_bfe_u32 v10, v2, 3, 2
v_lshlrev_b32 v8, 6, v8
v_lshl_add_u32 v152, v10, 4, v8
v_bfe_u32 v13, v2, 2, 3                  ; (l%32)/4
v_lshlrev_b32 v13, 5, v13
v_and_b32 v8, 3, v2
v_lshl_add_u32 v13, v8, 2, v13
v_mov_b32 v14, {L_OCR}
v_mov_b32 v15, 1
""")
GM = 136; GO = 16
def moloads():
    A("s_add_u32 s28, s12, s27\ns_add_u32 s29, s16, s27")
    for i in range(4):
        A(f"buffer_load_dwordx4 v[{GO+4*i}:{GO+4*i+3}], v7, s[52:55], s28 offen offset:{i*1024} sc1")
    for i in range(4):
        A(f"buffer_load_dwordx4 v[{GM+4*i}:{GM+4*i+3}], v152, s[52:55], s29 offen offset:{i*128} sc1")
lds_wait(L_OPUB, 4, 8, name="opub", sleep=1)
stamp(6)
A(f"s_mov_b32 s27, {D0}")
poll_loop("mo", moloads, [GO + 4 * i for i in range(4)] + [GM + 4 * i for i in range(4)], 153, 154, sleep=0, cntreg=96, fast=FAST)
stamp(7)
A(f"""
v_max_f32 v153, v{GM}, v{GM+4}
v_max3_f32 v153, v153, v{GM+8}, v{GM+12}
v_mov_b32 v154, v153
v_permlane32_swap_b32 v153, v154
v_max_f32 v153, v153, v154
""")
for i in range(4):
    A(f"v_sub_f32 v{GM+4*i}, v{GM+4*i}, v153")
for i in range(4):
    A(f"v_exp_f32 v{GM+4*i}, v{GM+4*i}")
A(f"""
v_mul_f32 v155, v{GM}, v{GM+2}
v_mul_f32 v161, v{GM}, v{GO}
v_mul_f32 v162, v{GM}, v{GO+2}
""")
for i in range(1, 4):
    A(f"v_fmac_f32 v155, v{GM+4*i}, v{GM+4*i+2}\nv_fmac_f32 v161, v{GM+4*i}, v{GO+4*i}\nv_fmac_f32 v162, v{GM+4*i}, v{GO+4*i+2}")
A(f"""
v_mov_b32 v156, v155
v_mov_b32 v163, v161
v_mov_b32 v164, v162
v_permlane32_swap_b32 v155, v156
v_permlane32_swap_b32 v161, v163
v_permlane32_swap_b32 v162, v164
v_add_f32 v155, v155, v156
v_add_f32 v161, v161, v163
v_add_f32 v162, v162, v164
v_rcp_f32 v155, v155
s_nop 0
v_mul_f32 v161, v161, v155
v_mul_f32 v162, v162, v155
v_cvt_pk_bf16_f32 v161, v161, v162
ds_write_b32 v13, v161 offset:{L_OC}
ds_write_b32 v13, v161 offset:{L_OC+16}
ds_write_b32 v14, v15
""")
stamp(8)
A("s_branch L_stamp")
A.label("L_fin")
A(f"""
s_setprio 3
s_load_dwordx2 s[44:45], s[0:1], 80
s_lshl_b32 s12, s6, 18
s_lshl_b32 s8, s18, 12
s_add_u32 s12, s12, s8
s_add_u32 s12, s12, {WS_FP}
s_mov_b32 s46, 4096
s_mov_b32 s47, 0x20000
s_lshr_b32 s8, s18, 4
s_lshl_b32 s8, s8, 8
s_and_b32 s9, s18, 3
s_lshl_b32 s9, s9, 6
s_add_u32 s8, s8, s9
s_bfe_u32 s9, s18, 0x20002
s_lshl_b32 s9, s9, 2
s_add_u32 s8, s8, s9
s_lshl_b32 s9, s6, 10
s_add_u32 s28, s8, s9
v_lshlrev_b32 v10, 4, v2
""")
lds_wait(L_OPUB, 8, 8, name="fpub", sleep=1)
if FDELAY: A(f"s_sleep {FDELAY}")
stamp(6)
GF = 16
def floads():
    for i in range(4):
        A(f"buffer_load_dwordx4 v[{GF+4*i}:{GF+4*i+3}], v7, s[52:55], s12 offen offset:{i*1024} sc1")
poll_loop("f", floads, [GF + 4 * i for i in range(4)], 8, 9, sleep=0, cntreg=96)
stamp(7)
for c in (0, 2):
    A(f"v_add_f32 v{GF+c}, v{GF+c}, v{GF+4+c}\nv_add_f32 v{GF+8+c}, v{GF+8+c}, v{GF+12+c}")
for c in (0, 2):
    A(f"v_add_f32 v{GF+c}, v{GF+c}, v{GF+8+c}")
for sh in (4, 8):
    for c in (0, 2):
        A(f"v_add_f32_dpp v{48+c}, v{GF+c}, v{GF+c} row_ror:{sh} row_mask:0xf bank_mask:0xf")
    for c in (0, 2):
        A(f"v_mov_b32 v{GF+c}, v{48+c}")
for sw in ("16", "32"):
    for c in (0, 2):
        A(f"v_mov_b32 v{48+c}, v{GF+c}")
    for c in (0, 2):
        A(f"v_permlane{sw}_swap_b32 v{GF+c}, v{48+c}")
    for c in (0, 2):
        A(f"v_add_f32 v{GF+c}, v{GF+c}, v{48+c}")
A(f"""
v_cvt_pk_bf16_f32 v8, v{GF}, v{GF+2}
v_cmp_gt_u32 vcc, 4, v2
s_waitcnt lgkmcnt(0)
s_and_saveexec_b64 s[20:21], vcc
buffer_store_dword v8, v10, s[44:47], s28 offen
s_mov_b64 exec, s[20:21]
s_cmp_eq_u32 s2, 0
s_cbranch_scc0 L_stamp
v_mov_b32 v8, s64
v_mov_b32 v9, {WS_E}
v_cmp_eq_u32 vcc, 0, v2
s_and_saveexec_b64 s[20:21], vcc
buffer_store_dword v8, v9, s[52:55], 0 offen
s_mov_b64 exec, s[20:21]
""")
A.label("L_stamp")
if STAMPS:
    A("s_memrealtime s[94:95]")
    if CLK: A("s_memtime s[92:93]")
    A("s_waitcnt lgkmcnt(0)")
    if CLK: A("s_sub_u32 s96, s92, s90")
    A(f"""
s_lshl_b32 s9, s2, 4
s_add_u32 s9, s9, s30
s_mul_i32 s9, s9, {NST*8}
s_add_u32 s9, s9, {STAMPOFF}
v_mov_b32 v4, 0
s_mov_b64 exec, 1
""")
    if CLK: A("s_mov_b64 s[90:91], 0\ns_mov_b64 s[92:93], 0")
    for k in range(0, NST, 2):
        A(f"v_mov_b32 v10, s{70+2*k}\nv_mov_b32 v11, s{71+2*k}\nv_mov_b32 v12, s{72+2*k}\nv_mov_b32 v13, s{73+2*k}")
        A(f"buffer_store_dwordx4 v[10:13], v4, s[52:55], s9 offen offset:{k*8}")
        A("s_nop 1")
A.label("L_end")
body = A.text()
if STAMPS:
    z = "".join(f"    s_mov_b64 s[{70+2*k}:{71+2*k}], 0\n" for k in range(NST))
    body = z + body
body = hazard.fix(body, verbose=True)
open(sys.argv[1], "w").write(wrap(body, 256, 768, LDS_BYTES, 168, 102))
```

```python
import sys
from asmgen import *
import hazard

opt = dict(a.split("=") for a in sys.argv[2:])
def O(name, default): return type(default)(opt.get(name, default)) if not isinstance(default, bool) else opt.get(name, "1" if default else "0") == "1"
STAMPS = O("stamps", False)
MIMIC = O("mimic", True)
NT = O("nt", True)
NTW = O("ntw", True)
NTO = O("nto", False)
QPOS = O("qpos", 8)
SPINMAX = O("spinmax", 20000)
FAST = O("fast", True)
FDELAY = O("fdelay", 0)
CLK = O("clk", False)
ROT = O("rot", True)
FINE = O("fine", True)
KVROT = O("kvrot", True)
ntf = " nt" if NT else ""
ntw = " nt" if NTW else ""
nto = " nt" if NTO else ""

WS_E   = 0
WS_QP  = 0x10000
WS_HP  = 0x100000
WS_ML  = 0x180000
WS_OP  = 0x200000
WS_FP  = 0x300000
FASTD  = 0x400000
WS_SIZE = 268435456
STAMPOFF = 0x8000000
NST = 14
L_TAG = 0
L_QRDY = 8
L_HRDY = 12
L_VISS = 16
L_MLC = 20
L_FRDY = 24
L_OWC = 28
L_OCR = 32
L_GRDY = 36
L_OPUB = 40
L_PRDY = 48
L_Q = 0x100
L_ML = 0x500
L_F = 0x580
L_H = 0x600
L_G = 0x680
L_OC = 0x700
L_OW = 0x800
L_P = 0x2800
LDS_BYTES = 0x4800

A = Asm()
def stamp(k):
    if STAMPS: A(f"s_memrealtime s[{70+2*k}:{71+2*k}]")
def srd_consts(d, size):
    A(f"s_mov_b32 s{d+2}, {size}\ns_mov_b32 s{d+3}, 0x20000")

def lds_wait(addr, val, vt, name="w", sleep=1, addr_is_vreg=None):
    L = A.newlabel("Lw_" + name); Ld = A.newlabel("Lwd_" + name)
    if addr_is_vreg is None:
        A(f"v_mov_b32 v{vt+1}, {addr}"); av = vt + 1
    else: av = addr_is_vreg
    A(f"s_mov_b32 s15, 0")
    A.label(L)
    A(f"""
ds_read_b32 v{vt}, v{av}
s_waitcnt lgkmcnt(0)
v_readfirstlane_b32 s14, v{vt}
s_add_u32 s15, s15, 1
s_cmp_ge_u32 s14, {val}
s_cbranch_scc1 {Ld}
s_cmp_lt_u32 s15, {SPINMAX*16}
""" + (f"s_sleep {sleep}\n" if sleep else "") + f"s_cbranch_scc1 {L}")
    A.label(Ld)

def get_tag(vt):
    L = A.newlabel("Ltag"); Ld = A.newlabel("Ltagd")
    A(f"v_mov_b32 v{vt+2}, {L_TAG}\ns_mov_b32 s15, 0")
    A.label(L)
    A(f"""
ds_read_b64 v[{vt}:{vt+1}], v{vt+2}
s_waitcnt lgkmcnt(0)
v_readfirstlane_b32 s14, v{vt+1}
v_readfirstlane_b32 s64, v{vt}
s_add_u32 s15, s15, 1
s_cmp_eq_u32 s14, 1
s_cbranch_scc1 {Ld}
s_cmp_lt_u32 s15, {SPINMAX*16}
s_sleep 1
s_cbranch_scc1 {L}
""")
    A.label(Ld)

def Pj(raw, j, t, npair=4):
    k = j // 2; sel = "s66" if j % 2 == 0 else "s67"
    for p in range(npair):
        A(f"v_perm_b32 v{t+p}, v{raw+(2*p+1)*4+k}, v{raw+(2*p)*4+k}, {sel}")

def transpose_mfma(raw, acc, aop, tmp, first):
    def P(j): Pj(raw, j, tmp + 4 * (j % 3))
    def M(j):
        t = tmp + 4 * (j % 3)
        c = "0" if first else f"v[{acc+4*j}:{acc+4*j+3}]"
        A(f"v_mfma_f32_16x16x32_bf16 v[{acc+4*j}:{acc+4*j+3}], v[{aop}:{aop+3}], v[{t}:{t+3}], {c}")
    P(0); P(1); M(0)
    for j in range(2, 8):
        P(j); M(j - 1)
    M(7)

def transpose_only(raw, dst):
    for j in range(8): Pj(raw, j, dst + 4 * j)

def tagcheck(regs, vmin, vmax):
    first = True
    for r in regs:
        if first:
            A(f"v_min_u32 v{vmin}, v{r+1}, v{r+3}\nv_max_u32 v{vmax}, v{r+1}, v{r+3}"); first = False
        else:
            A(f"v_min3_u32 v{vmin}, v{vmin}, v{r+1}, v{r+3}\nv_max3_u32 v{vmax}, v{vmax}, v{r+1}, v{r+3}")
    A(f"v_xor_b32 v{vmin}, s64, v{vmin}\nv_xor_b32 v{vmax}, s64, v{vmax}\nv_or_b32 v{vmin}, v{vmin}, v{vmax}\nv_cmp_ne_u32 vcc, 0, v{vmin}")

def poll_loop(name, emit_loads, regs, vmin, vmax, sleep=2, cntreg=None, preissued=None, fast=False):
    L = A.newlabel("Lp_" + name); Ld = A.newlabel("Lpd_" + name); Lc = A.newlabel("Lpc_" + name)
    A("s_mov_b32 s15, 0")
    if preissued is not None:
        A(f"s_waitcnt vmcnt({preissued})")
        A(f"s_branch {Lc}")
    A.label(L)
    if fast:
        A(f"s_and_b32 s14, s15, 3\ns_cmp_eq_u32 s14, 3\ns_cselect_b32 s27, 0, {FASTD}")
    emit_loads()
    A("s_waitcnt vmcnt(0)")
    A.label(Lc)
    tagcheck(regs, vmin, vmax)
    A(f"""
s_add_u32 s15, s15, 1
s_cbranch_vccz {Ld}
s_cmp_lt_u32 s15, {SPINMAX}
""" + (f"s_sleep {sleep}\n" if sleep else "") + f"s_cbranch_scc1 {L}")
    A.label(Ld)
    if cntreg is not None: A(f"s_mov_b32 s{cntreg}, s15")

def pub(regs, voff, soff, off=0, fast=True):
    o = f" offset:{off}" if off else ""
    if fast and FAST:
        A(f"s_add_u32 s29, s{soff}, {FASTD}")
        A(f"buffer_store_dwordx4 {regs}, v{voff}, s[52:55], s29 offen{o}")
    A(f"buffer_store_dwordx4 {regs}, v{voff}, s[52:55], s{soff} offen{o} sc1")

D0 = FASTD if FAST else 0
def tile_off(t):
    if KVROT:
        A(f"s_add_u32 s10, s7, {t}\ns_and_b32 s10, s10, 3\ns_lshl_b32 s10, s10, 12\ns_add_u32 s10, s10, s8")
    else:
        A(f"s_add_u32 s10, s8, {t*4096}")
A("""
s_cmp_ge_u32 s2, 256
s_cbranch_scc1 L_end
v_lshrrev_b32 v1, 6, v0
v_and_b32 v2, 63, v0
v_readfirstlane_b32 s3, v1
s_and_b32 s4, s2, 7
s_lshr_b32 s5, s2, 3                     ; r
s_lshr_b32 s6, s5, 3                     ; b
s_and_b32 s7, s5, 7                      ; s (split)
s_lshl_b32 s18, s4, 3
s_add_u32 s18, s18, s7                   ; j = x*8 + s
s_mov_b32 s66, 0x05040100
s_mov_b32 s67, 0x07060302
s_load_dwordx2 s[52:53], s[0:1], 96      ; ws
""")
stamp(0)
if CLK: A("s_memtime s[90:91]")
srd_consts(52, WS_SIZE)
A("""
s_mov_b32 s30, s3
s_cmp_lt_u32 s3, 4
s_cbranch_scc1 L_K
s_cmp_ge_u32 s3, 8
s_cbranch_scc1 L_O
s_load_dwordx2 s[40:41], s[0:1], 16      ; V
s_sub_u32 s3, s3, 4                      ; a
s_cmp_ge_u32 s3, 2
s_cbranch_scc1 L_V23
""")
A("s_load_dwordx2 s[48:49], s[0:1], 0")
A("s_setprio 3")
A("""
s_cmp_eq_u32 s3, 0
s_cbranch_scc0 L_W1setup
s_load_dwordx2 s[44:45], s[0:1], 24
s_mov_b32 s46, 4194304
s_movk_i32 s10, 8192
s_lshl_b32 s9, s6, 20
s_lshl_b32 s11, s7, 7
s_add_u32 s9, s9, s11
s_lshl_b32 s11, s4, 10
s_add_u32 s9, s9, s11
s_lshl_b32 s11, s6, 8
s_lshl_b32 s12, s4, 16
s_lshl_b32 s13, s6, 12
s_add_u32 s12, s12, s13
s_lshl_b32 s13, s7, 9
s_add_u32 s12, s12, s13
""" + f"""
s_add_u32 s12, s12, {WS_QP}
s_movk_i32 s13, 16384
s_movk_i32 s16, 256
s_branch L_prod
""")
A.label("L_W1setup")
A(f"""
s_and_b32 s8, s2, 1
s_cmp_eq_u32 s8, 0
s_cbranch_scc0 L_W1b
s_load_dwordx2 s[44:45], s[0:1], 48
s_branch L_W1c
""")
A.label("L_W1b")
A("s_load_dwordx2 s[44:45], s[0:1], 56")
A.label("L_W1c")
A(f"""
s_mov_b32 s46, 1835008
s_movk_i32 s10, 3584
s_lshr_b32 s9, s2, 1
s_mul_i32 s11, s9, 2341
s_lshr_b32 s11, s11, 16
s_mul_i32 s12, s11, 28
s_sub_u32 s12, s9, s12
s_mul_i32 s9, s11, {128*3584}
s_lshl_b32 s13, s12, 7
s_add_u32 s9, s9, s13
s_mul_i32 s13, s8, 229376
s_lshl_b32 s12, s12, 9
s_add_u32 s12, s12, s13
s_mul_i32 s13, s11, 57344
s_add_u32 s12, s12, s13
s_add_u32 s12, s12, {WS_HP}
s_movk_i32 s13, 14336
s_lshl_b32 s11, s11, 8
s_movk_i32 s16, 224
""")
A.label("L_prod")
srd_consts(48, 4096)
A(f"""
s_mov_b32 s47, 0x20000
v_lshrrev_b32 v3, 3, v2
v_and_b32 v4, 7, v2
v_lshlrev_b32 v4, 4, v4
s_lshl_b32 s8, s10, 3
v_mul_lo_u32 v5, v3, s8
v_add_u32 v5, v5, v4
v_and_b32 v6, 15, v2
v_lshrrev_b32 v7, 2, v6
v_lshlrev_b32 v7, 10, v7
v_and_b32 v8, 1, v2
v_lshrrev_b32 v9, 4, v2
v_lshl_add_u32 v8, v9, 1, v8
v_lshl_add_u32 v7, v8, 4, v7
v_mul_lo_u32 v10, v9, s13
v_lshl_add_u32 v10, v6, 4, v10
v_cmp_le_u32 s[68:69], 8, v6
s_mul_i32 s17, s10, 57
s_cmp_ge_u32 s2, s16
s_waitcnt lgkmcnt(0)
s_cbranch_scc1 L_prod_skip
""")
XA = 80
RAW = 16
A(f"buffer_load_dwordx4 v[{XA}:{XA+3}], v7, s[48:51], s11 offen")
A(f"buffer_load_dwordx4 v[{XA+4}:{XA+7}], v7, s[48:51], s11 offen offset:128")
A("s_mov_b32 s14, s9")
for e in range(2):
    for i in range(8):
        r = RAW + (e * 8 + i) * 4
        A(f"buffer_load_dwordx4 v[{r}:{r+3}], v5, s[44:47], s14 offen{ntw}")
        if not (e == 1 and i == 7):
            A("s_add_u32 s14, s14, s17" if i == 7 else "s_add_u32 s14, s14, s10")
A(f"s_load_dword s65, s[52:53], {WS_E}")
A("s_barrier")
A(f"""
s_cmp_eq_u32 s3, 0
s_cbranch_scc0 L_prod_notag
s_waitcnt lgkmcnt(0)
s_mul_i32 s64, s65, 0x9E3779B1
s_add_u32 s64, s64, 0x7F4A7C15
v_mov_b32 v96, s64
v_mov_b32 v97, 1
v_mov_b32 v98, {L_TAG}
ds_write_b64 v98, v[96:97]
s_branch L_prod_havetag
""")
A.label("L_prod_notag")
get_tag(96)
A.label("L_prod_havetag")
PUB = 88
for k in range(4):
    A(f"v_mov_b32 v{PUB+2*k+1}, s64")
stamp(1)
ACC = 112; TMP = 96
A("s_waitcnt vmcnt(8)")
transpose_mfma(RAW, ACC, XA, TMP, True)
A("s_waitcnt vmcnt(0)")
transpose_mfma(RAW + 32, ACC, XA + 4, TMP, False)
for k in range(4):
    A(f"v_cndmask_b32 v{144+k}, v{ACC+4*k+0}, v{ACC+4*(4+k)+1}, s[68:69]")
    A(f"v_cndmask_b32 v{148+k}, v{ACC+4*(4+k)+0}, v{ACC+4*k+1}, s[68:69]")
for k in range(4):
    A(f"v_add_f32_dpp v{PUB+2*k}, v{148+k}, v{144+k} row_ror:8 row_mask:0xf bank_mask:0xf")
if FAST:
    A(f"s_cmp_eq_u32 s3, 0\ns_cbranch_scc0 L_nofastq\ns_add_u32 s29, s12, {FASTD}")
    A(f"buffer_store_dwordx4 v[{PUB}:{PUB+3}], v10, s[52:55], s29 offen")
    A(f"buffer_store_dwordx4 v[{PUB+4}:{PUB+7}], v10, s[52:55], s29 offen offset:256")
    A.label("L_nofastq")
A(f"buffer_store_dwordx4 v[{PUB}:{PUB+3}], v10, s[52:55], s12 offen sc1")
A(f"buffer_store_dwordx4 v[{PUB+4}:{PUB+7}], v10, s[52:55], s12 offen offset:256 sc1")
stamp(2)
A("s_branch L_V")
A.label("L_prod_skip")
A("s_barrier\ns_branch L_V")
A.label("L_V23")
A("""
s_cmp_eq_u32 s3, 3
s_cbranch_scc1 L_W3
s_barrier
s_branch L_V
""")
A.label("L_W3")
A(f"""
s_load_dwordx2 s[48:49], s[0:1], 0       ; x
s_load_dwordx2 s[44:45], s[0:1], 72      ; gate_w
s_setprio 3
v_mov_b32 v4, 0
v_mov_b32 v5, 0
v_mov_b32 v6, 0
v_mov_b32 v7, 0
v_mov_b32 v8, 0
ds_write_b128 v8, v[4:7]
ds_write_b128 v8, v[4:7] offset:16
ds_write_b128 v8, v[4:7] offset:32
ds_write_b128 v8, v[4:7] offset:48
s_mov_b32 s50, 4096
s_mov_b32 s51, 0x20000
s_mov_b32 s46, 1024
s_mov_b32 s47, 0x20000
v_lshlrev_b32 v3, 4, v2
s_lshl_b32 s8, s6, 10
s_waitcnt lgkmcnt(0)
buffer_load_dwordx4 v[16:19], v3, s[48:51], s8 offen
buffer_load_dwordx4 v[20:23], v3, s[44:47], 0 offen
s_barrier
s_waitcnt vmcnt(0)
""")
for k in range(4):
    A(f"""
v_lshlrev_b32 v{24+2*k}, 16, v{16+k}
v_and_b32 v{25+2*k}, 0xffff0000, v{16+k}
v_lshlrev_b32 v{32+2*k}, 16, v{20+k}
v_and_b32 v{33+2*k}, 0xffff0000, v{20+k}
v_mul_f32 v{24+2*k}, v{24+2*k}, v{32+2*k}
v_mul_f32 v{25+2*k}, v{25+2*k}, v{33+2*k}
v_cvt_pk_bf16_f32 v{40+k}, v{24+2*k}, v{25+2*k}
""")
A("v_mov_b32 v44, 0")
for k in range(4):
    A(f"""
v_lshlrev_b32 v24, 16, v{40+k}
v_and_b32 v25, 0xffff0000, v{40+k}
v_add_f32 v44, v44, v24
v_add_f32 v44, v44, v25
""")
for sh in (1, 2, 4, 8):
    A(f"v_add_f32_dpp v45, v44, v44 row_ror:{sh} row_mask:0xf bank_mask:0xf\nv_mov_b32 v44, v45")
A("""
v_mov_b32 v45, v44
v_permlane16_swap_b32 v44, v45
v_add_f32 v44, v44, v45
v_mov_b32 v45, v44
v_permlane32_swap_b32 v44, v45
v_add_f32 v44, v44, v45
v_cvt_pk_bf16_f32 v44, v44, v44
v_lshlrev_b32 v44, 16, v44
v_mul_f32 v45, 0xbfb8aa3b, v44
v_exp_f32 v45, v45
v_add_f32 v45, 1.0, v45
v_rcp_f32 v45, v45
v_cvt_pk_bf16_f32 v45, v45, v45
v_lshlrev_b32 v46, 16, v45
v_sub_f32 v47, 1.0, v46
v_cvt_pk_bf16_f32 v47, v47, v47
v_lshlrev_b32 v47, 16, v47
""" + f"""
v_mov_b32 v4, {L_G}
ds_write_b64 v4, v[46:47]
v_mov_b32 v5, {L_GRDY}
v_mov_b32 v6, 1
ds_write_b32 v5, v6
""")
stamp(2)
A.label("L_V")
VR = 16; ACC = 112; TMP = 96; PB = 144
A("s_setprio 1")
A(f"""
s_waitcnt lgkmcnt(0)
s_mov_b32 s48, s40
s_mov_b32 s49, s41
s_mov_b32 s50, 67108864
s_mov_b32 s51, 0x20000
s_lshl_b32 s8, s6, 3
s_add_u32 s8, s8, s4                     ; b*8+x
s_lshl_b32 s16, s8, 15
s_lshl_b32 s8, s8, 21
s_add_u32 s8, s8, 0x180000
s_lshl_b32 s9, s7, 16
s_add_u32 s8, s8, s9
s_lshl_b32 s9, s3, 14
s_add_u32 s8, s8, s9                     ; V base
v_and_b32 v3, 15, v2
v_lshrrev_b32 v4, 4, v2
v_lshlrev_b32 v6, 10, v4
v_lshl_add_u32 v6, v3, 4, v6             ; voffV
""")
reg = VR
for u in range(2):
    for hi in range(2):
        tile_off(2*u+hi)
        for i4 in range(4):
            A(f"buffer_load_dwordx4 v[{reg}:{reg+3}], v6, s[48:51], s10 offen offset:{i4*256}{ntf}")
            reg += 4
A(f"v_mov_b32 v8, {L_VISS}\nv_mov_b32 v14, 1\ns_mov_b64 exec, 1\nds_add_u32 v8, v14\ns_mov_b64 exec, -1")
A("s_setprio 2")
stamp(3)
get_tag(8)
A(f"""
s_lshl_b32 s13, s7, 9
s_add_u32 s16, s16, s13
s_lshl_b32 s13, s3, 7
s_add_u32 s16, s16, s13
s_add_u32 s16, s16, {WS_OP}
s_lshl_b32 s9, s3, 11
v_lshlrev_b32 v10, 4, v3
v_add_u32 v10, s9, v10
v_and_b32 v11, 3, v2
v_lshlrev_b32 v11, 9, v11
v_lshrrev_b32 v9, 2, v2
v_lshl_add_u32 v11, v9, 4, v11
s_lshl_b32 s9, s3, 2
s_add_u32 s9, s9, {L_OW}
v_add_u32 v11, s9, v11
v_lshrrev_b32 v12, 3, v2
v_lshlrev_b32 v12, 12, v12
v_and_b32 v9, 7, v2
v_lshl_add_u32 v12, v9, 4, v12
v_mov_b32 v153, s64
v_mov_b32 v155, s64
v_mov_b32 v13, {L_OWC}
s_lshl_b32 s9, s3, 2
s_add_u32 s9, s9, {L_PRDY}
v_mov_b32 v15, s9
s_lshl_b32 s9, s3, 11
v_lshlrev_b32 v5, 4, v2
v_add_u32 v5, s9, v5
s_lshl_b32 s9, s3, 4
v_mov_b32 v7, s9
""")
lds_wait(None, 1, 8, name="prdy", sleep=1, addr_is_vreg=15)
A(f"""
ds_read_b128 v[{PB}:{PB+3}], v5 offset:{L_P}
ds_read_b128 v[{PB+4}:{PB+7}], v5 offset:{L_P+1024}
""")
stamp(5)
A("s_waitcnt vmcnt(8) lgkmcnt(0)")
transpose_mfma(VR, ACC, PB, TMP, True)
lds_wait(L_FRDY, 4, 8, name="frdy", sleep=0)
A(f"ds_read_b128 v[156:159], v7 offset:{L_F}")
if FINE:
    T1 = 64 if False else 120 + 40
    T1 = 16
    for p in range(4):
        A(f"s_waitcnt vmcnt({6-2*p})")
        for j in range(8):
            k = j // 2; sel = "s66" if j % 2 == 0 else "s67"
            A(f"v_perm_b32 v{T1+4*j+p}, v{VR+32+(2*p+1)*4+k}, v{VR+32+(2*p)*4+k}, {sel}")
    stamp(6)
    for j in range(8):
        A(f"v_mfma_f32_16x16x32_bf16 v[{ACC+4*j}:{ACC+4*j+3}], v[{PB+4}:{PB+7}], v[{T1+4*j}:{T1+4*j+3}], v[{ACC+4*j}:{ACC+4*j+3}]")
else:
    A("s_waitcnt vmcnt(0)")
    stamp(6)
    transpose_mfma(VR + 32, ACC, PB + 4, TMP, False)
A("s_mov_b64 exec, 0xffff")
for j in range(8):
    A(f"ds_write_b128 v10, v[{ACC+4*j}:{ACC+4*j+3}] offset:{L_OW+j*256}")
A(f"""
ds_add_u32 v13, v14
s_mov_b64 exec, -1
""")
lds_wait(L_OWC, 64, 8, name="owc", sleep=0)
for w in range(4):
    A(f"ds_read2st64_b32 v[{16+2*w}:{17+2*w}], v11 offset0:{w*8} offset1:{w*8+1}")
A(f"""
s_waitcnt lgkmcnt(0)
v_mul_f32 v152, v16, v156
v_mul_f32 v154, v17, v156
v_fmac_f32 v152, v18, v157
v_fmac_f32 v154, v19, v157
v_fmac_f32 v152, v20, v158
v_fmac_f32 v154, v21, v158
v_fmac_f32 v152, v22, v159
v_fmac_f32 v154, v23, v159
""")
pub("v[152:155]", 12, 16)
A(f"v_mov_b32 v8, {L_OPUB}\ns_mov_b64 exec, 1\nds_add_u32 v8, v14\ns_mov_b64 exec, -1")
stamp(7)
A("s_branch L_stamp")
A.label("L_O")
RW2 = 16; R0 = 48; R1 = 80; ACC = 112; TMP = 144; AH = 156; AO = 160
A(f"""
s_load_dwordx2 s[56:57], s[0:1], 32      ; wo
s_load_dwordx2 s[60:61], s[0:1], 64      ; w2
s_sub_u32 s3, s3, 8                      ; cg
s_mov_b32 s58, 4194304
s_mov_b32 s59, 0x20000
s_mov_b32 s62, 1835008
s_mov_b32 s63, 0x20000
v_and_b32 v3, 15, v2
v_lshrrev_b32 v4, 4, v2
v_lshrrev_b32 v7, 1, v4
v_and_b32 v8, 1, v4
v_lshlrev_b32 v5, 17, v7
v_lshl_add_u32 v5, v8, 13, v5
v_lshl_add_u32 v5, v3, 4, v5             ; voffO
v_lshlrev_b32 v6, 13, v4
v_lshl_add_u32 v6, v3, 4, v6             ; voffW2
s_lshl_b32 s9, s4, 19
s_lshl_b32 s10, s7, 14
s_add_u32 s9, s9, s10
s_lshl_b32 s10, s3, 8
s_add_u32 s9, s9, s10
s_mul_i32 s11, s18, {28*1024}
s_add_u32 s11, s11, s10                  ; w2 base
s_lshl_b32 s17, s6, 18
s_lshl_b32 s8, s3, 16
s_add_u32 s17, s17, s8
s_lshl_b32 s8, s18, 6
s_add_u32 s17, s17, s8
s_add_u32 s17, s17, {WS_FP}
v_cmp_eq_u32 s[20:21], 1, v4
v_cmp_eq_u32 s[22:23], 2, v4
v_cmp_eq_u32 s[24:25], 3, v4
""")
A("s_mov_b32 s31, s6" if ROT else "s_mov_b32 s31, 0")
A(f"s_lshl_b32 s8, s31, 2\ns_add_u32 s8, s8, {L_H}\nv_lshlrev_b32 v7, 5, v4\nv_add_u32 v7, s8, v7")
A("s_lshl_b32 s8, s31, 1")
for k in range(8):
    A(f"s_add_u32 s{32+k}, s8, {k}\ns_and_b32 s{32+k}, s{32+k}, 7\ns_lshl_b32 s{32+k}, s{32+k}, 10")
A("s_barrier")
lds_wait(L_VISS, 4, 8, name="viss", sleep=2)
stamp(3)
def oload(srd, voff, base_sreg, extra, reg0):
    for k in range(8):
        A(f"s_add_u32 s12, s{base_sreg}, s{32+k}")
        if extra: A(f"s_add_u32 s12, s12, {extra}")
        A(f"buffer_load_dwordx4 v[{reg0+4*k}:{reg0+4*k+3}], v{voff}, s[{srd}:{srd+3}], s12 offen{nto}")
oload(60, 6, 11, 0, RW2)
oload(56, 5, 9, 0, R0)
oload(56, 5, 9, 2*128*1024, R1)
A("s_setprio 2")
stamp(4)
get_tag(8)
A("""
v_lshrrev_b32 v10, 2, v2
v_lshlrev_b32 v10, 12, v10
v_and_b32 v8, 3, v2
v_lshl_add_u32 v10, v8, 4, v10
""")
lds_wait(L_HRDY, 1, 8, name="hrdy")
A(f"ds_read2_b32 v[{AH}:{AH+1}], v7 offset0:0 offset1:1\nds_read2_b32 v[{AH+2}:{AH+3}], v7 offset0:2 offset1:3")
lds_wait(L_GRDY, 1, 8, name="grdy")
A(f"""
v_mov_b32 v11, {L_G}
ds_read_b64 v[12:13], v11
s_waitcnt lgkmcnt(0)
s_waitcnt vmcnt(16)
""")
transpose_mfma(RW2, ACC, AH, TMP, True)
def select(dst, e):
    A(f"v_cndmask_b32 v{dst}, v{ACC+4*(0+e)}, v{ACC+4*(2+e)}, s[20:21]")
    A(f"v_cndmask_b32 v{dst}, v{dst}, v{ACC+4*(4+e)}, s[22:23]")
    A(f"v_cndmask_b32 v{dst}, v{dst}, v{ACC+4*(6+e)}, s[24:25]")
select(14, 0); select(15, 1)
A("v_mul_f32 v14, v14, v13\nv_mul_f32 v15, v15, v13")
A(f"s_waitcnt vmcnt(8)")
transpose_only(R0, RW2)
A(f"s_waitcnt vmcnt(0)")
transpose_only(R1, R0)
A(f"v_mov_b32 v81, s64\nv_mov_b32 v83, s64\nv_mov_b32 v11, {L_OPUB}\nv_mov_b32 v6, 1")
stamp(8)
lds_wait(L_OCR, 1, 8, name="ocr", sleep=0)
A(f"""
ds_read2_b32 v[{AO}:{AO+1}], v7 offset0:64 offset1:65
ds_read2_b32 v[{AO+2}:{AO+3}], v7 offset0:66 offset1:67
ds_read2_b32 v[{AO+4}:{AO+5}], v7 offset0:96 offset1:97
ds_read2_b32 v[{AO+6}:{AO+7}], v7 offset0:98 offset1:99
s_waitcnt lgkmcnt(0)
""")
for j in range(8):
    A(f"v_mfma_f32_16x16x32_bf16 v[{ACC+4*j}:{ACC+4*j+3}], v[{AO}:{AO+3}], v[{RW2+4*j}:{RW2+4*j+3}], 0")
for j in range(8):
    A(f"v_mfma_f32_16x16x32_bf16 v[{ACC+4*j}:{ACC+4*j+3}], v[{AO+4}:{AO+7}], v[{R0+4*j}:{R0+4*j+3}], v[{ACC+4*j}:{ACC+4*j+3}]")
select(80, 0); select(82, 1)
A(f"""
v_fma_f32 v80, v80, v12, v14
v_fma_f32 v82, v82, v12, v15
buffer_store_dwordx4 v[80:83], v10, s[52:55], s17 offen sc1
s_mov_b64 exec, 1
ds_add_u32 v11, v6
s_mov_b64 exec, -1
""")
stamp(9)
A("s_branch L_stamp")
A.label("L_K")
A(f"""
s_load_dwordx2 s[44:45], s[0:1], 8       ; K
s_setprio 2
""")
srd_consts(44, 67108864)
A(f"""
s_lshl_b32 s8, s6, 3
s_add_u32 s8, s8, s4                     ; b*8+x
s_lshl_b32 s17, s8, 9
s_lshl_b32 s8, s8, 21
s_add_u32 s8, s8, 0x180000
s_lshl_b32 s9, s7, 16
s_add_u32 s8, s8, s9
s_lshl_b32 s9, s3, 14
s_add_u32 s8, s8, s9                     ; K base
s_lshl_b32 s13, s7, 6
s_add_u32 s17, s17, s13
s_lshl_b32 s13, s3, 4
s_add_u32 s17, s17, s13
s_add_u32 s17, s17, {WS_ML}
s_lshl_b32 s12, s4, 2
s_add_u32 s12, s12, s6
s_lshl_b32 s12, s12, 14
s_lshl_b32 s13, s3, 10
s_add_u32 s12, s12, s13
s_add_u32 s12, s12, {WS_QP}
s_mov_b32 s27, {D0}
v_and_b32 v3, 15, v2
v_lshrrev_b32 v4, 4, v2
v_lshlrev_b32 v5, 8, v3
v_lshl_add_u32 v5, v4, 4, v5             ; voffK
v_lshlrev_b32 v7, 4, v2                  ; l*16
s_waitcnt lgkmcnt(0)
s_barrier
""")
KR = 16; QB = 80; S = 96; PB = 128; QG = 112
reg = KR
for t in range(4):
    tile_off(t)
    for i in range(4):
        A(f"buffer_load_dwordx4 v[{reg}:{reg+3}], v5, s[44:47], s10 offen offset:{i*64}{ntf}")
        reg += 4
stamp(1)
def qloads():
    A("s_add_u32 s28, s12, s27")
    for ks in range(4):
        A(f"s_add_u32 s13, s28, {ks*4096}")
        A(f"buffer_load_dwordx4 v[{QG+4*ks}:{QG+4*ks+3}], v7, s[52:55], s13 offen sc1")
get_tag(8)
A(f"""
v_lshrrev_b32 v10, 5, v2
v_lshlrev_b32 v10, 7, v10
v_and_b32 v11, 7, v2
v_lshl_add_u32 v10, v11, 4, v10
v_bfe_u32 v11, v2, 3, 1
v_lshl_add_u32 v10, v11, 3, v10
v_bfe_u32 v11, v2, 4, 1
v_lshl_add_u32 v10, v11, 2, v10
s_lshl_b32 s9, s3, 8
v_add_u32 v10, s9, v10
v_and_b32 v8, 3, v2
v_lshlrev_b32 v9, 8, v8
v_lshl_add_u32 v15, v4, 4, v9
v_mov_b32 v14, 1
s_lshl_b32 s9, s3, 11
v_add_u32 v6, s9, v7
s_lshl_b32 s9, s3, 5
v_lshl_add_u32 v12, v8, 3, s9
s_lshl_b32 s9, s3, 2
s_add_u32 s9, s9, {L_PRDY}
v_mov_b32 v11, s9
""")
A(f"s_waitcnt vmcnt({QPOS})")
stamp(2)
qloads()
poll_loop("q", qloads, [QG + 4 * n for n in range(4)], 8, 9, sleep=1, cntreg=96, preissued=0, fast=FAST)
stamp(3)
for c in (0, 2):
    A(f"v_add_f32 v{QG+c}, v{QG+c}, v{QG+4+c}\nv_add_f32 v{QG+8+c}, v{QG+8+c}, v{QG+12+c}")
for c in (0, 2):
    A(f"v_add_f32 v{QG+c}, v{QG+c}, v{QG+8+c}")
A(f"""
v_cvt_pk_bf16_f32 v8, v{QG}, v{QG+2}
v_mov_b32 v13, {L_QRDY}
ds_write_b32 v10, v8 offset:{L_Q}
ds_add_u32 v13, v14
""")
lds_wait(L_QRDY, 256, 8, name="qrdy", sleep=0)
for i in range(4):
    A(f"ds_read_b128 v[{QB+4*i}:{QB+4*i+3}], v15 offset:{L_Q+i*64}")
A("s_waitcnt lgkmcnt(0)")
for i in range(4):
    for t in range(4):
        r = KR + (t * 4 + i) * 4
        c = "0" if i == 0 else f"v[{S+4*t}:{S+4*t+3}]"
        A(f"v_mfma_f32_16x16x32_bf16 v[{S+4*t}:{S+4*t+3}], v[{r}:{r+3}], v[{QB+4*i}:{QB+4*i+3}], {c}")
A("s_mov_b32 s24, 0x3db504f3\ns_mov_b32 s25, 0x3fb8aa3b\ns_mov_b32 s26, 0xffff0000")
if MIMIC:
    T = 16
    for k in range(8): A(f"v_cvt_pk_bf16_f32 v{T+k}, v{S+2*k}, v{S+2*k+1}")
    for k in range(8): A(f"v_lshlrev_b32 v{S+2*k}, 16, v{T+k}\nv_and_b32 v{S+2*k+1}, s26, v{T+k}")
    for k in range(16): A(f"v_mul_f32 v{S+k}, s24, v{S+k}")
    for k in range(8): A(f"v_cvt_pk_bf16_f32 v{T+k}, v{S+2*k}, v{S+2*k+1}")
    for k in range(8): A(f"v_lshlrev_b32 v{S+2*k}, 16, v{T+k}\nv_and_b32 v{S+2*k+1}, s26, v{T+k}")
    A(f"v_max3_f32 v10, v{S}, v{S+1}, v{S+2}\nv_max3_f32 v9, v{S+3}, v{S+4}, v{S+5}")
    A(f"v_max3_f32 v10, v10, v{S+6}, v{S+7}\nv_max3_f32 v9, v9, v{S+8}, v{S+9}")
    A(f"v_max3_f32 v10, v10, v{S+10}, v{S+11}\nv_max3_f32 v9, v9, v{S+12}, v{S+13}")
    A(f"v_max3_f32 v10, v10, v{S+14}, v{S+15}\nv_max_f32 v10, v10, v9")
    SC = "s25"
else:
    A(f"v_max3_f32 v10, v{S}, v{S+1}, v{S+2}\nv_max3_f32 v9, v{S+3}, v{S+4}, v{S+5}")
    A(f"v_max3_f32 v10, v10, v{S+6}, v{S+7}\nv_max3_f32 v9, v9, v{S+8}, v{S+9}")
    A(f"v_max3_f32 v10, v10, v{S+10}, v{S+11}\nv_max3_f32 v9, v9, v{S+12}, v{S+13}")
    A(f"v_max3_f32 v10, v10, v{S+14}, v{S+15}\nv_max_f32 v10, v10, v9")
    A("s_mov_b32 s25, 0x3e0293ee")
    SC = "s25"
A(f"""
v_mov_b32 v9, v10
v_permlane16_swap_b32 v10, v9
v_max_f32 v10, v10, v9
v_mov_b32 v9, v10
v_permlane32_swap_b32 v10, v9
v_max_f32 v10, v10, v9
v_mul_f32 v10, {SC}, v10
""")
for k in range(16):
    A(f"v_fma_f32 v{S+k}, v{S+k}, {SC}, -v10")
for k in range(16):
    A(f"v_exp_f32 v{S+k}, v{S+k}")
for k in range(8):
    A(f"v_cvt_pk_bf16_f32 v{PB+k}, v{S+2*k}, v{S+2*k+1}")
A(f"""
ds_write_b128 v6, v[{PB}:{PB+3}] offset:{L_P}
ds_write_b128 v6, v[{PB+4}:{PB+7}] offset:{L_P+1024}
ds_write_b32 v11, v14
""")
stamp(4)
A(f"v_add_f32 v9, v{S}, v{S+1}\nv_add_f32 v8, v{S+2}, v{S+3}")
for k in range(4, 16, 2):
    A(f"v_add_f32 v9, v9, v{S+k}\nv_add_f32 v8, v8, v{S+k+1}")
A(f"""
v_add_f32 v11, v9, v8
v_mov_b32 v9, v11
v_permlane16_swap_b32 v11, v9
v_add_f32 v11, v11, v9
v_mov_b32 v9, v11
v_permlane32_swap_b32 v11, v9
v_add_f32 v11, v11, v9                   ; l (wave)
v_mov_b32 v13, {L_MLC}
ds_write_b64 v12, v[10:11] offset:{L_ML}
ds_add_u32 v13, v14
""")
lds_wait(L_MLC, 256, 8, name="mlc", sleep=0)
A(f"""
s_lshl_b32 s9, s3, 3
v_mov_b32 v8, s9
ds_read_b64 v[16:17], v8 offset:{L_ML}
ds_read_b64 v[18:19], v8 offset:{L_ML+32}
ds_read_b64 v[20:21], v8 offset:{L_ML+64}
ds_read_b64 v[22:23], v8 offset:{L_ML+96}
s_waitcnt lgkmcnt(0)
v_max_f32 v24, v16, v18
v_max3_f32 v24, v24, v20, v22            ; M
v_sub_f32 v28, v16, v24
v_sub_f32 v29, v18, v24
v_sub_f32 v30, v20, v24
v_sub_f32 v31, v22, v24
v_exp_f32 v28, v28
v_exp_f32 v29, v29
v_exp_f32 v30, v30
v_exp_f32 v31, v31
v_mov_b32 v25, s64
v_mov_b32 v27, s64
v_mul_f32 v26, v28, v17
v_fmac_f32 v26, v29, v19
v_fmac_f32 v26, v30, v21
v_fmac_f32 v26, v31, v23                 ; L
s_lshl_b32 s9, s3, 4
v_mov_b32 v8, s9
v_mov_b32 v9, {L_FRDY}
s_mov_b64 exec, 1
ds_write_b128 v8, v[28:31] offset:{L_F}
ds_add_u32 v9, v14
v_mov_b32 v8, 0
""")
pub("v[24:27]", 8, 17)
A("s_mov_b64 exec, -1")
stamp(5)
A("""
s_cmp_eq_u32 s3, 1
s_cbranch_scc1 L_hg
s_cmp_eq_u32 s3, 2
s_cbranch_scc1 L_mo
s_cmp_eq_u32 s3, 3
s_cbranch_scc1 L_fin
s_branch L_stamp
""")
A.label("L_hg")
A(f"""
s_mul_i32 s8, s18, 28
v_and_b32 v152, 31, v2
v_min_u32 v152, 13, v152
v_lshl_add_u32 v152, v152, 1, s8
v_lshrrev_b32 v153, 6, v152
v_lshlrev_b32 v153, 9, v153
v_bfe_u32 v154, v152, 1, 1
v_lshl_add_u32 v153, v154, 8, v153
v_bfe_u32 v154, v152, 2, 1
v_lshl_add_u32 v153, v154, 7, v153
v_bfe_u32 v154, v152, 3, 3
v_lshl_add_u32 v153, v154, 4, v153
v_lshrrev_b32 v154, 5, v2
s_mov_b32 s8, 229376
v_mul_lo_u32 v154, v154, s8
v_add_u32 v153, v153, v154
s_mul_i32 s19, s6, 14336
s_add_u32 s19, s19, {WS_HP}
""")
G = 136
def hloads():
    for ks in range(4):
        A(f"s_add_u32 s8, s19, {ks*57344}")
        A(f"buffer_load_dwordx4 v[{G+4*ks}:{G+4*ks+3}], v153, s[52:55], s8 offen sc1")
poll_loop("h", hloads, [G + 4 * n for n in range(4)], 8, 9, cntreg=96)
for c in (0, 2):
    A(f"v_add_f32 v{G+c}, v{G+c}, v{G+4+c}\nv_add_f32 v{G+8+c}, v{G+8+c}, v{G+12+c}")
for c in (0, 2):
    A(f"v_add_f32 v{G+c}, v{G+c}, v{G+8+c}")
A(f"""
v_cvt_pk_bf16_f32 v156, v{G}, v{G+2}
v_mov_b32 v157, v156
v_permlane32_swap_b32 v156, v157
v_lshlrev_b32 v158, 16, v156
v_and_b32 v159, 0xffff0000, v156
v_lshlrev_b32 v160, 16, v157
v_and_b32 v161, 0xffff0000, v157
v_mul_f32 v162, 0xbfb8aa3b, v158
v_mul_f32 v163, 0xbfb8aa3b, v159
v_exp_f32 v162, v162
v_exp_f32 v163, v163
v_add_f32 v162, 1.0, v162
v_add_f32 v163, 1.0, v163
v_rcp_f32 v162, v162
v_rcp_f32 v163, v163
v_mul_f32 v162, v158, v162
v_mul_f32 v163, v159, v163
v_cvt_pk_bf16_f32 v162, v162, v163
v_lshlrev_b32 v163, 16, v162
v_and_b32 v162, 0xffff0000, v162
v_mul_f32 v163, v163, v160
v_mul_f32 v162, v162, v161
v_cvt_pk_bf16_f32 v162, v163, v162
v_and_b32 v164, 31, v2
v_cmp_gt_u32 vcc, 14, v164
v_cndmask_b32 v162, 0, v162, vcc
v_lshrrev_b32 v164, 2, v2
v_lshlrev_b32 v164, 5, v164
v_and_b32 v165, 3, v2
v_lshl_add_u32 v164, v165, 2, v164
v_cmp_gt_u32 vcc, 16, v2
s_and_saveexec_b64 s[20:21], vcc
ds_write_b32 v164, v162 offset:{L_H}
ds_write_b32 v164, v162 offset:{L_H+16}
s_mov_b64 exec, s[20:21]
v_mov_b32 v8, {L_HRDY}
v_mov_b32 v9, 1
ds_write_b32 v8, v9
""")
stamp(6)
A("s_branch L_stamp")
A.label("L_mo")
A(f"""
s_setprio 3
s_lshl_b32 s12, s6, 3
s_add_u32 s12, s12, s4
s_lshl_b32 s16, s12, 9
s_add_u32 s16, s16, {WS_ML}
s_lshl_b32 s12, s12, 15
s_lshl_b32 s8, s7, 12
s_add_u32 s12, s12, s8
s_add_u32 s12, s12, {WS_OP}
v_lshrrev_b32 v8, 5, v2
v_bfe_u32 v10, v2, 3, 2
v_lshlrev_b32 v8, 6, v8
v_lshl_add_u32 v152, v10, 4, v8
v_bfe_u32 v13, v2, 2, 3                  ; (l%32)/4
v_lshlrev_b32 v13, 5, v13
v_and_b32 v8, 3, v2
v_lshl_add_u32 v13, v8, 2, v13
v_mov_b32 v14, {L_OCR}
v_mov_b32 v15, 1
""")
GM = 136; GO = 16
def moloads():
    A("s_add_u32 s28, s12, s27\ns_add_u32 s29, s16, s27")
    for i in range(4):
        A(f"buffer_load_dwordx4 v[{GO+4*i}:{GO+4*i+3}], v7, s[52:55], s28 offen offset:{i*1024} sc1")
    for i in range(4):
        A(f"buffer_load_dwordx4 v[{GM+4*i}:{GM+4*i+3}], v152, s[52:55], s29 offen offset:{i*128} sc1")
lds_wait(L_OPUB, 4, 8, name="opub", sleep=1)
stamp(6)
A(f"s_mov_b32 s27, {D0}")
poll_loop("mo", moloads, [GO + 4 * i for i in range(4)] + [GM + 4 * i for i in range(4)], 153, 154, sleep=0, cntreg=96, fast=FAST)
stamp(7)
A(f"""
v_max_f32 v153, v{GM}, v{GM+4}
v_max3_f32 v153, v153, v{GM+8}, v{GM+12}
v_mov_b32 v154, v153
v_permlane32_swap_b32 v153, v154
v_max_f32 v153, v153, v154
""")
for i in range(4):
    A(f"v_sub_f32 v{GM+4*i}, v{GM+4*i}, v153")
for i in range(4):
    A(f"v_exp_f32 v{GM+4*i}, v{GM+4*i}")
A(f"""
v_mul_f32 v155, v{GM}, v{GM+2}
v_mul_f32 v161, v{GM}, v{GO}
v_mul_f32 v162, v{GM}, v{GO+2}
""")
for i in range(1, 4):
    A(f"v_fmac_f32 v155, v{GM+4*i}, v{GM+4*i+2}\nv_fmac_f32 v161, v{GM+4*i}, v{GO+4*i}\nv_fmac_f32 v162, v{GM+4*i}, v{GO+4*i+2}")
A(f"""
v_mov_b32 v156, v155
v_mov_b32 v163, v161
v_mov_b32 v164, v162
v_permlane32_swap_b32 v155, v156
v_permlane32_swap_b32 v161, v163
v_permlane32_swap_b32 v162, v164
v_add_f32 v155, v155, v156
v_add_f32 v161, v161, v163
v_add_f32 v162, v162, v164
v_rcp_f32 v155, v155
s_nop 0
v_mul_f32 v161, v161, v155
v_mul_f32 v162, v162, v155
v_cvt_pk_bf16_f32 v161, v161, v162
ds_write_b32 v13, v161 offset:{L_OC}
ds_write_b32 v13, v161 offset:{L_OC+16}
ds_write_b32 v14, v15
""")
stamp(8)
A("s_branch L_stamp")
A.label("L_fin")
A(f"""
s_setprio 3
s_load_dwordx2 s[44:45], s[0:1], 80
s_lshl_b32 s12, s6, 18
s_lshl_b32 s8, s18, 12
s_add_u32 s12, s12, s8
s_add_u32 s12, s12, {WS_FP}
s_mov_b32 s46, 4096
s_mov_b32 s47, 0x20000
s_lshr_b32 s8, s18, 4
s_lshl_b32 s8, s8, 8
s_and_b32 s9, s18, 3
s_lshl_b32 s9, s9, 6
s_add_u32 s8, s8, s9
s_bfe_u32 s9, s18, 0x20002
s_lshl_b32 s9, s9, 2
s_add_u32 s8, s8, s9
s_lshl_b32 s9, s6, 10
s_add_u32 s28, s8, s9
v_lshlrev_b32 v10, 4, v2
""")
lds_wait(L_OPUB, 8, 8, name="fpub", sleep=1)
if FDELAY: A(f"s_sleep {FDELAY}")
stamp(6)
GF = 16
def floads():
    for i in range(4):
        A(f"buffer_load_dwordx4 v[{GF+4*i}:{GF+4*i+3}], v7, s[52:55], s12 offen offset:{i*1024} sc1")
poll_loop("f", floads, [GF + 4 * i for i in range(4)], 8, 9, sleep=0, cntreg=96)
stamp(7)
for c in (0, 2):
    A(f"v_add_f32 v{GF+c}, v{GF+c}, v{GF+4+c}\nv_add_f32 v{GF+8+c}, v{GF+8+c}, v{GF+12+c}")
for c in (0, 2):
    A(f"v_add_f32 v{GF+c}, v{GF+c}, v{GF+8+c}")
for sh in (4, 8):
    for c in (0, 2):
        A(f"v_add_f32_dpp v{48+c}, v{GF+c}, v{GF+c} row_ror:{sh} row_mask:0xf bank_mask:0xf")
    for c in (0, 2):
        A(f"v_mov_b32 v{GF+c}, v{48+c}")
for sw in ("16", "32"):
    for c in (0, 2):
        A(f"v_mov_b32 v{48+c}, v{GF+c}")
    for c in (0, 2):
        A(f"v_permlane{sw}_swap_b32 v{GF+c}, v{48+c}")
    for c in (0, 2):
        A(f"v_add_f32 v{GF+c}, v{GF+c}, v{48+c}")
A(f"""
v_cvt_pk_bf16_f32 v8, v{GF}, v{GF+2}
v_cmp_gt_u32 vcc, 4, v2
s_waitcnt lgkmcnt(0)
s_and_saveexec_b64 s[20:21], vcc
buffer_store_dword v8, v10, s[44:47], s28 offen
s_mov_b64 exec, s[20:21]
s_cmp_eq_u32 s2, 0
s_cbranch_scc0 L_stamp
v_mov_b32 v8, s64
v_mov_b32 v9, {WS_E}
v_cmp_eq_u32 vcc, 0, v2
s_and_saveexec_b64 s[20:21], vcc
buffer_store_dword v8, v9, s[52:55], 0 offen
s_mov_b64 exec, s[20:21]
""")
A.label("L_stamp")
if STAMPS:
    A("s_memrealtime s[94:95]")
    if CLK: A("s_memtime s[92:93]")
    A("s_waitcnt lgkmcnt(0)")
    if CLK: A("s_sub_u32 s96, s92, s90")
    A(f"""
s_lshl_b32 s9, s2, 4
s_add_u32 s9, s9, s30
s_mul_i32 s9, s9, {NST*8}
s_add_u32 s9, s9, {STAMPOFF}
v_mov_b32 v4, 0
s_mov_b64 exec, 1
""")
    if CLK: A("s_mov_b64 s[90:91], 0\ns_mov_b64 s[92:93], 0")
    for k in range(0, NST, 2):
        A(f"v_mov_b32 v10, s{70+2*k}\nv_mov_b32 v11, s{71+2*k}\nv_mov_b32 v12, s{72+2*k}\nv_mov_b32 v13, s{73+2*k}")
        A(f"buffer_store_dwordx4 v[10:13], v4, s[52:55], s9 offen offset:{k*8}")
        A("s_nop 1")
A.label("L_end")
body = A.text()
if STAMPS:
    z = "".join(f"    s_mov_b64 s[{70+2*k}:{71+2*k}], 0\n" for k in range(NST))
    body = z + body
body = hazard.fix(body, verbose=True)
open(sys.argv[1], "w").write(wrap(body, 256, 768, LDS_BYTES, 168, 102))
```

```python
import sys
from asmgen import *
import hazard

opt = dict(a.split("=") for a in sys.argv[2:])
def O(name, default): return type(default)(opt.get(name, default)) if not isinstance(default, bool) else opt.get(name, "1" if default else "0") == "1"
STAMPS = O("stamps", False)
MIMIC = O("mimic", True)
NT = O("nt", True)
NTW = O("ntw", True)
NTO = O("nto", False)
QPOS = O("qpos", 8)
SPINMAX = O("spinmax", 20000)
FAST = O("fast", True)
FDELAY = O("fdelay", 0)
CLK = O("clk", False)
ROT = O("rot", True)
FINE = O("fine", True)
KVROT = O("kvrot", True)
PRETOUCH = O("pretouch", 0)
ntf = " nt" if NT else ""
ntw = " nt" if NTW else ""
nto = " nt" if NTO else ""

WS_E   = 0
WS_QP  = 0x10000
WS_HP  = 0x100000
WS_ML  = 0x180000
WS_OP  = 0x200000
WS_FP  = 0x300000
FASTD  = 0x400000
WS_SIZE = 268435456
STAMPOFF = 0x8000000
NST = 14
L_TAG = 0
L_QRDY = 8
L_HRDY = 12
L_VISS = 16
L_MLC = 20
L_FRDY = 24
L_OWC = 28
L_OCR = 32
L_GRDY = 36
L_OPUB = 40
L_PRDY = 48
L_Q = 0x100
L_ML = 0x500
L_F = 0x580
L_H = 0x600
L_G = 0x680
L_OC = 0x700
L_OW = 0x800
L_P = 0x2800
LDS_BYTES = 0x4800

A = Asm()
def stamp(k):
    if STAMPS: A(f"s_memrealtime s[{70+2*k}:{71+2*k}]")
def srd_consts(d, size):
    A(f"s_mov_b32 s{d+2}, {size}\ns_mov_b32 s{d+3}, 0x20000")

def lds_wait(addr, val, vt, name="w", sleep=1, addr_is_vreg=None):
    L = A.newlabel("Lw_" + name); Ld = A.newlabel("Lwd_" + name)
    if addr_is_vreg is None:
        A(f"v_mov_b32 v{vt+1}, {addr}"); av = vt + 1
    else: av = addr_is_vreg
    A(f"s_mov_b32 s15, 0")
    A.label(L)
    A(f"""
ds_read_b32 v{vt}, v{av}
s_waitcnt lgkmcnt(0)
v_readfirstlane_b32 s14, v{vt}
s_add_u32 s15, s15, 1
s_cmp_ge_u32 s14, {val}
s_cbranch_scc1 {Ld}
s_cmp_lt_u32 s15, {SPINMAX*16}
""" + (f"s_sleep {sleep}\n" if sleep else "") + f"s_cbranch_scc1 {L}")
    A.label(Ld)

def get_tag(vt):
    L = A.newlabel("Ltag"); Ld = A.newlabel("Ltagd")
    A(f"v_mov_b32 v{vt+2}, {L_TAG}\ns_mov_b32 s15, 0")
    A.label(L)
    A(f"""
ds_read_b64 v[{vt}:{vt+1}], v{vt+2}
s_waitcnt lgkmcnt(0)
v_readfirstlane_b32 s14, v{vt+1}
v_readfirstlane_b32 s64, v{vt}
s_add_u32 s15, s15, 1
s_cmp_eq_u32 s14, 1
s_cbranch_scc1 {Ld}
s_cmp_lt_u32 s15, {SPINMAX*16}
s_sleep 1
s_cbranch_scc1 {L}
""")
    A.label(Ld)

def Pj(raw, j, t, npair=4):
    k = j // 2; sel = "s66" if j % 2 == 0 else "s67"
    for p in range(npair):
        A(f"v_perm_b32 v{t+p}, v{raw+(2*p+1)*4+k}, v{raw+(2*p)*4+k}, {sel}")

def transpose_mfma(raw, acc, aop, tmp, first):
    def P(j): Pj(raw, j, tmp + 4 * (j % 3))
    def M(j):
        t = tmp + 4 * (j % 3)
        c = "0" if first else f"v[{acc+4*j}:{acc+4*j+3}]"
        A(f"v_mfma_f32_16x16x32_bf16 v[{acc+4*j}:{acc+4*j+3}], v[{aop}:{aop+3}], v[{t}:{t+3}], {c}")
    P(0); P(1); M(0)
    for j in range(2, 8):
        P(j); M(j - 1)
    M(7)

def transpose_only(raw, dst):
    for j in range(8): Pj(raw, j, dst + 4 * j)

def tagcheck(regs, vmin, vmax):
    first = True
    for r in regs:
        if first:
            A(f"v_min_u32 v{vmin}, v{r+1}, v{r+3}\nv_max_u32 v{vmax}, v{r+1}, v{r+3}"); first = False
        else:
            A(f"v_min3_u32 v{vmin}, v{vmin}, v{r+1}, v{r+3}\nv_max3_u32 v{vmax}, v{vmax}, v{r+1}, v{r+3}")
    A(f"v_xor_b32 v{vmin}, s64, v{vmin}\nv_xor_b32 v{vmax}, s64, v{vmax}\nv_or_b32 v{vmin}, v{vmin}, v{vmax}\nv_cmp_ne_u32 vcc, 0, v{vmin}")

def poll_loop(name, emit_loads, regs, vmin, vmax, sleep=2, cntreg=None, preissued=None, fast=False):
    L = A.newlabel("Lp_" + name); Ld = A.newlabel("Lpd_" + name); Lc = A.newlabel("Lpc_" + name)
    A("s_mov_b32 s15, 0")
    if preissued is not None:
        A(f"s_waitcnt vmcnt({preissued})")
        A(f"s_branch {Lc}")
    A.label(L)
    if fast:
        A(f"s_and_b32 s14, s15, 3\ns_cmp_eq_u32 s14, 3\ns_cselect_b32 s27, 0, {FASTD}")
    emit_loads()
    A("s_waitcnt vmcnt(0)")
    A.label(Lc)
    tagcheck(regs, vmin, vmax)
    A(f"""
s_add_u32 s15, s15, 1
s_cbranch_vccz {Ld}
s_cmp_lt_u32 s15, {SPINMAX}
""" + (f"s_sleep {sleep}\n" if sleep else "") + f"s_cbranch_scc1 {L}")
    A.label(Ld)
    if cntreg is not None: A(f"s_mov_b32 s{cntreg}, s15")

def pub(regs, voff, soff, off=0, fast=True):
    o = f" offset:{off}" if off else ""
    if fast and FAST:
        A(f"s_add_u32 s29, s{soff}, {FASTD}")
        A(f"buffer_store_dwordx4 {regs}, v{voff}, s[52:55], s29 offen{o}")
    A(f"buffer_store_dwordx4 {regs}, v{voff}, s[52:55], s{soff} offen{o} sc1")

D0 = FASTD if FAST else 0
def tile_off(t):
    if KVROT:
        A(f"s_add_u32 s10, s7, {t}\ns_and_b32 s10, s10, 3\ns_lshl_b32 s10, s10, 12\ns_add_u32 s10, s10, s8")
    else:
        A(f"s_add_u32 s10, s8, {t*4096}")
A("""
s_cmp_ge_u32 s2, 256
s_cbranch_scc1 L_end
v_lshrrev_b32 v1, 6, v0
v_and_b32 v2, 63, v0
v_readfirstlane_b32 s3, v1
s_and_b32 s4, s2, 7
s_lshr_b32 s5, s2, 3                     ; r
s_lshr_b32 s6, s5, 3                     ; b
s_and_b32 s7, s5, 7                      ; s (split)
s_lshl_b32 s18, s4, 3
s_add_u32 s18, s18, s7                   ; j = x*8 + s
s_mov_b32 s66, 0x05040100
s_mov_b32 s67, 0x07060302
s_load_dwordx2 s[52:53], s[0:1], 96      ; ws
""")
stamp(0)
if CLK: A("s_memtime s[90:91]")
srd_consts(52, WS_SIZE)
A("""
s_mov_b32 s30, s3
s_cmp_lt_u32 s3, 4
s_cbranch_scc1 L_K
s_cmp_ge_u32 s3, 8
s_cbranch_scc1 L_O
s_load_dwordx2 s[40:41], s[0:1], 16      ; V
s_sub_u32 s3, s3, 4                      ; a
s_cmp_ge_u32 s3, 2
s_cbranch_scc1 L_V23
""")
A("s_load_dwordx2 s[48:49], s[0:1], 0")
A("s_setprio 3")
A("""
s_cmp_eq_u32 s3, 0
s_cbranch_scc0 L_W1setup
s_load_dwordx2 s[44:45], s[0:1], 24
s_mov_b32 s46, 4194304
s_movk_i32 s10, 8192
s_lshl_b32 s9, s6, 20
s_lshl_b32 s11, s7, 7
s_add_u32 s9, s9, s11
s_lshl_b32 s11, s4, 10
s_add_u32 s9, s9, s11
s_lshl_b32 s11, s6, 8
s_lshl_b32 s12, s4, 16
s_lshl_b32 s13, s6, 12
s_add_u32 s12, s12, s13
s_lshl_b32 s13, s7, 9
s_add_u32 s12, s12, s13
""" + f"""
s_add_u32 s12, s12, {WS_QP}
s_movk_i32 s13, 16384
s_movk_i32 s16, 256
s_branch L_prod
""")
A.label("L_W1setup")
A(f"""
s_and_b32 s8, s2, 1
s_cmp_eq_u32 s8, 0
s_cbranch_scc0 L_W1b
s_load_dwordx2 s[44:45], s[0:1], 48
s_branch L_W1c
""")
A.label("L_W1b")
A("s_load_dwordx2 s[44:45], s[0:1], 56")
A.label("L_W1c")
A(f"""
s_mov_b32 s46, 1835008
s_movk_i32 s10, 3584
s_lshr_b32 s9, s2, 1
s_mul_i32 s11, s9, 2341
s_lshr_b32 s11, s11, 16
s_mul_i32 s12, s11, 28
s_sub_u32 s12, s9, s12
s_mul_i32 s9, s11, {128*3584}
s_lshl_b32 s13, s12, 7
s_add_u32 s9, s9, s13
s_mul_i32 s13, s8, 229376
s_lshl_b32 s12, s12, 9
s_add_u32 s12, s12, s13
s_mul_i32 s13, s11, 57344
s_add_u32 s12, s12, s13
s_add_u32 s12, s12, {WS_HP}
s_movk_i32 s13, 14336
s_lshl_b32 s11, s11, 8
s_movk_i32 s16, 224
""")
A.label("L_prod")
srd_consts(48, 4096)
A(f"""
s_mov_b32 s47, 0x20000
v_lshrrev_b32 v3, 3, v2
v_and_b32 v4, 7, v2
v_lshlrev_b32 v4, 4, v4
s_lshl_b32 s8, s10, 3
v_mul_lo_u32 v5, v3, s8
v_add_u32 v5, v5, v4
v_and_b32 v6, 15, v2
v_lshrrev_b32 v7, 2, v6
v_lshlrev_b32 v7, 10, v7
v_and_b32 v8, 1, v2
v_lshrrev_b32 v9, 4, v2
v_lshl_add_u32 v8, v9, 1, v8
v_lshl_add_u32 v7, v8, 4, v7
v_mul_lo_u32 v10, v9, s13
v_lshl_add_u32 v10, v6, 4, v10
v_cmp_le_u32 s[68:69], 8, v6
s_mul_i32 s17, s10, 57
s_cmp_ge_u32 s2, s16
s_waitcnt lgkmcnt(0)
s_cbranch_scc1 L_prod_skip
""")
XA = 80
RAW = 16
A(f"buffer_load_dwordx4 v[{XA}:{XA+3}], v7, s[48:51], s11 offen")
A(f"buffer_load_dwordx4 v[{XA+4}:{XA+7}], v7, s[48:51], s11 offen offset:128")
A("s_mov_b32 s14, s9")
for e in range(2):
    for i in range(8):
        r = RAW + (e * 8 + i) * 4
        A(f"buffer_load_dwordx4 v[{r}:{r+3}], v5, s[44:47], s14 offen{ntw}")
        if not (e == 1 and i == 7):
            A("s_add_u32 s14, s14, s17" if i == 7 else "s_add_u32 s14, s14, s10")
A(f"s_load_dword s65, s[52:53], {WS_E}")
A("s_barrier")
A(f"""
s_cmp_eq_u32 s3, 0
s_cbranch_scc0 L_prod_notag
s_waitcnt lgkmcnt(0)
s_mul_i32 s64, s65, 0x9E3779B1
s_add_u32 s64, s64, 0x7F4A7C15
v_mov_b32 v96, s64
v_mov_b32 v97, 1
v_mov_b32 v98, {L_TAG}
ds_write_b64 v98, v[96:97]
s_branch L_prod_havetag
""")
A.label("L_prod_notag")
get_tag(96)
A.label("L_prod_havetag")
PUB = 88
for k in range(4):
    A(f"v_mov_b32 v{PUB+2*k+1}, s64")
stamp(1)
ACC = 112; TMP = 96
A("s_waitcnt vmcnt(8)")
transpose_mfma(RAW, ACC, XA, TMP, True)
A("s_waitcnt vmcnt(0)")
transpose_mfma(RAW + 32, ACC, XA + 4, TMP, False)
for k in range(4):
    A(f"v_cndmask_b32 v{144+k}, v{ACC+4*k+0}, v{ACC+4*(4+k)+1}, s[68:69]")
    A(f"v_cndmask_b32 v{148+k}, v{ACC+4*(4+k)+0}, v{ACC+4*k+1}, s[68:69]")
for k in range(4):
    A(f"v_add_f32_dpp v{PUB+2*k}, v{148+k}, v{144+k} row_ror:8 row_mask:0xf bank_mask:0xf")
if FAST:
    A(f"s_cmp_eq_u32 s3, 0\ns_cbranch_scc0 L_nofastq\ns_add_u32 s29, s12, {FASTD}")
    A(f"buffer_store_dwordx4 v[{PUB}:{PUB+3}], v10, s[52:55], s29 offen")
    A(f"buffer_store_dwordx4 v[{PUB+4}:{PUB+7}], v10, s[52:55], s29 offen offset:256")
    A.label("L_nofastq")
A(f"buffer_store_dwordx4 v[{PUB}:{PUB+3}], v10, s[52:55], s12 offen sc1")
A(f"buffer_store_dwordx4 v[{PUB+4}:{PUB+7}], v10, s[52:55], s12 offen offset:256 sc1")
stamp(2)
A("s_branch L_V")
A.label("L_prod_skip")
A("s_barrier\ns_branch L_V")
A.label("L_V23")
A("""
s_cmp_eq_u32 s3, 3
s_cbranch_scc1 L_W3
s_barrier
s_branch L_V
""")
A.label("L_W3")
A(f"""
s_load_dwordx2 s[48:49], s[0:1], 0       ; x
s_load_dwordx2 s[44:45], s[0:1], 72      ; gate_w
s_setprio 3
v_mov_b32 v4, 0
v_mov_b32 v5, 0
v_mov_b32 v6, 0
v_mov_b32 v7, 0
v_mov_b32 v8, 0
ds_write_b128 v8, v[4:7]
ds_write_b128 v8, v[4:7] offset:16
ds_write_b128 v8, v[4:7] offset:32
ds_write_b128 v8, v[4:7] offset:48
s_mov_b32 s50, 4096
s_mov_b32 s51, 0x20000
s_mov_b32 s46, 1024
s_mov_b32 s47, 0x20000
v_lshlrev_b32 v3, 4, v2
s_lshl_b32 s8, s6, 10
s_waitcnt lgkmcnt(0)
buffer_load_dwordx4 v[16:19], v3, s[48:51], s8 offen
buffer_load_dwordx4 v[20:23], v3, s[44:47], 0 offen
s_barrier
s_waitcnt vmcnt(0)
""")
for k in range(4):
    A(f"""
v_lshlrev_b32 v{24+2*k}, 16, v{16+k}
v_and_b32 v{25+2*k}, 0xffff0000, v{16+k}
v_lshlrev_b32 v{32+2*k}, 16, v{20+k}
v_and_b32 v{33+2*k}, 0xffff0000, v{20+k}
v_mul_f32 v{24+2*k}, v{24+2*k}, v{32+2*k}
v_mul_f32 v{25+2*k}, v{25+2*k}, v{33+2*k}
v_cvt_pk_bf16_f32 v{40+k}, v{24+2*k}, v{25+2*k}
""")
A("v_mov_b32 v44, 0")
for k in range(4):
    A(f"""
v_lshlrev_b32 v24, 16, v{40+k}
v_and_b32 v25, 0xffff0000, v{40+k}
v_add_f32 v44, v44, v24
v_add_f32 v44, v44, v25
""")
for sh in (1, 2, 4, 8):
    A(f"v_add_f32_dpp v45, v44, v44 row_ror:{sh} row_mask:0xf bank_mask:0xf\nv_mov_b32 v44, v45")
A("""
v_mov_b32 v45, v44
v_permlane16_swap_b32 v44, v45
v_add_f32 v44, v44, v45
v_mov_b32 v45, v44
v_permlane32_swap_b32 v44, v45
v_add_f32 v44, v44, v45
v_cvt_pk_bf16_f32 v44, v44, v44
v_lshlrev_b32 v44, 16, v44
v_mul_f32 v45, 0xbfb8aa3b, v44
v_exp_f32 v45, v45
v_add_f32 v45, 1.0, v45
v_rcp_f32 v45, v45
v_cvt_pk_bf16_f32 v45, v45, v45
v_lshlrev_b32 v46, 16, v45
v_sub_f32 v47, 1.0, v46
v_cvt_pk_bf16_f32 v47, v47, v47
v_lshlrev_b32 v47, 16, v47
""" + f"""
v_mov_b32 v4, {L_G}
ds_write_b64 v4, v[46:47]
v_mov_b32 v5, {L_GRDY}
v_mov_b32 v6, 1
ds_write_b32 v5, v6
""")
stamp(2)
A.label("L_V")
VR = 16; ACC = 112; TMP = 96; PB = 144
A("s_setprio 1")
A(f"""
s_waitcnt lgkmcnt(0)
s_mov_b32 s48, s40
s_mov_b32 s49, s41
s_mov_b32 s50, 67108864
s_mov_b32 s51, 0x20000
s_lshl_b32 s8, s6, 3
s_add_u32 s8, s8, s4                     ; b*8+x
s_lshl_b32 s16, s8, 15
s_lshl_b32 s8, s8, 21
s_add_u32 s8, s8, 0x180000
s_lshl_b32 s9, s7, 16
s_add_u32 s8, s8, s9
s_lshl_b32 s9, s3, 14
s_add_u32 s8, s8, s9                     ; V base
v_and_b32 v3, 15, v2
v_lshrrev_b32 v4, 4, v2
v_lshlrev_b32 v6, 10, v4
v_lshl_add_u32 v6, v3, 4, v6             ; voffV
""")
reg = VR
for u in range(2):
    for hi in range(2):
        tile_off(2*u+hi)
        for i4 in range(4):
            A(f"buffer_load_dwordx4 v[{reg}:{reg+3}], v6, s[48:51], s10 offen offset:{i4*256}{ntf}")
            reg += 4
A(f"v_mov_b32 v8, {L_VISS}\nv_mov_b32 v14, 1\ns_mov_b64 exec, 1\nds_add_u32 v8, v14\ns_mov_b64 exec, -1")
A("s_setprio 2")
stamp(3)
get_tag(8)
A(f"""
s_lshl_b32 s13, s7, 9
s_add_u32 s16, s16, s13
s_lshl_b32 s13, s3, 7
s_add_u32 s16, s16, s13
s_add_u32 s16, s16, {WS_OP}
s_lshl_b32 s9, s3, 11
v_lshlrev_b32 v10, 4, v3
v_add_u32 v10, s9, v10
v_and_b32 v11, 3, v2
v_lshlrev_b32 v11, 9, v11
v_lshrrev_b32 v9, 2, v2
v_lshl_add_u32 v11, v9, 4, v11
s_lshl_b32 s9, s3, 2
s_add_u32 s9, s9, {L_OW}
v_add_u32 v11, s9, v11
v_lshrrev_b32 v12, 3, v2
v_lshlrev_b32 v12, 12, v12
v_and_b32 v9, 7, v2
v_lshl_add_u32 v12, v9, 4, v12
v_mov_b32 v153, s64
v_mov_b32 v155, s64
v_mov_b32 v13, {L_OWC}
s_lshl_b32 s9, s3, 2
s_add_u32 s9, s9, {L_PRDY}
v_mov_b32 v15, s9
s_lshl_b32 s9, s3, 11
v_lshlrev_b32 v5, 4, v2
v_add_u32 v5, s9, v5
s_lshl_b32 s9, s3, 4
v_mov_b32 v7, s9
""")
lds_wait(None, 1, 8, name="prdy", sleep=1, addr_is_vreg=15)
A(f"""
ds_read_b128 v[{PB}:{PB+3}], v5 offset:{L_P}
ds_read_b128 v[{PB+4}:{PB+7}], v5 offset:{L_P+1024}
""")
stamp(5)
A("s_waitcnt vmcnt(8) lgkmcnt(0)")
transpose_mfma(VR, ACC, PB, TMP, True)
lds_wait(L_FRDY, 4, 8, name="frdy", sleep=0)
A(f"ds_read_b128 v[156:159], v7 offset:{L_F}")
if FINE:
    T1 = 64 if False else 120 + 40
    T1 = 16
    for p in range(4):
        A(f"s_waitcnt vmcnt({6-2*p})")
        for j in range(8):
            k = j // 2; sel = "s66" if j % 2 == 0 else "s67"
            A(f"v_perm_b32 v{T1+4*j+p}, v{VR+32+(2*p+1)*4+k}, v{VR+32+(2*p)*4+k}, {sel}")
    stamp(6)
    for j in range(8):
        A(f"v_mfma_f32_16x16x32_bf16 v[{ACC+4*j}:{ACC+4*j+3}], v[{PB+4}:{PB+7}], v[{T1+4*j}:{T1+4*j+3}], v[{ACC+4*j}:{ACC+4*j+3}]")
else:
    A("s_waitcnt vmcnt(0)")
    stamp(6)
    transpose_mfma(VR + 32, ACC, PB + 4, TMP, False)
A("s_mov_b64 exec, 0xffff")
for j in range(8):
    A(f"ds_write_b128 v10, v[{ACC+4*j}:{ACC+4*j+3}] offset:{L_OW+j*256}")
A(f"""
ds_add_u32 v13, v14
s_mov_b64 exec, -1
""")
lds_wait(L_OWC, 64, 8, name="owc", sleep=0)
for w in range(4):
    A(f"ds_read2st64_b32 v[{16+2*w}:{17+2*w}], v11 offset0:{w*8} offset1:{w*8+1}")
A(f"""
s_waitcnt lgkmcnt(0)
v_mul_f32 v152, v16, v156
v_mul_f32 v154, v17, v156
v_fmac_f32 v152, v18, v157
v_fmac_f32 v154, v19, v157
v_fmac_f32 v152, v20, v158
v_fmac_f32 v154, v21, v158
v_fmac_f32 v152, v22, v159
v_fmac_f32 v154, v23, v159
""")
pub("v[152:155]", 12, 16)
A(f"v_mov_b32 v8, {L_OPUB}\ns_mov_b64 exec, 1\nds_add_u32 v8, v14\ns_mov_b64 exec, -1")
stamp(7)
A("s_branch L_stamp")
A.label("L_O")
RW2 = 16; R0 = 48; R1 = 80; ACC = 112; TMP = 144; AH = 156; AO = 160
A(f"""
s_load_dwordx2 s[56:57], s[0:1], 32      ; wo
s_load_dwordx2 s[60:61], s[0:1], 64      ; w2
s_sub_u32 s3, s3, 8                      ; cg
s_mov_b32 s58, 4194304
s_mov_b32 s59, 0x20000
s_mov_b32 s62, 1835008
s_mov_b32 s63, 0x20000
v_and_b32 v3, 15, v2
v_lshrrev_b32 v4, 4, v2
v_lshrrev_b32 v7, 1, v4
v_and_b32 v8, 1, v4
v_lshlrev_b32 v5, 17, v7
v_lshl_add_u32 v5, v8, 13, v5
v_lshl_add_u32 v5, v3, 4, v5             ; voffO
v_lshlrev_b32 v6, 13, v4
v_lshl_add_u32 v6, v3, 4, v6             ; voffW2
s_lshl_b32 s9, s4, 19
s_lshl_b32 s10, s7, 14
s_add_u32 s9, s9, s10
s_lshl_b32 s10, s3, 8
s_add_u32 s9, s9, s10
s_mul_i32 s11, s18, {28*1024}
s_add_u32 s11, s11, s10                  ; w2 base
s_lshl_b32 s17, s6, 18
s_lshl_b32 s8, s3, 16
s_add_u32 s17, s17, s8
s_lshl_b32 s8, s18, 6
s_add_u32 s17, s17, s8
s_add_u32 s17, s17, {WS_FP}
v_cmp_eq_u32 s[20:21], 1, v4
v_cmp_eq_u32 s[22:23], 2, v4
v_cmp_eq_u32 s[24:25], 3, v4
""")
A("s_mov_b32 s31, s6" if ROT else "s_mov_b32 s31, 0")
A(f"s_lshl_b32 s8, s31, 2\ns_add_u32 s8, s8, {L_H}\nv_lshlrev_b32 v7, 5, v4\nv_add_u32 v7, s8, v7")
A("s_lshl_b32 s8, s31, 1")
for k in range(8):
    A(f"s_add_u32 s{32+k}, s8, {k}\ns_and_b32 s{32+k}, s{32+k}, 7\ns_lshl_b32 s{32+k}, s{32+k}, 10")
if PRETOUCH:
    A("s_load_dwordx2 s[40:41], s[0:1], 16\ns_waitcnt lgkmcnt(0)\ns_mov_b32 s48, s40\ns_mov_b32 s49, s41\ns_mov_b32 s50, 67108864\ns_mov_b32 s51, 0x20000")
    A("""
s_lshl_b32 s8, s6, 3
s_add_u32 s8, s8, s4
s_lshl_b32 s8, s8, 21
s_add_u32 s8, s8, 0x180000
s_lshl_b32 s13, s7, 16
s_add_u32 s8, s8, s13
v_mov_b32 v8, 0
s_mov_b64 exec, 1
s_cmp_eq_u32 s3, 0
s_cbranch_scc0 L_pt1
buffer_load_dword v144, v8, s[48:51], s8 offen
buffer_load_dword v145, v8, s[56:59], s9 offen
buffer_load_dword v146, v8, s[60:63], s11 offen
L_pt1:
s_cmp_eq_u32 s3, 1
s_cbranch_scc0 L_pt2
""" + f"""
s_mov_b32 s13, {0x1ff000}
buffer_load_dword v144, v8, s[52:55], s13 offen
s_mov_b32 s13, {0x3ff000 if False else 0x400000 - 0x1000 + 0x800}
buffer_load_dword v145, v8, s[52:55], s13 offen
L_pt2:
s_cmp_eq_u32 s3, 2
s_cbranch_scc0 L_pt3
s_mov_b32 s13, {0x4ff000}
buffer_load_dword v144, v8, s[52:55], s13 offen
s_mov_b32 s13, {0x7ff000}
buffer_load_dword v145, v8, s[52:55], s13 offen
L_pt3:
s_mov_b64 exec, -1
""")
A("s_barrier")
lds_wait(L_VISS, 4, 8, name="viss", sleep=2)
stamp(3)
def oload(srd, voff, base_sreg, extra, reg0):
    for k in range(8):
        A(f"s_add_u32 s12, s{base_sreg}, s{32+k}")
        if extra: A(f"s_add_u32 s12, s12, {extra}")
        A(f"buffer_load_dwordx4 v[{reg0+4*k}:{reg0+4*k+3}], v{voff}, s[{srd}:{srd+3}], s12 offen{nto}")
oload(60, 6, 11, 0, RW2)
oload(56, 5, 9, 0, R0)
oload(56, 5, 9, 2*128*1024, R1)
A("s_setprio 2")
stamp(4)
get_tag(8)
A("""
v_lshrrev_b32 v10, 2, v2
v_lshlrev_b32 v10, 12, v10
v_and_b32 v8, 3, v2
v_lshl_add_u32 v10, v8, 4, v10
""")
lds_wait(L_HRDY, 1, 8, name="hrdy")
A(f"ds_read2_b32 v[{AH}:{AH+1}], v7 offset0:0 offset1:1\nds_read2_b32 v[{AH+2}:{AH+3}], v7 offset0:2 offset1:3")
lds_wait(L_GRDY, 1, 8, name="grdy")
A(f"""
v_mov_b32 v11, {L_G}
ds_read_b64 v[12:13], v11
s_waitcnt lgkmcnt(0)
s_waitcnt vmcnt(16)
""")
transpose_mfma(RW2, ACC, AH, TMP, True)
def select(dst, e):
    A(f"v_cndmask_b32 v{dst}, v{ACC+4*(0+e)}, v{ACC+4*(2+e)}, s[20:21]")
    A(f"v_cndmask_b32 v{dst}, v{dst}, v{ACC+4*(4+e)}, s[22:23]")
    A(f"v_cndmask_b32 v{dst}, v{dst}, v{ACC+4*(6+e)}, s[24:25]")
select(14, 0); select(15, 1)
A("v_mul_f32 v14, v14, v13\nv_mul_f32 v15, v15, v13")
A(f"s_waitcnt vmcnt(8)")
transpose_only(R0, RW2)
A(f"s_waitcnt vmcnt(0)")
transpose_only(R1, R0)
A(f"v_mov_b32 v81, s64\nv_mov_b32 v83, s64\nv_mov_b32 v11, {L_OPUB}\nv_mov_b32 v6, 1")
stamp(8)
lds_wait(L_OCR, 1, 8, name="ocr", sleep=0)
A(f"""
ds_read2_b32 v[{AO}:{AO+1}], v7 offset0:64 offset1:65
ds_read2_b32 v[{AO+2}:{AO+3}], v7 offset0:66 offset1:67
ds_read2_b32 v[{AO+4}:{AO+5}], v7 offset0:96 offset1:97
ds_read2_b32 v[{AO+6}:{AO+7}], v7 offset0:98 offset1:99
s_waitcnt lgkmcnt(0)
""")
for j in range(8):
    A(f"v_mfma_f32_16x16x32_bf16 v[{ACC+4*j}:{ACC+4*j+3}], v[{AO}:{AO+3}], v[{RW2+4*j}:{RW2+4*j+3}], 0")
for j in range(8):
    A(f"v_mfma_f32_16x16x32_bf16 v[{ACC+4*j}:{ACC+4*j+3}], v[{AO+4}:{AO+7}], v[{R0+4*j}:{R0+4*j+3}], v[{ACC+4*j}:{ACC+4*j+3}]")
select(80, 0); select(82, 1)
A(f"""
v_fma_f32 v80, v80, v12, v14
v_fma_f32 v82, v82, v12, v15
buffer_store_dwordx4 v[80:83], v10, s[52:55], s17 offen sc1
s_mov_b64 exec, 1
ds_add_u32 v11, v6
s_mov_b64 exec, -1
""")
stamp(9)
A("s_branch L_stamp")
A.label("L_K")
A(f"""
s_load_dwordx2 s[44:45], s[0:1], 8       ; K
s_setprio 2
""")
srd_consts(44, 67108864)
A(f"""
s_lshl_b32 s8, s6, 3
s_add_u32 s8, s8, s4                     ; b*8+x
s_lshl_b32 s17, s8, 9
s_lshl_b32 s8, s8, 21
s_add_u32 s8, s8, 0x180000
s_lshl_b32 s9, s7, 16
s_add_u32 s8, s8, s9
s_lshl_b32 s9, s3, 14
s_add_u32 s8, s8, s9                     ; K base
s_lshl_b32 s13, s7, 6
s_add_u32 s17, s17, s13
s_lshl_b32 s13, s3, 4
s_add_u32 s17, s17, s13
s_add_u32 s17, s17, {WS_ML}
s_lshl_b32 s12, s4, 2
s_add_u32 s12, s12, s6
s_lshl_b32 s12, s12, 14
s_lshl_b32 s13, s3, 10
s_add_u32 s12, s12, s13
s_add_u32 s12, s12, {WS_QP}
s_mov_b32 s27, {D0}
v_and_b32 v3, 15, v2
v_lshrrev_b32 v4, 4, v2
v_lshlrev_b32 v5, 8, v3
v_lshl_add_u32 v5, v4, 4, v5             ; voffK
v_lshlrev_b32 v7, 4, v2                  ; l*16
s_waitcnt lgkmcnt(0)
s_barrier
""")
KR = 16; QB = 80; S = 96; PB = 128; QG = 112
reg = KR
for t in range(4):
    tile_off(t)
    for i in range(4):
        A(f"buffer_load_dwordx4 v[{reg}:{reg+3}], v5, s[44:47], s10 offen offset:{i*64}{ntf}")
        reg += 4
stamp(1)
def qloads():
    A("s_add_u32 s28, s12, s27")
    for ks in range(4):
        A(f"s_add_u32 s13, s28, {ks*4096}")
        A(f"buffer_load_dwordx4 v[{QG+4*ks}:{QG+4*ks+3}], v7, s[52:55], s13 offen sc1")
get_tag(8)
A(f"""
v_lshrrev_b32 v10, 5, v2
v_lshlrev_b32 v10, 7, v10
v_and_b32 v11, 7, v2
v_lshl_add_u32 v10, v11, 4, v10
v_bfe_u32 v11, v2, 3, 1
v_lshl_add_u32 v10, v11, 3, v10
v_bfe_u32 v11, v2, 4, 1
v_lshl_add_u32 v10, v11, 2, v10
s_lshl_b32 s9, s3, 8
v_add_u32 v10, s9, v10
v_and_b32 v8, 3, v2
v_lshlrev_b32 v9, 8, v8
v_lshl_add_u32 v15, v4, 4, v9
v_mov_b32 v14, 1
s_lshl_b32 s9, s3, 11
v_add_u32 v6, s9, v7
s_lshl_b32 s9, s3, 5
v_lshl_add_u32 v12, v8, 3, s9
s_lshl_b32 s9, s3, 2
s_add_u32 s9, s9, {L_PRDY}
v_mov_b32 v11, s9
""")
A(f"s_waitcnt vmcnt({QPOS})")
stamp(2)
qloads()
poll_loop("q", qloads, [QG + 4 * n for n in range(4)], 8, 9, sleep=1, cntreg=96, preissued=0, fast=FAST)
stamp(3)
for c in (0, 2):
    A(f"v_add_f32 v{QG+c}, v{QG+c}, v{QG+4+c}\nv_add_f32 v{QG+8+c}, v{QG+8+c}, v{QG+12+c}")
for c in (0, 2):
    A(f"v_add_f32 v{QG+c}, v{QG+c}, v{QG+8+c}")
A(f"""
v_cvt_pk_bf16_f32 v8, v{QG}, v{QG+2}
v_mov_b32 v13, {L_QRDY}
ds_write_b32 v10, v8 offset:{L_Q}
ds_add_u32 v13, v14
""")
lds_wait(L_QRDY, 256, 8, name="qrdy", sleep=0)
for i in range(4):
    A(f"ds_read_b128 v[{QB+4*i}:{QB+4*i+3}], v15 offset:{L_Q+i*64}")
A("s_waitcnt lgkmcnt(0)")
for i in range(4):
    for t in range(4):
        r = KR + (t * 4 + i) * 4
        c = "0" if i == 0 else f"v[{S+4*t}:{S+4*t+3}]"
        A(f"v_mfma_f32_16x16x32_bf16 v[{S+4*t}:{S+4*t+3}], v[{r}:{r+3}], v[{QB+4*i}:{QB+4*i+3}], {c}")
A("s_mov_b32 s24, 0x3db504f3\ns_mov_b32 s25, 0x3fb8aa3b\ns_mov_b32 s26, 0xffff0000")
if MIMIC:
    T = 16
    for k in range(8): A(f"v_cvt_pk_bf16_f32 v{T+k}, v{S+2*k}, v{S+2*k+1}")
    for k in range(8): A(f"v_lshlrev_b32 v{S+2*k}, 16, v{T+k}\nv_and_b32 v{S+2*k+1}, s26, v{T+k}")
    for k in range(16): A(f"v_mul_f32 v{S+k}, s24, v{S+k}")
    for k in range(8): A(f"v_cvt_pk_bf16_f32 v{T+k}, v{S+2*k}, v{S+2*k+1}")
    for k in range(8): A(f"v_lshlrev_b32 v{S+2*k}, 16, v{T+k}\nv_and_b32 v{S+2*k+1}, s26, v{T+k}")
    A(f"v_max3_f32 v10, v{S}, v{S+1}, v{S+2}\nv_max3_f32 v9, v{S+3}, v{S+4}, v{S+5}")
    A(f"v_max3_f32 v10, v10, v{S+6}, v{S+7}\nv_max3_f32 v9, v9, v{S+8}, v{S+9}")
    A(f"v_max3_f32 v10, v10, v{S+10}, v{S+11}\nv_max3_f32 v9, v9, v{S+12}, v{S+13}")
    A(f"v_max3_f32 v10, v10, v{S+14}, v{S+15}\nv_max_f32 v10, v10, v9")
    SC = "s25"
else:
    A(f"v_max3_f32 v10, v{S}, v{S+1}, v{S+2}\nv_max3_f32 v9, v{S+3}, v{S+4}, v{S+5}")
    A(f"v_max3_f32 v10, v10, v{S+6}, v{S+7}\nv_max3_f32 v9, v9, v{S+8}, v{S+9}")
    A(f"v_max3_f32 v10, v10, v{S+10}, v{S+11}\nv_max3_f32 v9, v9, v{S+12}, v{S+13}")
    A(f"v_max3_f32 v10, v10, v{S+14}, v{S+15}\nv_max_f32 v10, v10, v9")
    A("s_mov_b32 s25, 0x3e0293ee")
    SC = "s25"
A(f"""
v_mov_b32 v9, v10
v_permlane16_swap_b32 v10, v9
v_max_f32 v10, v10, v9
v_mov_b32 v9, v10
v_permlane32_swap_b32 v10, v9
v_max_f32 v10, v10, v9
v_mul_f32 v10, {SC}, v10
""")
for k in range(16):
    A(f"v_fma_f32 v{S+k}, v{S+k}, {SC}, -v10")
for k in range(16):
    A(f"v_exp_f32 v{S+k}, v{S+k}")
for k in range(8):
    A(f"v_cvt_pk_bf16_f32 v{PB+k}, v{S+2*k}, v{S+2*k+1}")
A(f"""
ds_write_b128 v6, v[{PB}:{PB+3}] offset:{L_P}
ds_write_b128 v6, v[{PB+4}:{PB+7}] offset:{L_P+1024}
ds_write_b32 v11, v14
""")
stamp(4)
A(f"v_add_f32 v9, v{S}, v{S+1}\nv_add_f32 v8, v{S+2}, v{S+3}")
for k in range(4, 16, 2):
    A(f"v_add_f32 v9, v9, v{S+k}\nv_add_f32 v8, v8, v{S+k+1}")
A(f"""
v_add_f32 v11, v9, v8
v_mov_b32 v9, v11
v_permlane16_swap_b32 v11, v9
v_add_f32 v11, v11, v9
v_mov_b32 v9, v11
v_permlane32_swap_b32 v11, v9
v_add_f32 v11, v11, v9                   ; l (wave)
v_mov_b32 v13, {L_MLC}
ds_write_b64 v12, v[10:11] offset:{L_ML}
ds_add_u32 v13, v14
""")
lds_wait(L_MLC, 256, 8, name="mlc", sleep=0)
A(f"""
s_lshl_b32 s9, s3, 3
v_mov_b32 v8, s9
ds_read_b64 v[16:17], v8 offset:{L_ML}
ds_read_b64 v[18:19], v8 offset:{L_ML+32}
ds_read_b64 v[20:21], v8 offset:{L_ML+64}
ds_read_b64 v[22:23], v8 offset:{L_ML+96}
s_waitcnt lgkmcnt(0)
v_max_f32 v24, v16, v18
v_max3_f32 v24, v24, v20, v22            ; M
v_sub_f32 v28, v16, v24
v_sub_f32 v29, v18, v24
v_sub_f32 v30, v20, v24
v_sub_f32 v31, v22, v24
v_exp_f32 v28, v28
v_exp_f32 v29, v29
v_exp_f32 v30, v30
v_exp_f32 v31, v31
v_mov_b32 v25, s64
v_mov_b32 v27, s64
v_mul_f32 v26, v28, v17
v_fmac_f32 v26, v29, v19
v_fmac_f32 v26, v30, v21
v_fmac_f32 v26, v31, v23                 ; L
s_lshl_b32 s9, s3, 4
v_mov_b32 v8, s9
v_mov_b32 v9, {L_FRDY}
s_mov_b64 exec, 1
ds_write_b128 v8, v[28:31] offset:{L_F}
ds_add_u32 v9, v14
v_mov_b32 v8, 0
""")
pub("v[24:27]", 8, 17)
A("s_mov_b64 exec, -1")
stamp(5)
A("""
s_cmp_eq_u32 s3, 1
s_cbranch_scc1 L_hg
s_cmp_eq_u32 s3, 2
s_cbranch_scc1 L_mo
s_cmp_eq_u32 s3, 3
s_cbranch_scc1 L_fin
s_branch L_stamp
""")
A.label("L_hg")
A(f"""
s_mul_i32 s8, s18, 28
v_and_b32 v152, 31, v2
v_min_u32 v152, 13, v152
v_lshl_add_u32 v152, v152, 1, s8
v_lshrrev_b32 v153, 6, v152
v_lshlrev_b32 v153, 9, v153
v_bfe_u32 v154, v152, 1, 1
v_lshl_add_u32 v153, v154, 8, v153
v_bfe_u32 v154, v152, 2, 1
v_lshl_add_u32 v153, v154, 7, v153
v_bfe_u32 v154, v152, 3, 3
v_lshl_add_u32 v153, v154, 4, v153
v_lshrrev_b32 v154, 5, v2
s_mov_b32 s8, 229376
v_mul_lo_u32 v154, v154, s8
v_add_u32 v153, v153, v154
s_mul_i32 s19, s6, 14336
s_add_u32 s19, s19, {WS_HP}
""")
G = 136
def hloads():
    for ks in range(4):
        A(f"s_add_u32 s8, s19, {ks*57344}")
        A(f"buffer_load_dwordx4 v[{G+4*ks}:{G+4*ks+3}], v153, s[52:55], s8 offen sc1")
poll_loop("h", hloads, [G + 4 * n for n in range(4)], 8, 9, cntreg=96)
for c in (0, 2):
    A(f"v_add_f32 v{G+c}, v{G+c}, v{G+4+c}\nv_add_f32 v{G+8+c}, v{G+8+c}, v{G+12+c}")
for c in (0, 2):
    A(f"v_add_f32 v{G+c}, v{G+c}, v{G+8+c}")
A(f"""
v_cvt_pk_bf16_f32 v156, v{G}, v{G+2}
v_mov_b32 v157, v156
v_permlane32_swap_b32 v156, v157
v_lshlrev_b32 v158, 16, v156
v_and_b32 v159, 0xffff0000, v156
v_lshlrev_b32 v160, 16, v157
v_and_b32 v161, 0xffff0000, v157
v_mul_f32 v162, 0xbfb8aa3b, v158
v_mul_f32 v163, 0xbfb8aa3b, v159
v_exp_f32 v162, v162
v_exp_f32 v163, v163
v_add_f32 v162, 1.0, v162
v_add_f32 v163, 1.0, v163
v_rcp_f32 v162, v162
v_rcp_f32 v163, v163
v_mul_f32 v162, v158, v162
v_mul_f32 v163, v159, v163
v_cvt_pk_bf16_f32 v162, v162, v163
v_lshlrev_b32 v163, 16, v162
v_and_b32 v162, 0xffff0000, v162
v_mul_f32 v163, v163, v160
v_mul_f32 v162, v162, v161
v_cvt_pk_bf16_f32 v162, v163, v162
v_and_b32 v164, 31, v2
v_cmp_gt_u32 vcc, 14, v164
v_cndmask_b32 v162, 0, v162, vcc
v_lshrrev_b32 v164, 2, v2
v_lshlrev_b32 v164, 5, v164
v_and_b32 v165, 3, v2
v_lshl_add_u32 v164, v165, 2, v164
v_cmp_gt_u32 vcc, 16, v2
s_and_saveexec_b64 s[20:21], vcc
ds_write_b32 v164, v162 offset:{L_H}
ds_write_b32 v164, v162 offset:{L_H+16}
s_mov_b64 exec, s[20:21]
v_mov_b32 v8, {L_HRDY}
v_mov_b32 v9, 1
ds_write_b32 v8, v9
""")
stamp(6)
A("s_branch L_stamp")
A.label("L_mo")
A(f"""
s_setprio 3
s_lshl_b32 s12, s6, 3
s_add_u32 s12, s12, s4
s_lshl_b32 s16, s12, 9
s_add_u32 s16, s16, {WS_ML}
s_lshl_b32 s12, s12, 15
s_lshl_b32 s8, s7, 12
s_add_u32 s12, s12, s8
s_add_u32 s12, s12, {WS_OP}
v_lshrrev_b32 v8, 5, v2
v_bfe_u32 v10, v2, 3, 2
v_lshlrev_b32 v8, 6, v8
v_lshl_add_u32 v152, v10, 4, v8
v_bfe_u32 v13, v2, 2, 3                  ; (l%32)/4
v_lshlrev_b32 v13, 5, v13
v_and_b32 v8, 3, v2
v_lshl_add_u32 v13, v8, 2, v13
v_mov_b32 v14, {L_OCR}
v_mov_b32 v15, 1
""")
GM = 136; GO = 16
def moloads():
    A("s_add_u32 s28, s12, s27\ns_add_u32 s29, s16, s27")
    for i in range(4):
        A(f"buffer_load_dwordx4 v[{GO+4*i}:{GO+4*i+3}], v7, s[52:55], s28 offen offset:{i*1024} sc1")
    for i in range(4):
        A(f"buffer_load_dwordx4 v[{GM+4*i}:{GM+4*i+3}], v152, s[52:55], s29 offen offset:{i*128} sc1")
lds_wait(L_OPUB, 4, 8, name="opub", sleep=1)
stamp(6)
A(f"s_mov_b32 s27, {D0}")
poll_loop("mo", moloads, [GO + 4 * i for i in range(4)] + [GM + 4 * i for i in range(4)], 153, 154, sleep=0, cntreg=96, fast=FAST)
stamp(7)
A(f"""
v_max_f32 v153, v{GM}, v{GM+4}
v_max3_f32 v153, v153, v{GM+8}, v{GM+12}
v_mov_b32 v154, v153
v_permlane32_swap_b32 v153, v154
v_max_f32 v153, v153, v154
""")
for i in range(4):
    A(f"v_sub_f32 v{GM+4*i}, v{GM+4*i}, v153")
for i in range(4):
    A(f"v_exp_f32 v{GM+4*i}, v{GM+4*i}")
A(f"""
v_mul_f32 v155, v{GM}, v{GM+2}
v_mul_f32 v161, v{GM}, v{GO}
v_mul_f32 v162, v{GM}, v{GO+2}
""")
for i in range(1, 4):
    A(f"v_fmac_f32 v155, v{GM+4*i}, v{GM+4*i+2}\nv_fmac_f32 v161, v{GM+4*i}, v{GO+4*i}\nv_fmac_f32 v162, v{GM+4*i}, v{GO+4*i+2}")
A(f"""
v_mov_b32 v156, v155
v_mov_b32 v163, v161
v_mov_b32 v164, v162
v_permlane32_swap_b32 v155, v156
v_permlane32_swap_b32 v161, v163
v_permlane32_swap_b32 v162, v164
v_add_f32 v155, v155, v156
v_add_f32 v161, v161, v163
v_add_f32 v162, v162, v164
v_rcp_f32 v155, v155
s_nop 0
v_mul_f32 v161, v161, v155
v_mul_f32 v162, v162, v155
v_cvt_pk_bf16_f32 v161, v161, v162
ds_write_b32 v13, v161 offset:{L_OC}
ds_write_b32 v13, v161 offset:{L_OC+16}
ds_write_b32 v14, v15
""")
stamp(8)
A("s_branch L_stamp")
A.label("L_fin")
A(f"""
s_setprio 3
s_load_dwordx2 s[44:45], s[0:1], 80
s_lshl_b32 s12, s6, 18
s_lshl_b32 s8, s18, 12
s_add_u32 s12, s12, s8
s_add_u32 s12, s12, {WS_FP}
s_mov_b32 s46, 4096
s_mov_b32 s47, 0x20000
s_lshr_b32 s8, s18, 4
s_lshl_b32 s8, s8, 8
s_and_b32 s9, s18, 3
s_lshl_b32 s9, s9, 6
s_add_u32 s8, s8, s9
s_bfe_u32 s9, s18, 0x20002
s_lshl_b32 s9, s9, 2
s_add_u32 s8, s8, s9
s_lshl_b32 s9, s6, 10
s_add_u32 s28, s8, s9
v_lshlrev_b32 v10, 4, v2
""")
lds_wait(L_OPUB, 8, 8, name="fpub", sleep=1)
if FDELAY: A(f"s_sleep {FDELAY}")
stamp(6)
GF = 16
def floads():
    for i in range(4):
        A(f"buffer_load_dwordx4 v[{GF+4*i}:{GF+4*i+3}], v7, s[52:55], s12 offen offset:{i*1024} sc1")
poll_loop("f", floads, [GF + 4 * i for i in range(4)], 8, 9, sleep=0, cntreg=96)
stamp(7)
for c in (0, 2):
    A(f"v_add_f32 v{GF+c}, v{GF+c}, v{GF+4+c}\nv_add_f32 v{GF+8+c}, v{GF+8+c}, v{GF+12+c}")
for c in (0, 2):
    A(f"v_add_f32 v{GF+c}, v{GF+c}, v{GF+8+c}")
for sh in (4, 8):
    for c in (0, 2):
        A(f"v_add_f32_dpp v{48+c}, v{GF+c}, v{GF+c} row_ror:{sh} row_mask:0xf bank_mask:0xf")
    for c in (0, 2):
        A(f"v_mov_b32 v{GF+c}, v{48+c}")
for sw in ("16", "32"):
    for c in (0, 2):
        A(f"v_mov_b32 v{48+c}, v{GF+c}")
    for c in (0, 2):
        A(f"v_permlane{sw}_swap_b32 v{GF+c}, v{48+c}")
    for c in (0, 2):
        A(f"v_add_f32 v{GF+c}, v{GF+c}, v{48+c}")
A(f"""
v_cvt_pk_bf16_f32 v8, v{GF}, v{GF+2}
v_cmp_gt_u32 vcc, 4, v2
s_waitcnt lgkmcnt(0)
s_and_saveexec_b64 s[20:21], vcc
buffer_store_dword v8, v10, s[44:47], s28 offen
s_mov_b64 exec, s[20:21]
s_cmp_eq_u32 s2, 0
s_cbranch_scc0 L_stamp
v_mov_b32 v8, s64
v_mov_b32 v9, {WS_E}
v_cmp_eq_u32 vcc, 0, v2
s_and_saveexec_b64 s[20:21], vcc
buffer_store_dword v8, v9, s[52:55], 0 offen
s_mov_b64 exec, s[20:21]
""")
A.label("L_stamp")
if STAMPS:
    A("s_memrealtime s[94:95]")
    if CLK: A("s_memtime s[92:93]")
    A("s_waitcnt lgkmcnt(0)")
    if CLK: A("s_sub_u32 s96, s92, s90")
    A(f"""
s_lshl_b32 s9, s2, 4
s_add_u32 s9, s9, s30
s_mul_i32 s9, s9, {NST*8}
s_add_u32 s9, s9, {STAMPOFF}
v_mov_b32 v4, 0
s_mov_b64 exec, 1
""")
    if CLK: A("s_mov_b64 s[90:91], 0\ns_mov_b64 s[92:93], 0")
    for k in range(0, NST, 2):
        A(f"v_mov_b32 v10, s{70+2*k}\nv_mov_b32 v11, s{71+2*k}\nv_mov_b32 v12, s{72+2*k}\nv_mov_b32 v13, s{73+2*k}")
        A(f"buffer_store_dwordx4 v[10:13], v4, s[52:55], s9 offen offset:{k*8}")
        A("s_nop 1")
A.label("L_end")
body = A.text()
if STAMPS:
    z = "".join(f"    s_mov_b64 s[{70+2*k}:{71+2*k}], 0\n" for k in range(NST))
    body = z + body
body = hazard.fix(body, verbose=True)
open(sys.argv[1], "w").write(wrap(body, 256, 768, LDS_BYTES, 168, 102))
```

```python
import sys
from asmgen import *
import hazard

opt = dict(a.split("=") for a in sys.argv[2:])
def O(name, default): return type(default)(opt.get(name, default)) if not isinstance(default, bool) else opt.get(name, "1" if default else "0") == "1"
STAMPS = O("stamps", False)
MIMIC = O("mimic", True)
NT = O("nt", True)
NTW = O("ntw", True)
NTO = O("nto", False)
QPOS = O("qpos", 8)
SPINMAX = O("spinmax", 20000)
FAST = O("fast", True)
FDELAY = O("fdelay", 0)
CLK = O("clk", False)
ROT = O("rot", True)
FINE = O("fine", True)
KVROT = O("kvrot", True)
OGATE = O("ogate", 0)
HEARLY = O("hearly", True)
OTH = O("oth", 0)
ntf = " nt" if NT else ""
ntw = " nt" if NTW else ""
nto = " nt" if NTO else ""

WS_E   = 0
WS_QP  = 0x10000
WS_HP  = 0x100000
WS_ML  = 0x180000
WS_OP  = 0x200000
WS_FP  = 0x300000
FASTD  = 0x400000
WS_SIZE = 268435456
STAMPOFF = 0x8000000
NST = 14
L_TAG = 0
L_QRDY = 8
L_HRDY = 12
L_VISS = 16
L_MLC = 20
L_FRDY = 24
L_OWC = 28
L_OCR = 32
L_GRDY = 36
L_OPUB = 40
L_PRDY = 48
L_Q = 0x100
L_ML = 0x500
L_F = 0x580
L_H = 0x600
L_G = 0x680
L_OC = 0x700
L_OW = 0x800
L_P = 0x2800
LDS_BYTES = 0x4800

A = Asm()
def stamp(k):
    if STAMPS: A(f"s_memrealtime s[{70+2*k}:{71+2*k}]")
def srd_consts(d, size):
    A(f"s_mov_b32 s{d+2}, {size}\ns_mov_b32 s{d+3}, 0x20000")

def lds_wait(addr, val, vt, name="w", sleep=1, addr_is_vreg=None):
    L = A.newlabel("Lw_" + name); Ld = A.newlabel("Lwd_" + name)
    if addr_is_vreg is None:
        A(f"v_mov_b32 v{vt+1}, {addr}"); av = vt + 1
    else: av = addr_is_vreg
    A(f"s_mov_b32 s15, 0")
    A.label(L)
    A(f"""
ds_read_b32 v{vt}, v{av}
s_waitcnt lgkmcnt(0)
v_readfirstlane_b32 s14, v{vt}
s_add_u32 s15, s15, 1
s_cmp_ge_u32 s14, {val}
s_cbranch_scc1 {Ld}
s_cmp_lt_u32 s15, {SPINMAX*16}
""" + (f"s_sleep {sleep}\n" if sleep else "") + f"s_cbranch_scc1 {L}")
    A.label(Ld)

def get_tag(vt):
    L = A.newlabel("Ltag"); Ld = A.newlabel("Ltagd")
    A(f"v_mov_b32 v{vt+2}, {L_TAG}\ns_mov_b32 s15, 0")
    A.label(L)
    A(f"""
ds_read_b64 v[{vt}:{vt+1}], v{vt+2}
s_waitcnt lgkmcnt(0)
v_readfirstlane_b32 s14, v{vt+1}
v_readfirstlane_b32 s64, v{vt}
s_add_u32 s15, s15, 1
s_cmp_eq_u32 s14, 1
s_cbranch_scc1 {Ld}
s_cmp_lt_u32 s15, {SPINMAX*16}
s_sleep 1
s_cbranch_scc1 {L}
""")
    A.label(Ld)

def Pj(raw, j, t, npair=4):
    k = j // 2; sel = "s66" if j % 2 == 0 else "s67"
    for p in range(npair):
        A(f"v_perm_b32 v{t+p}, v{raw+(2*p+1)*4+k}, v{raw+(2*p)*4+k}, {sel}")

def transpose_mfma(raw, acc, aop, tmp, first):
    def P(j): Pj(raw, j, tmp + 4 * (j % 3))
    def M(j):
        t = tmp + 4 * (j % 3)
        c = "0" if first else f"v[{acc+4*j}:{acc+4*j+3}]"
        A(f"v_mfma_f32_16x16x32_bf16 v[{acc+4*j}:{acc+4*j+3}], v[{aop}:{aop+3}], v[{t}:{t+3}], {c}")
    P(0); P(1); M(0)
    for j in range(2, 8):
        P(j); M(j - 1)
    M(7)

def transpose_only(raw, dst):
    for j in range(8): Pj(raw, j, dst + 4 * j)

def tagcheck(regs, vmin, vmax):
    first = True
    for r in regs:
        if first:
            A(f"v_min_u32 v{vmin}, v{r+1}, v{r+3}\nv_max_u32 v{vmax}, v{r+1}, v{r+3}"); first = False
        else:
            A(f"v_min3_u32 v{vmin}, v{vmin}, v{r+1}, v{r+3}\nv_max3_u32 v{vmax}, v{vmax}, v{r+1}, v{r+3}")
    A(f"v_xor_b32 v{vmin}, s64, v{vmin}\nv_xor_b32 v{vmax}, s64, v{vmax}\nv_or_b32 v{vmin}, v{vmin}, v{vmax}\nv_cmp_ne_u32 vcc, 0, v{vmin}")

def poll_loop(name, emit_loads, regs, vmin, vmax, sleep=2, cntreg=None, preissued=None, fast=False):
    L = A.newlabel("Lp_" + name); Ld = A.newlabel("Lpd_" + name); Lc = A.newlabel("Lpc_" + name)
    A("s_mov_b32 s15, 0")
    if preissued is not None:
        A(f"s_waitcnt vmcnt({preissued})")
        A(f"s_branch {Lc}")
    A.label(L)
    if fast:
        A(f"s_and_b32 s14, s15, 3\ns_cmp_eq_u32 s14, 3\ns_cselect_b32 s27, 0, {FASTD}")
    emit_loads()
    A("s_waitcnt vmcnt(0)")
    A.label(Lc)
    tagcheck(regs, vmin, vmax)
    A(f"""
s_add_u32 s15, s15, 1
s_cbranch_vccz {Ld}
s_cmp_lt_u32 s15, {SPINMAX}
""" + (f"s_sleep {sleep}\n" if sleep else "") + f"s_cbranch_scc1 {L}")
    A.label(Ld)
    if cntreg is not None: A(f"s_mov_b32 s{cntreg}, s15")

def pub(regs, voff, soff, off=0, fast=True):
    o = f" offset:{off}" if off else ""
    if fast and FAST:
        A(f"s_add_u32 s29, s{soff}, {FASTD}")
        A(f"buffer_store_dwordx4 {regs}, v{voff}, s[52:55], s29 offen{o}")
    A(f"buffer_store_dwordx4 {regs}, v{voff}, s[52:55], s{soff} offen{o} sc1")

D0 = FASTD if FAST else 0
def tile_off(t):
    if KVROT:
        A(f"s_add_u32 s10, s7, {t}\ns_and_b32 s10, s10, 3\ns_lshl_b32 s10, s10, 12\ns_add_u32 s10, s10, s8")
    else:
        A(f"s_add_u32 s10, s8, {t*4096}")
A("""
s_cmp_ge_u32 s2, 256
s_cbranch_scc1 L_end
v_lshrrev_b32 v1, 6, v0
v_and_b32 v2, 63, v0
v_readfirstlane_b32 s3, v1
s_and_b32 s4, s2, 7
s_lshr_b32 s5, s2, 3                     ; r
s_lshr_b32 s6, s5, 3                     ; b
s_and_b32 s7, s5, 7                      ; s (split)
s_lshl_b32 s18, s4, 3
s_add_u32 s18, s18, s7                   ; j = x*8 + s
s_mov_b32 s66, 0x05040100
s_mov_b32 s67, 0x07060302
s_load_dwordx2 s[52:53], s[0:1], 96      ; ws
""")
stamp(0)
if CLK: A("s_memtime s[90:91]")
srd_consts(52, WS_SIZE)
A("""
s_mov_b32 s30, s3
s_cmp_lt_u32 s3, 4
s_cbranch_scc1 L_K
s_cmp_ge_u32 s3, 8
s_cbranch_scc1 L_O
s_load_dwordx2 s[40:41], s[0:1], 16      ; V
s_sub_u32 s3, s3, 4                      ; a
s_cmp_ge_u32 s3, 2
s_cbranch_scc1 L_V23
""")
A("s_load_dwordx2 s[48:49], s[0:1], 0")
A("s_setprio 3")
A("""
s_cmp_eq_u32 s3, 0
s_cbranch_scc0 L_W1setup
s_load_dwordx2 s[44:45], s[0:1], 24
s_mov_b32 s46, 4194304
s_movk_i32 s10, 8192
s_lshl_b32 s9, s6, 20
s_lshl_b32 s11, s7, 7
s_add_u32 s9, s9, s11
s_lshl_b32 s11, s4, 10
s_add_u32 s9, s9, s11
s_lshl_b32 s11, s6, 8
s_lshl_b32 s12, s4, 16
s_lshl_b32 s13, s6, 12
s_add_u32 s12, s12, s13
s_lshl_b32 s13, s7, 9
s_add_u32 s12, s12, s13
""" + f"""
s_add_u32 s12, s12, {WS_QP}
s_movk_i32 s13, 16384
s_movk_i32 s16, 256
s_branch L_prod
""")
A.label("L_W1setup")
A(f"""
s_and_b32 s8, s2, 1
s_cmp_eq_u32 s8, 0
s_cbranch_scc0 L_W1b
s_load_dwordx2 s[44:45], s[0:1], 48
s_branch L_W1c
""")
A.label("L_W1b")
A("s_load_dwordx2 s[44:45], s[0:1], 56")
A.label("L_W1c")
A(f"""
s_mov_b32 s46, 1835008
s_movk_i32 s10, 3584
s_lshr_b32 s9, s2, 1
s_mul_i32 s11, s9, 2341
s_lshr_b32 s11, s11, 16
s_mul_i32 s12, s11, 28
s_sub_u32 s12, s9, s12
s_mul_i32 s9, s11, {128*3584}
s_lshl_b32 s13, s12, 7
s_add_u32 s9, s9, s13
s_mul_i32 s13, s8, 229376
s_lshl_b32 s12, s12, 9
s_add_u32 s12, s12, s13
s_mul_i32 s13, s11, 57344
s_add_u32 s12, s12, s13
s_add_u32 s12, s12, {WS_HP}
s_movk_i32 s13, 14336
s_lshl_b32 s11, s11, 8
s_movk_i32 s16, 224
""")
A.label("L_prod")
srd_consts(48, 4096)
A(f"""
s_mov_b32 s47, 0x20000
v_lshrrev_b32 v3, 3, v2
v_and_b32 v4, 7, v2
v_lshlrev_b32 v4, 4, v4
s_lshl_b32 s8, s10, 3
v_mul_lo_u32 v5, v3, s8
v_add_u32 v5, v5, v4
v_and_b32 v6, 15, v2
v_lshrrev_b32 v7, 2, v6
v_lshlrev_b32 v7, 10, v7
v_and_b32 v8, 1, v2
v_lshrrev_b32 v9, 4, v2
v_lshl_add_u32 v8, v9, 1, v8
v_lshl_add_u32 v7, v8, 4, v7
v_mul_lo_u32 v10, v9, s13
v_lshl_add_u32 v10, v6, 4, v10
v_cmp_le_u32 s[68:69], 8, v6
s_mul_i32 s17, s10, 57
s_cmp_ge_u32 s2, s16
s_waitcnt lgkmcnt(0)
s_cbranch_scc1 L_prod_skip
""")
XA = 80
RAW = 16
A(f"buffer_load_dwordx4 v[{XA}:{XA+3}], v7, s[48:51], s11 offen")
A(f"buffer_load_dwordx4 v[{XA+4}:{XA+7}], v7, s[48:51], s11 offen offset:128")
A("s_mov_b32 s14, s9")
for e in range(2):
    for i in range(8):
        r = RAW + (e * 8 + i) * 4
        A(f"buffer_load_dwordx4 v[{r}:{r+3}], v5, s[44:47], s14 offen{ntw}")
        if not (e == 1 and i == 7):
            A("s_add_u32 s14, s14, s17" if i == 7 else "s_add_u32 s14, s14, s10")
A(f"s_load_dword s65, s[52:53], {WS_E}")
A("s_barrier")
A(f"""
s_cmp_eq_u32 s3, 0
s_cbranch_scc0 L_prod_notag
s_waitcnt lgkmcnt(0)
s_mul_i32 s64, s65, 0x9E3779B1
s_add_u32 s64, s64, 0x7F4A7C15
v_mov_b32 v96, s64
v_mov_b32 v97, 1
v_mov_b32 v98, {L_TAG}
ds_write_b64 v98, v[96:97]
s_branch L_prod_havetag
""")
A.label("L_prod_notag")
get_tag(96)
A.label("L_prod_havetag")
PUB = 88
for k in range(4):
    A(f"v_mov_b32 v{PUB+2*k+1}, s64")
stamp(1)
ACC = 112; TMP = 96
A("s_waitcnt vmcnt(8)")
transpose_mfma(RAW, ACC, XA, TMP, True)
A("s_waitcnt vmcnt(0)")
transpose_mfma(RAW + 32, ACC, XA + 4, TMP, False)
for k in range(4):
    A(f"v_cndmask_b32 v{144+k}, v{ACC+4*k+0}, v{ACC+4*(4+k)+1}, s[68:69]")
    A(f"v_cndmask_b32 v{148+k}, v{ACC+4*(4+k)+0}, v{ACC+4*k+1}, s[68:69]")
for k in range(4):
    A(f"v_add_f32_dpp v{PUB+2*k}, v{148+k}, v{144+k} row_ror:8 row_mask:0xf bank_mask:0xf")
if FAST:
    A(f"s_cmp_eq_u32 s3, 0\ns_cbranch_scc0 L_nofastq\ns_add_u32 s29, s12, {FASTD}")
    A(f"buffer_store_dwordx4 v[{PUB}:{PUB+3}], v10, s[52:55], s29 offen")
    A(f"buffer_store_dwordx4 v[{PUB+4}:{PUB+7}], v10, s[52:55], s29 offen offset:256")
    A.label("L_nofastq")
A(f"buffer_store_dwordx4 v[{PUB}:{PUB+3}], v10, s[52:55], s12 offen sc1")
A(f"buffer_store_dwordx4 v[{PUB+4}:{PUB+7}], v10, s[52:55], s12 offen offset:256 sc1")
stamp(2)
A("s_branch L_V")
A.label("L_prod_skip")
A("s_barrier\ns_branch L_V")
A.label("L_V23")
A("""
s_cmp_eq_u32 s3, 3
s_cbranch_scc1 L_W3
s_barrier
s_branch L_V
""")
A.label("L_W3")
A(f"""
s_load_dwordx2 s[48:49], s[0:1], 0       ; x
s_load_dwordx2 s[44:45], s[0:1], 72      ; gate_w
s_setprio 3
v_mov_b32 v4, 0
v_mov_b32 v5, 0
v_mov_b32 v6, 0
v_mov_b32 v7, 0
v_mov_b32 v8, 0
ds_write_b128 v8, v[4:7]
ds_write_b128 v8, v[4:7] offset:16
ds_write_b128 v8, v[4:7] offset:32
ds_write_b128 v8, v[4:7] offset:48
s_mov_b32 s50, 4096
s_mov_b32 s51, 0x20000
s_mov_b32 s46, 1024
s_mov_b32 s47, 0x20000
v_and_b32 v4, 31, v2
v_lshlrev_b32 v4, 5, v4                  ; (l%32)*32 B : gate_w offset
v_lshrrev_b32 v5, 5, v2                  ; bb
v_lshl_add_u32 v3, v5, 10, v4
s_lshr_b32 s8, s6, 1
s_lshl_b32 s8, s8, 11                    ; 2bp*1024
s_waitcnt lgkmcnt(0)
buffer_load_dwordx4 v[16:19], v3, s[48:51], s8 offen
buffer_load_dwordx4 v[20:23], v3, s[48:51], s8 offen offset:16
buffer_load_dwordx4 v[24:27], v4, s[44:47], 0 offen
buffer_load_dwordx4 v[28:31], v4, s[44:47], 0 offen offset:16
s_barrier
s_waitcnt vmcnt(0)
v_mov_b32 v44, 0
v_mov_b32 v43, 0
s_mov_b32 s22, 0xffff0000
""")
for k in range(8):
    A(f"""
v_lshlrev_b32 v32, 16, v{16+k}
v_and_b32 v33, s22, v{16+k}
v_lshlrev_b32 v34, 16, v{24+k}
v_and_b32 v35, s22, v{24+k}
v_mul_f32 v32, v32, v34
v_mul_f32 v33, v33, v35
v_cvt_pk_bf16_f32 v36, v32, v33
v_lshlrev_b32 v37, 16, v36
v_and_b32 v38, s22, v36
v_add_f32 v44, v44, v37
v_add_f32 v43, v43, v38
""")
A("v_add_f32 v44, v44, v43")
for sh in (1, 2, 4, 8):
    A(f"v_add_f32_dpp v45, v44, v44 row_ror:{sh} row_mask:0xf bank_mask:0xf\nv_mov_b32 v44, v45")
A("""
v_mov_b32 v45, v44
v_permlane16_swap_b32 v44, v45
v_add_f32 v44, v44, v45
v_cvt_pk_bf16_f32 v44, v44, v44
v_lshlrev_b32 v44, 16, v44
v_mul_f32 v45, 0xbfb8aa3b, v44
v_exp_f32 v45, v45
v_add_f32 v45, 1.0, v45
v_rcp_f32 v45, v45
v_cvt_pk_bf16_f32 v45, v45, v45
v_lshlrev_b32 v46, 16, v45
v_sub_f32 v47, 1.0, v46
v_cvt_pk_bf16_f32 v47, v47, v47
v_lshlrev_b32 v47, 16, v47
""" + f"""
v_lshlrev_b32 v4, 3, v5                  ; bb*8
ds_write_b64 v4, v[46:47] offset:{L_G}
v_mov_b32 v5, {L_GRDY}
v_mov_b32 v6, 1
ds_write_b32 v5, v6
""")
stamp(2)
A.label("L_V")
VR = 16; ACC = 112; TMP = 96; PB = 144
A("s_setprio 1")
A(f"""
s_waitcnt lgkmcnt(0)
s_mov_b32 s48, s40
s_mov_b32 s49, s41
s_mov_b32 s50, 67108864
s_mov_b32 s51, 0x20000
s_lshl_b32 s8, s6, 3
s_add_u32 s8, s8, s4                     ; b*8+x
s_lshl_b32 s8, s8, 21
s_add_u32 s8, s8, 0x180000
s_lshl_b32 s9, s7, 16
s_add_u32 s8, s8, s9
s_lshl_b32 s9, s3, 14
s_add_u32 s8, s8, s9                     ; V base
v_and_b32 v3, 15, v2
v_lshrrev_b32 v4, 4, v2
v_lshlrev_b32 v6, 10, v4
v_lshl_add_u32 v6, v3, 4, v6             ; voffV
""")
reg = VR
for u in range(2):
    for hi in range(2):
        tile_off(2*u+hi)
        for i4 in range(4):
            A(f"buffer_load_dwordx4 v[{reg}:{reg+3}], v6, s[48:51], s10 offen offset:{i4*256}{ntf}")
            reg += 4
def viss_inc():
    A(f"v_mov_b32 v8, {L_VISS}\ns_mov_b64 exec, 1\nds_add_u32 v8, v14\ns_mov_b64 exec, -1")
A("v_mov_b32 v14, 1")
if OGATE == 0: viss_inc()
A("s_setprio 2")
stamp(3)
get_tag(8)
A(f"""
s_lshl_b32 s16, s4, 1
s_lshr_b32 s13, s6, 1
s_add_u32 s16, s16, s13                  ; x*2+bp
s_lshl_b32 s16, s16, 16                  ; *8*8192
s_and_b32 s13, s6, 1
s_lshl_b32 s13, s13, 12
s_add_u32 s16, s16, s13
s_lshl_b32 s13, s7, 9
s_add_u32 s16, s16, s13
s_lshl_b32 s13, s3, 7
s_add_u32 s16, s16, s13
s_add_u32 s16, s16, {WS_OP}
s_lshl_b32 s9, s3, 11
v_lshlrev_b32 v10, 4, v3
v_add_u32 v10, s9, v10
v_and_b32 v11, 3, v2
v_lshlrev_b32 v11, 9, v11
v_lshrrev_b32 v9, 2, v2
v_lshl_add_u32 v11, v9, 4, v11
s_lshl_b32 s9, s3, 2
s_add_u32 s9, s9, {L_OW}
v_add_u32 v11, s9, v11
v_lshrrev_b32 v12, 3, v2
v_lshlrev_b32 v12, 13, v12
v_and_b32 v9, 7, v2
v_lshl_add_u32 v12, v9, 4, v12
v_mov_b32 v153, s64
v_mov_b32 v155, s64
v_mov_b32 v13, {L_OWC}
s_lshl_b32 s9, s3, 2
s_add_u32 s9, s9, {L_PRDY}
v_mov_b32 v15, s9
s_lshl_b32 s9, s3, 11
v_lshlrev_b32 v5, 4, v2
v_add_u32 v5, s9, v5
s_lshl_b32 s9, s3, 4
v_mov_b32 v7, s9
""")
if OGATE == 1:
    A("s_waitcnt vmcnt(8)"); viss_inc()
if OGATE == 2:
    A("s_waitcnt vmcnt(0)"); viss_inc()
lds_wait(None, 1, 8, name="prdy", sleep=1, addr_is_vreg=15)
A(f"""
ds_read_b128 v[{PB}:{PB+3}], v5 offset:{L_P}
ds_read_b128 v[{PB+4}:{PB+7}], v5 offset:{L_P+1024}
""")
stamp(5)
A("s_waitcnt vmcnt(8) lgkmcnt(0)")
transpose_mfma(VR, ACC, PB, TMP, True)
lds_wait(L_FRDY, 4, 8, name="frdy", sleep=0)
A(f"ds_read_b128 v[156:159], v7 offset:{L_F}")
if FINE:
    T1 = 64 if False else 120 + 40
    T1 = 16
    for p in range(4):
        A(f"s_waitcnt vmcnt({6-2*p})")
        for j in range(8):
            k = j // 2; sel = "s66" if j % 2 == 0 else "s67"
            A(f"v_perm_b32 v{T1+4*j+p}, v{VR+32+(2*p+1)*4+k}, v{VR+32+(2*p)*4+k}, {sel}")
    stamp(6)
    for j in range(8):
        A(f"v_mfma_f32_16x16x32_bf16 v[{ACC+4*j}:{ACC+4*j+3}], v[{PB+4}:{PB+7}], v[{T1+4*j}:{T1+4*j+3}], v[{ACC+4*j}:{ACC+4*j+3}]")
else:
    A("s_waitcnt vmcnt(0)")
    stamp(6)
    transpose_mfma(VR + 32, ACC, PB + 4, TMP, False)
A("s_mov_b64 exec, 0xffff")
for j in range(8):
    A(f"ds_write_b128 v10, v[{ACC+4*j}:{ACC+4*j+3}] offset:{L_OW+j*256}")
A(f"""
ds_add_u32 v13, v14
s_mov_b64 exec, -1
""")
lds_wait(L_OWC, 64, 8, name="owc", sleep=0)
for w in range(4):
    A(f"ds_read2st64_b32 v[{16+2*w}:{17+2*w}], v11 offset0:{w*8} offset1:{w*8+1}")
A(f"""
s_waitcnt lgkmcnt(0)
v_mul_f32 v152, v16, v156
v_mul_f32 v154, v17, v156
v_fmac_f32 v152, v18, v157
v_fmac_f32 v154, v19, v157
v_fmac_f32 v152, v20, v158
v_fmac_f32 v154, v21, v158
v_fmac_f32 v152, v22, v159
v_fmac_f32 v154, v23, v159
""")
pub("v[152:155]", 12, 16)
A(f"v_mov_b32 v8, {L_OPUB}\ns_mov_b64 exec, 1\nds_add_u32 v8, v14\ns_mov_b64 exec, -1")
stamp(7)
A("s_branch L_stamp")
A.label("L_O")
RW2 = 16; R0 = 32; TH = 64; TO = 80; ACC = 112; AH = 144; AO = 148
A(f"""
s_load_dwordx2 s[56:57], s[0:1], 32      ; wo
s_load_dwordx2 s[60:61], s[0:1], 64      ; w2
s_sub_u32 s3, s3, 8                      ; cw
s_mov_b32 s58, 4194304
s_mov_b32 s59, 0x20000
s_mov_b32 s62, 1835008
s_mov_b32 s63, 0x20000
v_lshrrev_b32 v4, 4, v2                  ; g
v_bfe_u32 v3, v2, 3, 1                   ; sub'
v_and_b32 v8, 7, v2
v_lshlrev_b32 v8, 4, v8                  ; c*16
v_lshlrev_b32 v5, 17, v4
v_lshl_add_u32 v5, v3, 13, v5
v_add_u32 v5, v5, v8                     ; voffO
v_lshrrev_b32 v6, 3, v2
v_lshlrev_b32 v6, 12, v6
v_add_u32 v6, v6, v8                     ; voffW2
s_and_b32 s8, s6, 1                      ; ch
s_lshl_b32 s10, s8, 9
s_lshl_b32 s9, s3, 7
s_add_u32 s10, s10, s9
s_lshl_b32 s9, s4, 19
s_lshl_b32 s11, s7, 14
s_add_u32 s9, s9, s11
s_add_u32 s9, s9, s10
s_mul_i32 s11, s18, {28*1024}
s_add_u32 s11, s11, s10                  ; w2 base
s_lshr_b32 s17, s6, 1
s_lshl_b32 s17, s17, 7
s_lshl_b32 s13, s8, 5
s_add_u32 s17, s17, s13
s_lshl_b32 s13, s3, 3
s_add_u32 s17, s17, s13
s_lshl_b32 s17, s17, 12
s_lshl_b32 s13, s18, 6
s_add_u32 s17, s17, s13
s_add_u32 s17, s17, {WS_FP}
v_bfe_u32 v9, v2, 2, 1
v_and_b32 v11, 1, v2
v_lshl_add_u32 v11, v4, 1, v11           ; 2g+sub
v_lshlrev_b32 v7, 7, v9
v_lshl_add_u32 v7, v11, 4, v7
v_lshlrev_b32 v12, 6, v9
v_lshl_add_u32 v15, v11, 3, v12
v_cmp_eq_u32 s[20:21], 1, v3
v_cmp_le_u32 s[22:23], 32, v2            ; e = l/32
s_barrier
""")
lds_wait(L_VISS, 4, 8, name="viss", sleep=2)
stamp(3)
oc = 0
for i in range(4):
    if OTH and oc >= OTH: A(f"s_waitcnt vmcnt({OTH-1})")
    A(f"buffer_load_dwordx4 v[{RW2+4*i}:{RW2+4*i+3}], v6, s[60:63], s11 offen offset:{i*1024}{nto}"); oc += 1
A("s_add_u32 s12, s9, 4096")
for i in range(8):
    if OTH and oc >= OTH: A(f"s_waitcnt vmcnt({OTH-1})")
    A(f"buffer_load_dwordx4 v[{R0+4*i}:{R0+4*i+3}], v5, s[56:59], {'s9' if i < 4 else 's12'} offen offset:{(i%4)*1024}{nto}"); oc += 1
A("s_setprio 2")
stamp(4)
get_tag(8)
A(f"""
; FP voff = ((l/16)%2)*262144 + (e*4 + half*2 + q)*4096 + t*16
v_bfe_u32 v8, v2, 4, 1
v_lshlrev_b32 v10, 18, v8
v_lshrrev_b32 v9, 5, v2
v_lshl_add_u32 v10, v9, 14, v10
v_bfe_u32 v9, v2, 3, 1
v_lshl_add_u32 v10, v9, 13, v10
v_bfe_u32 v9, v2, 2, 1
v_lshl_add_u32 v10, v9, 12, v10
v_and_b32 v9, 3, v2
v_lshl_add_u32 v10, v9, 4, v10
v_lshlrev_b32 v11, 3, v8                 ; G addr = bb(u%2)*8
v_mov_b32 v161, s64
v_mov_b32 v163, s64
""")
lds_wait(L_HRDY, 1, 8, name="hrdy")
A(f"ds_read_b64 v[{AH}:{AH+1}], v15 offset:{L_H}")
lds_wait(L_GRDY, 1, 8, name="grdy")
A(f"""
ds_read_b64 v[12:13], v11 offset:{L_G}
s_waitcnt lgkmcnt(0)
s_waitcnt vmcnt(8)
""")
for j in range(8): Pj(RW2, j, TH + 2 * j, npair=2)
for j in range(8):
    A(f"v_mfma_f32_16x16x16_bf16 v[{ACC+4*j}:{ACC+4*j+3}], v[{AH}:{AH+1}], v[{TH+2*j}:{TH+2*j+1}], 0")
def reduce2(d0, d1):
    for k in range(4):
        A(f"v_cndmask_b32 v{152+k}, v{ACC+4*k+0}, v{ACC+4*(4+k)+1}, s[20:21]")
        A(f"v_cndmask_b32 v{156+k}, v{ACC+4*(4+k)+0}, v{ACC+4*k+1}, s[20:21]")
    A(f"v_cndmask_b32 v152, v152, v154, s[22:23]\nv_cndmask_b32 v153, v153, v155, s[22:23]")
    A(f"v_cndmask_b32 v156, v156, v158, s[22:23]\nv_cndmask_b32 v157, v157, v159, s[22:23]")
    A(f"v_add_f32_dpp v{d0}, v156, v152 row_ror:8 row_mask:0xf bank_mask:0xf")
    A(f"v_add_f32_dpp v{d1}, v157, v153 row_ror:8 row_mask:0xf bank_mask:0xf")
A("s_waitcnt vmcnt(0)")
for j in range(8): Pj(R0, j, TO + 4 * j)
reduce2(14, 15)
A("v_mul_f32 v14, v14, v13\nv_mul_f32 v15, v15, v13")
A(f"v_mov_b32 v11, {L_OPUB}\nv_mov_b32 v6, 1")
stamp(8)
lds_wait(L_OCR, 2, 8, name="ocr", sleep=0)
A(f"""
ds_read_b128 v[{AO}:{AO+3}], v7 offset:{L_OC}
s_waitcnt lgkmcnt(0)
""")
for j in range(8):
    A(f"v_mfma_f32_16x16x32_bf16 v[{ACC+4*j}:{ACC+4*j+3}], v[{AO}:{AO+3}], v[{TO+4*j}:{TO+4*j+3}], 0")
reduce2(160, 162)
A(f"""
v_fma_f32 v160, v160, v12, v14
v_fma_f32 v162, v162, v12, v15
buffer_store_dwordx4 v[160:163], v10, s[52:55], s17 offen sc1
s_mov_b64 exec, 1
ds_add_u32 v11, v6
s_mov_b64 exec, -1
""")
stamp(9)
A("s_branch L_stamp")
A.label("L_K")
A(f"""
s_load_dwordx2 s[44:45], s[0:1], 8       ; K
s_setprio 2
""")
srd_consts(44, 67108864)
A(f"""
s_lshl_b32 s8, s6, 3
s_add_u32 s8, s8, s4                     ; b*8+x
s_lshl_b32 s17, s8, 9
s_lshl_b32 s8, s8, 21
s_add_u32 s8, s8, 0x180000
s_lshl_b32 s9, s7, 16
s_add_u32 s8, s8, s9
s_lshl_b32 s9, s3, 14
s_add_u32 s8, s8, s9                     ; K base
s_lshl_b32 s13, s7, 6
s_add_u32 s17, s17, s13
s_lshl_b32 s13, s3, 4
s_add_u32 s17, s17, s13
s_add_u32 s17, s17, {WS_ML}
s_lshl_b32 s12, s4, 2
s_add_u32 s12, s12, s6
s_lshl_b32 s12, s12, 14
s_lshl_b32 s13, s3, 10
s_add_u32 s12, s12, s13
s_add_u32 s12, s12, {WS_QP}
s_mov_b32 s27, {D0}
v_and_b32 v3, 15, v2
v_lshrrev_b32 v4, 4, v2
v_lshlrev_b32 v5, 8, v3
v_lshl_add_u32 v5, v4, 4, v5             ; voffK
v_lshlrev_b32 v7, 4, v2                  ; l*16
s_waitcnt lgkmcnt(0)
s_barrier
""")
KR = 16; QB = 80; S = 96; PB = 128; QG = 112
reg = KR
for t in range(4):
    tile_off(t)
    for i in range(4):
        A(f"buffer_load_dwordx4 v[{reg}:{reg+3}], v5, s[44:47], s10 offen offset:{i*64}{ntf}")
        reg += 4
stamp(1)
def qloads():
    A("s_add_u32 s28, s12, s27")
    for ks in range(4):
        A(f"s_add_u32 s13, s28, {ks*4096}")
        A(f"buffer_load_dwordx4 v[{QG+4*ks}:{QG+4*ks+3}], v7, s[52:55], s13 offen sc1")
get_tag(8)
A(f"""
v_lshrrev_b32 v10, 5, v2
v_lshlrev_b32 v10, 7, v10
v_and_b32 v11, 7, v2
v_lshl_add_u32 v10, v11, 4, v10
v_bfe_u32 v11, v2, 3, 1
v_lshl_add_u32 v10, v11, 3, v10
v_bfe_u32 v11, v2, 4, 1
v_lshl_add_u32 v10, v11, 2, v10
s_lshl_b32 s9, s3, 8
v_add_u32 v10, s9, v10
v_and_b32 v8, 3, v2
v_lshlrev_b32 v9, 8, v8
v_lshl_add_u32 v15, v4, 4, v9
v_mov_b32 v14, 1
s_lshl_b32 s9, s3, 11
v_add_u32 v6, s9, v7
s_lshl_b32 s9, s3, 5
v_lshl_add_u32 v12, v8, 3, s9
s_lshl_b32 s9, s3, 2
s_add_u32 s9, s9, {L_PRDY}
v_mov_b32 v11, s9
""")
A(f"s_waitcnt vmcnt({QPOS})")
stamp(2)
qloads()
poll_loop("q", qloads, [QG + 4 * n for n in range(4)], 8, 9, sleep=1, cntreg=96, preissued=0, fast=FAST)
NS = 2 if FAST else 1
G = 136
def haddr():
    A(f"""
    s_mul_i32 s8, s18, 28
    v_and_b32 v152, 15, v2
    v_min_u32 v152, 13, v152
    v_lshl_add_u32 v152, v152, 1, s8
    v_lshrrev_b32 v153, 6, v152
    v_lshlrev_b32 v153, 9, v153
    v_bfe_u32 v154, v152, 1, 1
    v_lshl_add_u32 v153, v154, 8, v153
    v_bfe_u32 v154, v152, 2, 1
    v_lshl_add_u32 v153, v154, 7, v153
    v_bfe_u32 v154, v152, 3, 3
    v_lshl_add_u32 v153, v154, 4, v153
    v_lshrrev_b32 v154, 5, v2
    s_mov_b32 s8, 229376
    v_mul_lo_u32 v154, v154, s8
    v_add_u32 v153, v153, v154
    v_bfe_u32 v154, v2, 4, 1                 ; bb
    s_movk_i32 s8, 14336
    v_mul_lo_u32 v154, v154, s8
    v_add_u32 v153, v153, v154
    s_and_b32 s19, s6, 2                     ; 2bp
    s_mul_i32 s19, s19, 14336
    s_add_u32 s19, s19, {WS_HP}
    """)
def hloads():
    for ks in range(4):
        A(f"s_add_u32 s8, s19, {ks*57344}")
        A(f"buffer_load_dwordx4 v[{G+4*ks}:{G+4*ks+3}], v153, s[52:55], s8 offen sc1")
stamp(3)
if HEARLY:
    haddr()
    A("s_cmp_eq_u32 s3, 1\ns_cbranch_scc0 L_nohl")
    hloads()
    A.label("L_nohl")
for c in (0, 2):
    A(f"v_add_f32 v{QG+c}, v{QG+c}, v{QG+4+c}\nv_add_f32 v{QG+8+c}, v{QG+8+c}, v{QG+12+c}")
for c in (0, 2):
    A(f"v_add_f32 v{QG+c}, v{QG+c}, v{QG+8+c}")
A(f"""
v_cvt_pk_bf16_f32 v8, v{QG}, v{QG+2}
v_mov_b32 v13, {L_QRDY}
ds_write_b32 v10, v8 offset:{L_Q}
ds_add_u32 v13, v14
""")
lds_wait(L_QRDY, 256, 8, name="qrdy", sleep=0)
for i in range(4):
    A(f"ds_read_b128 v[{QB+4*i}:{QB+4*i+3}], v15 offset:{L_Q+i*64}")
A("s_waitcnt lgkmcnt(0)")
for i in range(4):
    for t in range(4):
        r = KR + (t * 4 + i) * 4
        c = "0" if i == 0 else f"v[{S+4*t}:{S+4*t+3}]"
        A(f"v_mfma_f32_16x16x32_bf16 v[{S+4*t}:{S+4*t+3}], v[{r}:{r+3}], v[{QB+4*i}:{QB+4*i+3}], {c}")
A("s_mov_b32 s24, 0x3db504f3\ns_mov_b32 s25, 0x3fb8aa3b\ns_mov_b32 s26, 0xffff0000")
if MIMIC:
    T = 16
    for k in range(8): A(f"v_cvt_pk_bf16_f32 v{T+k}, v{S+2*k}, v{S+2*k+1}")
    for k in range(8): A(f"v_lshlrev_b32 v{S+2*k}, 16, v{T+k}\nv_and_b32 v{S+2*k+1}, s26, v{T+k}")
    for k in range(16): A(f"v_mul_f32 v{S+k}, s24, v{S+k}")
    for k in range(8): A(f"v_cvt_pk_bf16_f32 v{T+k}, v{S+2*k}, v{S+2*k+1}")
    for k in range(8): A(f"v_lshlrev_b32 v{S+2*k}, 16, v{T+k}\nv_and_b32 v{S+2*k+1}, s26, v{T+k}")
    A(f"v_max3_f32 v10, v{S}, v{S+1}, v{S+2}\nv_max3_f32 v9, v{S+3}, v{S+4}, v{S+5}")
    A(f"v_max3_f32 v10, v10, v{S+6}, v{S+7}\nv_max3_f32 v9, v9, v{S+8}, v{S+9}")
    A(f"v_max3_f32 v10, v10, v{S+10}, v{S+11}\nv_max3_f32 v9, v9, v{S+12}, v{S+13}")
    A(f"v_max3_f32 v10, v10, v{S+14}, v{S+15}\nv_max_f32 v10, v10, v9")
    SC = "s25"
else:
    A(f"v_max3_f32 v10, v{S}, v{S+1}, v{S+2}\nv_max3_f32 v9, v{S+3}, v{S+4}, v{S+5}")
    A(f"v_max3_f32 v10, v10, v{S+6}, v{S+7}\nv_max3_f32 v9, v9, v{S+8}, v{S+9}")
    A(f"v_max3_f32 v10, v10, v{S+10}, v{S+11}\nv_max3_f32 v9, v9, v{S+12}, v{S+13}")
    A(f"v_max3_f32 v10, v10, v{S+14}, v{S+15}\nv_max_f32 v10, v10, v9")
    A("s_mov_b32 s25, 0x3e0293ee")
    SC = "s25"
A(f"""
v_mov_b32 v9, v10
v_permlane16_swap_b32 v10, v9
v_max_f32 v10, v10, v9
v_mov_b32 v9, v10
v_permlane32_swap_b32 v10, v9
v_max_f32 v10, v10, v9
v_mul_f32 v10, {SC}, v10
""")
for k in range(16):
    A(f"v_fma_f32 v{S+k}, v{S+k}, {SC}, -v10")
for k in range(16):
    A(f"v_exp_f32 v{S+k}, v{S+k}")
for k in range(8):
    A(f"v_cvt_pk_bf16_f32 v{PB+k}, v{S+2*k}, v{S+2*k+1}")
A(f"""
ds_write_b128 v6, v[{PB}:{PB+3}] offset:{L_P}
ds_write_b128 v6, v[{PB+4}:{PB+7}] offset:{L_P+1024}
ds_write_b32 v11, v14
""")
stamp(4)
A(f"v_add_f32 v9, v{S}, v{S+1}\nv_add_f32 v8, v{S+2}, v{S+3}")
for k in range(4, 16, 2):
    A(f"v_add_f32 v9, v9, v{S+k}\nv_add_f32 v8, v8, v{S+k+1}")
A(f"""
v_add_f32 v11, v9, v8
v_mov_b32 v9, v11
v_permlane16_swap_b32 v11, v9
v_add_f32 v11, v11, v9
v_mov_b32 v9, v11
v_permlane32_swap_b32 v11, v9
v_add_f32 v11, v11, v9                   ; l (wave)
v_mov_b32 v13, {L_MLC}
ds_write_b64 v12, v[10:11] offset:{L_ML}
ds_add_u32 v13, v14
""")
lds_wait(L_MLC, 256, 8, name="mlc", sleep=0)
A(f"""
s_lshl_b32 s9, s3, 3
v_mov_b32 v8, s9
ds_read_b64 v[16:17], v8 offset:{L_ML}
ds_read_b64 v[18:19], v8 offset:{L_ML+32}
ds_read_b64 v[20:21], v8 offset:{L_ML+64}
ds_read_b64 v[22:23], v8 offset:{L_ML+96}
s_waitcnt lgkmcnt(0)
v_max_f32 v24, v16, v18
v_max3_f32 v24, v24, v20, v22            ; M
v_sub_f32 v28, v16, v24
v_sub_f32 v29, v18, v24
v_sub_f32 v30, v20, v24
v_sub_f32 v31, v22, v24
v_exp_f32 v28, v28
v_exp_f32 v29, v29
v_exp_f32 v30, v30
v_exp_f32 v31, v31
v_mov_b32 v25, s64
v_mov_b32 v27, s64
v_mul_f32 v26, v28, v17
v_fmac_f32 v26, v29, v19
v_fmac_f32 v26, v30, v21
v_fmac_f32 v26, v31, v23                 ; L
s_lshl_b32 s9, s3, 4
v_mov_b32 v8, s9
v_mov_b32 v9, {L_FRDY}
s_mov_b64 exec, 1
ds_write_b128 v8, v[28:31] offset:{L_F}
ds_add_u32 v9, v14
v_mov_b32 v8, 0
""")
pub("v[24:27]", 8, 17)
A("s_mov_b64 exec, -1")
stamp(5)
A("""
s_cmp_eq_u32 s3, 1
s_cbranch_scc1 L_hg
s_cmp_eq_u32 s3, 3
s_cbranch_scc1 L_fin
s_branch L_mo
""")
A.label("L_hg")
if not HEARLY: haddr()
poll_loop("h", hloads, [G + 4 * n for n in range(4)], 8, 9, cntreg=96, preissued=(NS if HEARLY else None))
for c in (0, 2):
    A(f"v_add_f32 v{G+c}, v{G+c}, v{G+4+c}\nv_add_f32 v{G+8+c}, v{G+8+c}, v{G+12+c}")
for c in (0, 2):
    A(f"v_add_f32 v{G+c}, v{G+c}, v{G+8+c}")
A(f"""
v_cvt_pk_bf16_f32 v156, v{G}, v{G+2}
v_mov_b32 v157, v156
v_permlane32_swap_b32 v156, v157
v_lshlrev_b32 v158, 16, v156
v_and_b32 v159, 0xffff0000, v156
v_lshlrev_b32 v160, 16, v157
v_and_b32 v161, 0xffff0000, v157
v_mul_f32 v162, 0xbfb8aa3b, v158
v_mul_f32 v163, 0xbfb8aa3b, v159
v_exp_f32 v162, v162
v_exp_f32 v163, v163
v_add_f32 v162, 1.0, v162
v_add_f32 v163, 1.0, v163
v_rcp_f32 v162, v162
v_rcp_f32 v163, v163
v_mul_f32 v162, v158, v162
v_mul_f32 v163, v159, v163
v_cvt_pk_bf16_f32 v162, v162, v163
v_lshlrev_b32 v163, 16, v162
v_and_b32 v162, 0xffff0000, v162
v_mul_f32 v163, v163, v160
v_mul_f32 v162, v162, v161
v_cvt_pk_bf16_f32 v162, v163, v162
v_and_b32 v164, 15, v2
v_cmp_gt_u32 vcc, 14, v164
v_cndmask_b32 v162, 0, v162, vcc
v_lshlrev_b32 v164, 2, v2                ; (bb*16 + p)*4
v_cmp_gt_u32 vcc, 32, v2
s_and_saveexec_b64 s[20:21], vcc
ds_write_b32 v164, v162 offset:{L_H}
s_mov_b64 exec, s[20:21]
v_mov_b32 v8, {L_HRDY}
v_mov_b32 v9, 1
ds_write_b32 v8, v9
""")
stamp(6)
A("s_branch L_stamp")
A.label("L_mo")
A(f"""
s_setprio 3
s_lshr_b32 s19, s3, 1                    ; bb
s_and_b32 s13, s6, 2
s_add_u32 s13, s13, s19
s_lshl_b32 s16, s13, 3
s_add_u32 s16, s16, s4
s_lshl_b32 s16, s16, 9
s_add_u32 s16, s16, {WS_ML}
s_lshl_b32 s12, s4, 1
s_lshr_b32 s13, s6, 1
s_add_u32 s12, s12, s13
s_lshl_b32 s12, s12, 3
s_add_u32 s12, s12, s7
s_lshl_b32 s12, s12, 13
s_lshl_b32 s13, s19, 12
s_add_u32 s12, s12, s13
s_add_u32 s12, s12, {WS_OP}
v_lshrrev_b32 v8, 5, v2
v_bfe_u32 v10, v2, 3, 2
v_lshlrev_b32 v8, 6, v8
v_lshl_add_u32 v152, v10, 4, v8
v_and_b32 v13, 31, v2
v_lshlrev_b32 v13, 2, v13
s_lshl_b32 s13, s19, 7
v_add_u32 v13, s13, v13
v_mov_b32 v14, {L_OCR}
v_mov_b32 v15, 1
""")
GM = 136; GO = 16
def moloads():
    A("s_add_u32 s28, s12, s27\ns_add_u32 s29, s16, s27")
    for i in range(4):
        A(f"buffer_load_dwordx4 v[{GO+4*i}:{GO+4*i+3}], v7, s[52:55], s28 offen offset:{i*1024} sc1")
    for i in range(4):
        A(f"buffer_load_dwordx4 v[{GM+4*i}:{GM+4*i+3}], v152, s[52:55], s29 offen offset:{i*128} sc1")
lds_wait(L_OPUB, 4, 8, name="opub", sleep=1)
stamp(6)
A(f"s_mov_b32 s27, {D0}")
poll_loop("mo", moloads, [GO + 4 * i for i in range(4)] + [GM + 4 * i for i in range(4)], 153, 154, sleep=0, cntreg=96, fast=FAST)
stamp(7)
A(f"""
v_max_f32 v153, v{GM}, v{GM+4}
v_max3_f32 v153, v153, v{GM+8}, v{GM+12}
v_mov_b32 v154, v153
v_permlane32_swap_b32 v153, v154
v_max_f32 v153, v153, v154
""")
for i in range(4):
    A(f"v_sub_f32 v{GM+4*i}, v{GM+4*i}, v153")
for i in range(4):
    A(f"v_exp_f32 v{GM+4*i}, v{GM+4*i}")
A(f"""
v_mul_f32 v155, v{GM}, v{GM+2}
v_mul_f32 v161, v{GM}, v{GO}
v_mul_f32 v162, v{GM}, v{GO+2}
""")
for i in range(1, 4):
    A(f"v_fmac_f32 v155, v{GM+4*i}, v{GM+4*i+2}\nv_fmac_f32 v161, v{GM+4*i}, v{GO+4*i}\nv_fmac_f32 v162, v{GM+4*i}, v{GO+4*i+2}")
A(f"""
v_mov_b32 v156, v155
v_mov_b32 v163, v161
v_mov_b32 v164, v162
v_permlane32_swap_b32 v155, v156
v_permlane32_swap_b32 v161, v163
v_permlane32_swap_b32 v162, v164
v_add_f32 v155, v155, v156
v_add_f32 v161, v161, v163
v_add_f32 v162, v162, v164
v_rcp_f32 v155, v155
s_nop 0
v_mul_f32 v161, v161, v155
v_mul_f32 v162, v162, v155
v_cvt_pk_bf16_f32 v161, v161, v162
ds_write_b32 v13, v161 offset:{L_OC}
s_mov_b64 exec, 1
ds_add_u32 v14, v15
s_mov_b64 exec, -1
""")
stamp(8)
A("s_branch L_stamp")
A.label("L_fin")
A(f"""
s_setprio 3
s_load_dwordx2 s[44:45], s[0:1], 80
s_lshl_b32 s12, s6, 18
s_lshl_b32 s8, s18, 12
s_add_u32 s12, s12, s8
s_add_u32 s12, s12, {WS_FP}
s_mov_b32 s46, 4096
s_mov_b32 s47, 0x20000
s_lshr_b32 s8, s18, 5                    ; ch'
s_lshl_b32 s8, s8, 9
s_bfe_u32 s9, s18, 0x20003               ; cw'
s_lshl_b32 s9, s9, 7
s_add_u32 s8, s8, s9
s_and_b32 s9, s18, 1                     ; q'
s_lshl_b32 s9, s9, 6
s_add_u32 s8, s8, s9
s_bfe_u32 s9, s18, 0x10001               ; half'
s_lshl_b32 s9, s9, 3
s_add_u32 s8, s8, s9
s_bfe_u32 s9, s18, 0x10002               ; e'
s_lshl_b32 s9, s9, 2
s_add_u32 s8, s8, s9
s_lshl_b32 s9, s6, 10
s_add_u32 s28, s8, s9
v_lshlrev_b32 v10, 4, v2
""")
lds_wait(L_OPUB, 8, 8, name="fpub", sleep=1)
if FDELAY: A(f"s_sleep {FDELAY}")
stamp(6)
GF = 16
def floads():
    for i in range(4):
        A(f"buffer_load_dwordx4 v[{GF+4*i}:{GF+4*i+3}], v7, s[52:55], s12 offen offset:{i*1024} sc1")
poll_loop("f", floads, [GF + 4 * i for i in range(4)], 8, 9, sleep=0, cntreg=96)
stamp(7)
for c in (0, 2):
    A(f"v_add_f32 v{GF+c}, v{GF+c}, v{GF+4+c}\nv_add_f32 v{GF+8+c}, v{GF+8+c}, v{GF+12+c}")
for c in (0, 2):
    A(f"v_add_f32 v{GF+c}, v{GF+c}, v{GF+8+c}")
for sh in (4, 8):
    for c in (0, 2):
        A(f"v_add_f32_dpp v{48+c}, v{GF+c}, v{GF+c} row_ror:{sh} row_mask:0xf bank_mask:0xf")
    for c in (0, 2):
        A(f"v_mov_b32 v{GF+c}, v{48+c}")
for sw in ("16", "32"):
    for c in (0, 2):
        A(f"v_mov_b32 v{48+c}, v{GF+c}")
    for c in (0, 2):
        A(f"v_permlane{sw}_swap_b32 v{GF+c}, v{48+c}")
    for c in (0, 2):
        A(f"v_add_f32 v{GF+c}, v{GF+c}, v{48+c}")
A(f"""
v_cvt_pk_bf16_f32 v8, v{GF}, v{GF+2}
v_cmp_gt_u32 vcc, 4, v2
s_waitcnt lgkmcnt(0)
s_and_saveexec_b64 s[20:21], vcc
buffer_store_dword v8, v10, s[44:47], s28 offen
s_mov_b64 exec, s[20:21]
s_cmp_eq_u32 s2, 0
s_cbranch_scc0 L_stamp
v_mov_b32 v8, s64
v_mov_b32 v9, {WS_E}
v_cmp_eq_u32 vcc, 0, v2
s_and_saveexec_b64 s[20:21], vcc
buffer_store_dword v8, v9, s[52:55], 0 offen
s_mov_b64 exec, s[20:21]
""")
A.label("L_stamp")
if STAMPS:
    A("s_memrealtime s[94:95]")
    if CLK: A("s_memtime s[92:93]")
    A("s_waitcnt lgkmcnt(0)")
    if CLK: A("s_sub_u32 s96, s92, s90")
    A(f"""
s_lshl_b32 s9, s2, 4
s_add_u32 s9, s9, s30
s_mul_i32 s9, s9, {NST*8}
s_add_u32 s9, s9, {STAMPOFF}
v_mov_b32 v4, 0
s_mov_b64 exec, 1
""")
    if CLK: A("s_mov_b64 s[90:91], 0\ns_mov_b64 s[92:93], 0")
    for k in range(0, NST, 2):
        A(f"v_mov_b32 v10, s{70+2*k}\nv_mov_b32 v11, s{71+2*k}\nv_mov_b32 v12, s{72+2*k}\nv_mov_b32 v13, s{73+2*k}")
        A(f"buffer_store_dwordx4 v[10:13], v4, s[52:55], s9 offen offset:{k*8}")
        A("s_nop 1")
A.label("L_end")
body = A.text()
if STAMPS:
    z = "".join(f"    s_mov_b64 s[{70+2*k}:{71+2*k}], 0\n" for k in range(NST))
    body = z + body
body = hazard.fix(body, verbose=True)
open(sys.argv[1], "w").write(wrap(body, 256, 768, LDS_BYTES, 168, 102))
```

```python
import sys
from asmgen import *
import hazard

opt = dict(a.split("=") for a in sys.argv[2:])
def O(name, default): return type(default)(opt.get(name, default)) if not isinstance(default, bool) else opt.get(name, "1" if default else "0") == "1"
STAMPS = O("stamps", False)
MIMIC = O("mimic", True)
NT = O("nt", True)
NTW = O("ntw", True)
NTO = O("nto", False)
QPOS = O("qpos", 8)
SPINMAX = O("spinmax", 20000)
FAST = O("fast", True)
FDELAY = O("fdelay", 0)
CLK = O("clk", False)
ROT = O("rot", True)
FINE = O("fine", True)
KVROT = O("kvrot", True)
PRETOUCH = O("pretouch", 0)
OTH = O("oth", 0)
VTH = O("vth", 0)
DUAL = O("dual", 0)
CPF = O("cpf", 0)
FACK = O("fack", 0)
MDELAY = O("mdelay", 0)
OACK = O("oack", 0)
ntf = " nt" if NT else ""
ntw = " nt" if NTW else ""
nto = " nt" if NTO else ""

WS_E   = 0
WS_QP  = 0x10000
WS_HP  = 0x100000
WS_ML  = 0x180000
WS_OP  = 0x200000
WS_FP  = 0x300000
FASTD  = 0x400000
WS_SIZE = 268435456
STAMPOFF = 0x8000000
NST = 14
L_TAG = 0
L_QRDY = 8
L_HRDY = 12
L_VISS = 16
L_MLC = 20
L_FRDY = 24
L_OWC = 28
L_OCR = 32
L_GRDY = 36
L_OPUB = 40
L_PRDY = 48
L_Q = 0x100
L_ML = 0x500
L_F = 0x580
L_H = 0x600
L_G = 0x680
L_OC = 0x700
L_OW = 0x800
L_P = 0x2800
LDS_BYTES = 0x4800

A = Asm()
def stamp(k):
    if STAMPS: A(f"s_memrealtime s[{70+2*k}:{71+2*k}]")
def srd_consts(d, size):
    A(f"s_mov_b32 s{d+2}, {size}\ns_mov_b32 s{d+3}, 0x20000")

def lds_wait(addr, val, vt, name="w", sleep=1, addr_is_vreg=None):
    L = A.newlabel("Lw_" + name); Ld = A.newlabel("Lwd_" + name)
    if addr_is_vreg is None:
        A(f"v_mov_b32 v{vt+1}, {addr}"); av = vt + 1
    else: av = addr_is_vreg
    A(f"s_mov_b32 s15, 0")
    A.label(L)
    A(f"""
ds_read_b32 v{vt}, v{av}
s_waitcnt lgkmcnt(0)
v_readfirstlane_b32 s14, v{vt}
s_add_u32 s15, s15, 1
s_cmp_ge_u32 s14, {val}
s_cbranch_scc1 {Ld}
s_cmp_lt_u32 s15, {SPINMAX*16}
""" + (f"s_sleep {sleep}\n" if sleep else "") + f"s_cbranch_scc1 {L}")
    A.label(Ld)

def get_tag(vt):
    L = A.newlabel("Ltag"); Ld = A.newlabel("Ltagd")
    A(f"v_mov_b32 v{vt+2}, {L_TAG}\ns_mov_b32 s15, 0")
    A.label(L)
    A(f"""
ds_read_b64 v[{vt}:{vt+1}], v{vt+2}
s_waitcnt lgkmcnt(0)
v_readfirstlane_b32 s14, v{vt+1}
v_readfirstlane_b32 s64, v{vt}
s_add_u32 s15, s15, 1
s_cmp_eq_u32 s14, 1
s_cbranch_scc1 {Ld}
s_cmp_lt_u32 s15, {SPINMAX*16}
s_sleep 1
s_cbranch_scc1 {L}
""")
    A.label(Ld)

def Pj(raw, j, t, npair=4):
    k = j // 2; sel = "s66" if j % 2 == 0 else "s67"
    for p in range(npair):
        A(f"v_perm_b32 v{t+p}, v{raw+(2*p+1)*4+k}, v{raw+(2*p)*4+k}, {sel}")

def transpose_mfma(raw, acc, aop, tmp, first):
    def P(j): Pj(raw, j, tmp + 4 * (j % 3))
    def M(j):
        t = tmp + 4 * (j % 3)
        c = "0" if first else f"v[{acc+4*j}:{acc+4*j+3}]"
        A(f"v_mfma_f32_16x16x32_bf16 v[{acc+4*j}:{acc+4*j+3}], v[{aop}:{aop+3}], v[{t}:{t+3}], {c}")
    P(0); P(1); M(0)
    for j in range(2, 8):
        P(j); M(j - 1)
    M(7)

def transpose_only(raw, dst):
    for j in range(8): Pj(raw, j, dst + 4 * j)

def tagcheck(regs, vmin, vmax):
    first = True
    for r in regs:
        if first:
            A(f"v_min_u32 v{vmin}, v{r+1}, v{r+3}\nv_max_u32 v{vmax}, v{r+1}, v{r+3}"); first = False
        else:
            A(f"v_min3_u32 v{vmin}, v{vmin}, v{r+1}, v{r+3}\nv_max3_u32 v{vmax}, v{vmax}, v{r+1}, v{r+3}")
    A(f"v_xor_b32 v{vmin}, s64, v{vmin}\nv_xor_b32 v{vmax}, s64, v{vmax}\nv_or_b32 v{vmin}, v{vmin}, v{vmax}\nv_cmp_ne_u32 vcc, 0, v{vmin}")

def poll_loop(name, emit_loads, regs, vmin, vmax, sleep=2, cntreg=None, preissued=None, fast=False):
    L = A.newlabel("Lp_" + name); Ld = A.newlabel("Lpd_" + name); Lc = A.newlabel("Lpc_" + name)
    A("s_mov_b32 s15, 0")
    if preissued is not None:
        A(f"s_waitcnt vmcnt({preissued})")
        A(f"s_branch {Lc}")
    A.label(L)
    if fast == "alt":
        A(f"s_and_b32 s14, s15, 1\ns_cmp_eq_u32 s14, 1\ns_cselect_b32 s27, 0, {FASTD}")
    elif fast:
        A(f"s_sub_u32 s30, {FASTD}, s31\ns_and_b32 s14, s15, 3\ns_cmp_eq_u32 s14, 3\ns_cselect_b32 s27, s30, s31")
    emit_loads()
    A("s_waitcnt vmcnt(0)")
    A.label(Lc)
    tagcheck(regs, vmin, vmax)
    A(f"""
s_add_u32 s15, s15, 1
s_cbranch_vccz {Ld}
s_cmp_lt_u32 s15, {SPINMAX}
""" + (f"s_sleep {sleep}\n" if sleep else "") + f"s_cbranch_scc1 {L}")
    A.label(Ld)
    if cntreg is not None: A(f"s_mov_b32 s{cntreg}, s15")

def pub(regs, voff, soff, off=0, fast=True):
    o = f" offset:{off}" if off else ""
    if fast and FAST:
        A(f"s_add_u32 s29, s{soff}, {FASTD}")
        A(f"buffer_store_dwordx4 {regs}, v{voff}, s[52:55], s29 offen{o}")
    A(f"buffer_store_dwordx4 {regs}, v{voff}, s[52:55], s{soff} offen{o} sc1")

D0 = FASTD if FAST else 0
def tile_off(t):
    if KVROT:
        A(f"s_add_u32 s10, s7, {t}\ns_and_b32 s10, s10, 3\ns_lshl_b32 s10, s10, 12\ns_add_u32 s10, s10, s8")
    else:
        A(f"s_add_u32 s10, s8, {t*4096}")
A("""
s_cmp_ge_u32 s2, 256
s_cbranch_scc1 L_end
v_lshrrev_b32 v1, 6, v0
v_and_b32 v2, 63, v0
v_readfirstlane_b32 s3, v1
s_and_b32 s4, s2, 7
s_lshr_b32 s5, s2, 3                     ; r
s_lshr_b32 s6, s5, 3                     ; b
s_and_b32 s7, s5, 7                      ; s (split)
s_lshl_b32 s18, s4, 3
s_add_u32 s18, s18, s7                   ; j = x*8 + s
s_mov_b32 s66, 0x05040100
s_mov_b32 s67, 0x07060302
s_load_dwordx2 s[52:53], s[0:1], 96      ; ws
""")
if CPF:
    A(f"""
s_cmp_eq_u32 s3, 11
s_cbranch_scc0 L_nocpf
s_getpc_b64 s[40:41]
L_cpf_pc:
s_sub_u32 s40, s40, L_cpf_pc-{NAME}_kernel
s_subb_u32 s41, s41, 0
s_lshl_b32 s8, s5, 9
v_lshlrev_b32 v8, 4, v2
v_add_u32 v8, s8, v8
v_min_u32 v8, L_end-{NAME}_kernel-12, v8
s_mov_b64 exec, 0xffffffff
global_load_dwordx4 v[16:19], v8, s[40:41]
s_mov_b64 exec, -1
L_nocpf:
""")
stamp(0)
if CLK: A("s_memtime s[90:91]")
srd_consts(52, WS_SIZE)
A("""
s_mov_b32 s99, s3
s_cmp_lt_u32 s3, 4
s_cbranch_scc1 L_K
s_cmp_ge_u32 s3, 8
s_cbranch_scc1 L_O
s_load_dwordx2 s[40:41], s[0:1], 16      ; V
s_sub_u32 s3, s3, 4                      ; a
s_cmp_ge_u32 s3, 2
s_cbranch_scc1 L_V23
""")
A("s_load_dwordx2 s[48:49], s[0:1], 0")
A("s_setprio 3")
A("""
s_cmp_eq_u32 s3, 0
s_cbranch_scc0 L_W1setup
s_load_dwordx2 s[44:45], s[0:1], 24
s_mov_b32 s46, 4194304
s_movk_i32 s10, 8192
s_lshl_b32 s9, s6, 20
s_lshl_b32 s11, s7, 7
s_add_u32 s9, s9, s11
s_lshl_b32 s11, s4, 10
s_add_u32 s9, s9, s11
s_lshl_b32 s11, s6, 8
s_lshl_b32 s12, s4, 16
s_lshl_b32 s13, s6, 12
s_add_u32 s12, s12, s13
s_lshl_b32 s13, s7, 9
s_add_u32 s12, s12, s13
""" + f"""
s_add_u32 s12, s12, {WS_QP}
s_movk_i32 s13, 16384
s_movk_i32 s16, 256
s_branch L_prod
""")
A.label("L_W1setup")
A(f"""
s_and_b32 s8, s2, 1
s_cmp_eq_u32 s8, 0
s_cbranch_scc0 L_W1b
s_load_dwordx2 s[44:45], s[0:1], 48
s_branch L_W1c
""")
A.label("L_W1b")
A("s_load_dwordx2 s[44:45], s[0:1], 56")
A.label("L_W1c")
A(f"""
s_mov_b32 s46, 1835008
s_movk_i32 s10, 3584
s_lshr_b32 s9, s2, 1
s_mul_i32 s11, s9, 2341
s_lshr_b32 s11, s11, 16
s_mul_i32 s12, s11, 28
s_sub_u32 s12, s9, s12
s_mul_i32 s9, s11, {128*3584}
s_lshl_b32 s13, s12, 7
s_add_u32 s9, s9, s13
s_mul_i32 s13, s8, 229376
s_lshl_b32 s12, s12, 9
s_add_u32 s12, s12, s13
s_mul_i32 s13, s11, 57344
s_add_u32 s12, s12, s13
s_add_u32 s12, s12, {WS_HP}
s_movk_i32 s13, 14336
s_lshl_b32 s11, s11, 8
s_movk_i32 s16, 224
""")
A.label("L_prod")
srd_consts(48, 4096)
A(f"""
s_mov_b32 s47, 0x20000
v_lshrrev_b32 v3, 3, v2
v_and_b32 v4, 7, v2
v_lshlrev_b32 v4, 4, v4
s_lshl_b32 s8, s10, 3
v_mul_lo_u32 v5, v3, s8
v_add_u32 v5, v5, v4
v_and_b32 v6, 15, v2
v_lshrrev_b32 v7, 2, v6
v_lshlrev_b32 v7, 10, v7
v_and_b32 v8, 1, v2
v_lshrrev_b32 v9, 4, v2
v_lshl_add_u32 v8, v9, 1, v8
v_lshl_add_u32 v7, v8, 4, v7
v_mul_lo_u32 v10, v9, s13
v_lshl_add_u32 v10, v6, 4, v10
v_cmp_le_u32 s[68:69], 8, v6
s_mul_i32 s17, s10, 57
s_cmp_ge_u32 s2, s16
s_waitcnt lgkmcnt(0)
s_cbranch_scc1 L_prod_skip
""")
XA = 80
RAW = 16
A(f"buffer_load_dwordx4 v[{XA}:{XA+3}], v7, s[48:51], s11 offen")
A(f"buffer_load_dwordx4 v[{XA+4}:{XA+7}], v7, s[48:51], s11 offen offset:128")
A("s_mov_b32 s14, s9")
for e in range(2):
    for i in range(8):
        r = RAW + (e * 8 + i) * 4
        A(f"buffer_load_dwordx4 v[{r}:{r+3}], v5, s[44:47], s14 offen{ntw}")
        if not (e == 1 and i == 7):
            A("s_add_u32 s14, s14, s17" if i == 7 else "s_add_u32 s14, s14, s10")
A(f"s_load_dword s65, s[52:53], {WS_E}")
A("s_barrier")
A(f"""
s_cmp_eq_u32 s3, 0
s_cbranch_scc0 L_prod_notag
s_waitcnt lgkmcnt(0)
s_mul_i32 s64, s65, 0x9E3779B1
s_add_u32 s64, s64, 0x7F4A7C15
v_mov_b32 v96, s64
v_mov_b32 v97, 1
v_mov_b32 v98, {L_TAG}
ds_write_b64 v98, v[96:97]
s_branch L_prod_havetag
""")
A.label("L_prod_notag")
get_tag(96)
A.label("L_prod_havetag")
PUB = 88
for k in range(4):
    A(f"v_mov_b32 v{PUB+2*k+1}, s64")
stamp(1)
ACC = 112; TMP = 96
A("s_waitcnt vmcnt(8)")
transpose_mfma(RAW, ACC, XA, TMP, True)
A("s_waitcnt vmcnt(0)")
transpose_mfma(RAW + 32, ACC, XA + 4, TMP, False)
for k in range(4):
    A(f"v_cndmask_b32 v{144+k}, v{ACC+4*k+0}, v{ACC+4*(4+k)+1}, s[68:69]")
    A(f"v_cndmask_b32 v{148+k}, v{ACC+4*(4+k)+0}, v{ACC+4*k+1}, s[68:69]")
for k in range(4):
    A(f"v_add_f32_dpp v{PUB+2*k}, v{148+k}, v{144+k} row_ror:8 row_mask:0xf bank_mask:0xf")
if FAST:
    A(f"s_cmp_eq_u32 s3, 0\ns_cbranch_scc0 L_nofastq\ns_add_u32 s29, s12, {FASTD}")
    A(f"buffer_store_dwordx4 v[{PUB}:{PUB+3}], v10, s[52:55], s29 offen")
    A(f"buffer_store_dwordx4 v[{PUB+4}:{PUB+7}], v10, s[52:55], s29 offen offset:256")
    A.label("L_nofastq")
A(f"buffer_store_dwordx4 v[{PUB}:{PUB+3}], v10, s[52:55], s12 offen sc1")
A(f"buffer_store_dwordx4 v[{PUB+4}:{PUB+7}], v10, s[52:55], s12 offen offset:256 sc1")
stamp(2)
A("s_branch L_V")
A.label("L_prod_skip")
A("s_barrier\ns_branch L_V")
A.label("L_V23")
A("""
s_cmp_eq_u32 s3, 3
s_cbranch_scc1 L_W3
s_barrier
s_branch L_V
""")
A.label("L_W3")
A(f"""
s_load_dwordx2 s[48:49], s[0:1], 0       ; x
s_load_dwordx2 s[44:45], s[0:1], 72      ; gate_w
s_setprio 3
v_mov_b32 v4, 0
v_mov_b32 v5, 0
v_mov_b32 v6, 0
v_mov_b32 v7, 0
v_mov_b32 v8, 0
ds_write_b128 v8, v[4:7]
ds_write_b128 v8, v[4:7] offset:16
ds_write_b128 v8, v[4:7] offset:32
ds_write_b128 v8, v[4:7] offset:48
s_mov_b32 s50, 4096
s_mov_b32 s51, 0x20000
s_mov_b32 s46, 1024
s_mov_b32 s47, 0x20000
v_lshlrev_b32 v3, 4, v2
s_lshl_b32 s8, s6, 10
s_waitcnt lgkmcnt(0)
buffer_load_dwordx4 v[16:19], v3, s[48:51], s8 offen
buffer_load_dwordx4 v[20:23], v3, s[44:47], 0 offen
s_barrier
s_waitcnt vmcnt(0)
""")
for k in range(4):
    A(f"""
v_lshlrev_b32 v{24+2*k}, 16, v{16+k}
v_and_b32 v{25+2*k}, 0xffff0000, v{16+k}
v_lshlrev_b32 v{32+2*k}, 16, v{20+k}
v_and_b32 v{33+2*k}, 0xffff0000, v{20+k}
v_mul_f32 v{24+2*k}, v{24+2*k}, v{32+2*k}
v_mul_f32 v{25+2*k}, v{25+2*k}, v{33+2*k}
v_cvt_pk_bf16_f32 v{40+k}, v{24+2*k}, v{25+2*k}
""")
A("v_mov_b32 v44, 0")
for k in range(4):
    A(f"""
v_lshlrev_b32 v24, 16, v{40+k}
v_and_b32 v25, 0xffff0000, v{40+k}
v_add_f32 v44, v44, v24
v_add_f32 v44, v44, v25
""")
for sh in (1, 2, 4, 8):
    A(f"v_add_f32_dpp v45, v44, v44 row_ror:{sh} row_mask:0xf bank_mask:0xf\nv_mov_b32 v44, v45")
A("""
v_mov_b32 v45, v44
v_permlane16_swap_b32 v44, v45
v_add_f32 v44, v44, v45
v_mov_b32 v45, v44
v_permlane32_swap_b32 v44, v45
v_add_f32 v44, v44, v45
v_cvt_pk_bf16_f32 v44, v44, v44
v_lshlrev_b32 v44, 16, v44
v_mul_f32 v45, 0xbfb8aa3b, v44
v_exp_f32 v45, v45
v_add_f32 v45, 1.0, v45
v_rcp_f32 v45, v45
v_cvt_pk_bf16_f32 v45, v45, v45
v_lshlrev_b32 v46, 16, v45
v_sub_f32 v47, 1.0, v46
v_cvt_pk_bf16_f32 v47, v47, v47
v_lshlrev_b32 v47, 16, v47
""" + f"""
v_mov_b32 v4, {L_G}
ds_write_b64 v4, v[46:47]
v_mov_b32 v5, {L_GRDY}
v_mov_b32 v6, 1
ds_write_b32 v5, v6
""")
stamp(2)
A.label("L_V")
VR = 16; ACC = 112; TMP = 96; PB = 144
A("s_setprio 1")
A(f"""
s_waitcnt lgkmcnt(0)
s_mov_b32 s48, s40
s_mov_b32 s49, s41
s_mov_b32 s50, 67108864
s_mov_b32 s51, 0x20000
s_lshl_b32 s8, s6, 3
s_add_u32 s8, s8, s4                     ; b*8+x
s_lshl_b32 s16, s8, 15
s_lshl_b32 s8, s8, 21
s_add_u32 s8, s8, 0x180000
s_lshl_b32 s9, s7, 16
s_add_u32 s8, s8, s9
s_lshl_b32 s9, s3, 14
s_add_u32 s8, s8, s9                     ; V base
v_and_b32 v3, 15, v2
v_lshrrev_b32 v4, 4, v2
v_lshlrev_b32 v6, 10, v4
v_lshl_add_u32 v6, v3, 4, v6             ; voffV
""")
reg = VR
for u in range(2):
    for hi in range(2):
        tile_off(2*u+hi)
        for i4 in range(4):
            if VTH and (reg - VR) // 4 >= VTH: A(f"s_waitcnt vmcnt({VTH-1})")
            A(f"buffer_load_dwordx4 v[{reg}:{reg+3}], v6, s[48:51], s10 offen offset:{i4*256}{ntf}")
            reg += 4
A(f"v_mov_b32 v8, {L_VISS}\nv_mov_b32 v14, 1\ns_mov_b64 exec, 1\nds_add_u32 v8, v14\ns_mov_b64 exec, -1")
A("s_setprio 2")
stamp(3)
get_tag(8)
A(f"""
s_lshl_b32 s13, s7, 9
s_add_u32 s16, s16, s13
s_lshl_b32 s13, s3, 7
s_add_u32 s16, s16, s13
s_add_u32 s16, s16, {WS_OP}
s_lshl_b32 s9, s3, 11
v_lshlrev_b32 v10, 4, v3
v_add_u32 v10, s9, v10
v_and_b32 v11, 3, v2
v_lshlrev_b32 v11, 9, v11
v_lshrrev_b32 v9, 2, v2
v_lshl_add_u32 v11, v9, 4, v11
s_lshl_b32 s9, s3, 2
s_add_u32 s9, s9, {L_OW}
v_add_u32 v11, s9, v11
v_lshrrev_b32 v12, 3, v2
v_lshlrev_b32 v12, 12, v12
v_and_b32 v9, 7, v2
v_lshl_add_u32 v12, v9, 4, v12
v_mov_b32 v153, s64
v_mov_b32 v155, s64
v_mov_b32 v13, {L_OWC}
s_lshl_b32 s9, s3, 2
s_add_u32 s9, s9, {L_PRDY}
v_mov_b32 v15, s9
s_lshl_b32 s9, s3, 11
v_lshlrev_b32 v5, 4, v2
v_add_u32 v5, s9, v5
s_lshl_b32 s9, s3, 4
v_mov_b32 v7, s9
""")
lds_wait(None, 1, 8, name="prdy", sleep=1, addr_is_vreg=15)
A(f"""
ds_read_b128 v[{PB}:{PB+3}], v5 offset:{L_P}
ds_read_b128 v[{PB+4}:{PB+7}], v5 offset:{L_P+1024}
""")
stamp(5)
A("s_waitcnt vmcnt(8) lgkmcnt(0)")
transpose_mfma(VR, ACC, PB, TMP, True)
lds_wait(L_FRDY, 4, 8, name="frdy", sleep=0)
A(f"ds_read_b128 v[156:159], v7 offset:{L_F}")
if FINE:
    T1 = 64 if False else 120 + 40
    T1 = 16
    for p in range(4):
        A(f"s_waitcnt vmcnt({6-2*p})")
        for j in range(8):
            k = j // 2; sel = "s66" if j % 2 == 0 else "s67"
            A(f"v_perm_b32 v{T1+4*j+p}, v{VR+32+(2*p+1)*4+k}, v{VR+32+(2*p)*4+k}, {sel}")
    stamp(6)
    for j in range(8):
        A(f"v_mfma_f32_16x16x32_bf16 v[{ACC+4*j}:{ACC+4*j+3}], v[{PB+4}:{PB+7}], v[{T1+4*j}:{T1+4*j+3}], v[{ACC+4*j}:{ACC+4*j+3}]")
else:
    A("s_waitcnt vmcnt(0)")
    stamp(6)
    transpose_mfma(VR + 32, ACC, PB + 4, TMP, False)
A("s_mov_b64 exec, 0xffff")
for j in range(8):
    A(f"ds_write_b128 v10, v[{ACC+4*j}:{ACC+4*j+3}] offset:{L_OW+j*256}")
A(f"""
ds_add_u32 v13, v14
s_mov_b64 exec, -1
""")
lds_wait(L_OWC, 64, 8, name="owc", sleep=0)
for w in range(4):
    A(f"ds_read2st64_b32 v[{16+2*w}:{17+2*w}], v11 offset0:{w*8} offset1:{w*8+1}")
A(f"""
s_waitcnt lgkmcnt(0)
v_mul_f32 v152, v16, v156
v_mul_f32 v154, v17, v156
v_fmac_f32 v152, v18, v157
v_fmac_f32 v154, v19, v157
v_fmac_f32 v152, v20, v158
v_fmac_f32 v154, v21, v158
v_fmac_f32 v152, v22, v159
v_fmac_f32 v154, v23, v159
""")
pub("v[152:155]", 12, 16)
if OACK == 1: A("s_waitcnt vmcnt(1)")
if OACK == 2: A("s_waitcnt vmcnt(0)")
A(f"v_mov_b32 v8, {L_OPUB}\ns_mov_b64 exec, 1\nds_add_u32 v8, v14\ns_mov_b64 exec, -1")
stamp(7)
A("s_branch L_stamp")
A.label("L_O")
RW2 = 16; R0 = 48; R1 = 80; ACC = 112; TMP = 144; AH = 156; AO = 160
A(f"""
s_load_dwordx2 s[56:57], s[0:1], 32      ; wo
s_load_dwordx2 s[60:61], s[0:1], 64      ; w2
s_sub_u32 s3, s3, 8                      ; cg
s_mov_b32 s58, 4194304
s_mov_b32 s59, 0x20000
s_mov_b32 s62, 1835008
s_mov_b32 s63, 0x20000
v_and_b32 v3, 15, v2
v_lshrrev_b32 v4, 4, v2
v_lshrrev_b32 v7, 1, v4
v_and_b32 v8, 1, v4
v_lshlrev_b32 v5, 17, v7
v_lshl_add_u32 v5, v8, 13, v5
v_lshl_add_u32 v5, v3, 4, v5             ; voffO
v_lshlrev_b32 v6, 13, v4
v_lshl_add_u32 v6, v3, 4, v6             ; voffW2
s_lshl_b32 s9, s4, 19
s_lshl_b32 s10, s7, 14
s_add_u32 s9, s9, s10
s_lshl_b32 s10, s3, 8
s_add_u32 s9, s9, s10
s_mul_i32 s11, s18, {28*1024}
s_add_u32 s11, s11, s10                  ; w2 base
s_lshl_b32 s17, s6, 18
s_lshl_b32 s8, s3, 16
s_add_u32 s17, s17, s8
s_lshl_b32 s8, s18, 6
s_add_u32 s17, s17, s8
s_add_u32 s17, s17, {WS_FP}
v_cmp_eq_u32 s[20:21], 1, v4
v_cmp_eq_u32 s[22:23], 2, v4
v_cmp_eq_u32 s[24:25], 3, v4
""")
A("s_mov_b32 s31, s6" if ROT else "s_mov_b32 s31, 0")
A(f"s_lshl_b32 s8, s31, 2\ns_add_u32 s8, s8, {L_H}\nv_lshlrev_b32 v7, 5, v4\nv_add_u32 v7, s8, v7")
A("s_lshl_b32 s8, s31, 1")
for k in range(8):
    A(f"s_add_u32 s{32+k}, s8, {k}\ns_and_b32 s{32+k}, s{32+k}, 7\ns_lshl_b32 s{32+k}, s{32+k}, 10")
if PRETOUCH:
    A("s_load_dwordx2 s[40:41], s[0:1], 16\ns_waitcnt lgkmcnt(0)\ns_mov_b32 s48, s40\ns_mov_b32 s49, s41\ns_mov_b32 s50, 67108864\ns_mov_b32 s51, 0x20000")
    A("""
s_lshl_b32 s8, s6, 3
s_add_u32 s8, s8, s4
s_lshl_b32 s8, s8, 21
s_add_u32 s8, s8, 0x180000
s_lshl_b32 s13, s7, 16
s_add_u32 s8, s8, s13
v_mov_b32 v8, 0
s_mov_b64 exec, 1
s_cmp_eq_u32 s3, 0
s_cbranch_scc0 L_pt1
buffer_load_dword v144, v8, s[48:51], s8 offen
buffer_load_dword v145, v8, s[56:59], s9 offen
buffer_load_dword v146, v8, s[60:63], s11 offen
L_pt1:
s_cmp_eq_u32 s3, 1
s_cbranch_scc0 L_pt2
""" + f"""
s_mov_b32 s13, {0x1ff000}
buffer_load_dword v144, v8, s[52:55], s13 offen
s_mov_b32 s13, {0x3ff000 if False else 0x400000 - 0x1000 + 0x800}
buffer_load_dword v145, v8, s[52:55], s13 offen
L_pt2:
s_cmp_eq_u32 s3, 2
s_cbranch_scc0 L_pt3
s_mov_b32 s13, {0x4ff000}
buffer_load_dword v144, v8, s[52:55], s13 offen
s_mov_b32 s13, {0x7ff000}
buffer_load_dword v145, v8, s[52:55], s13 offen
L_pt3:
s_mov_b64 exec, -1
""")
A("s_barrier")
lds_wait(L_VISS, 4, 8, name="viss", sleep=2)
stamp(3)
ocount = [0]
def oload(srd, voff, base_sreg, extra, reg0):
    for k in range(8):
        A(f"s_add_u32 s12, s{base_sreg}, s{32+k}")
        if extra: A(f"s_add_u32 s12, s12, {extra}")
        if OTH and ocount[0] >= OTH: A(f"s_waitcnt vmcnt({OTH-1})")
        A(f"buffer_load_dwordx4 v[{reg0+4*k}:{reg0+4*k+3}], v{voff}, s[{srd}:{srd+3}], s12 offen{nto}")
        ocount[0] += 1
oload(60, 6, 11, 0, RW2)
oload(56, 5, 9, 0, R0)
oload(56, 5, 9, 2*128*1024, R1)
A("s_setprio 2")
stamp(4)
get_tag(8)
A("""
v_lshrrev_b32 v10, 2, v2
v_lshlrev_b32 v10, 12, v10
v_and_b32 v8, 3, v2
v_lshl_add_u32 v10, v8, 4, v10
""")
lds_wait(L_HRDY, 1, 8, name="hrdy")
A(f"ds_read2_b32 v[{AH}:{AH+1}], v7 offset0:0 offset1:1\nds_read2_b32 v[{AH+2}:{AH+3}], v7 offset0:2 offset1:3")
lds_wait(L_GRDY, 1, 8, name="grdy")
A(f"""
v_mov_b32 v11, {L_G}
ds_read_b64 v[12:13], v11
s_waitcnt lgkmcnt(0)
s_waitcnt vmcnt(16)
""")
transpose_mfma(RW2, ACC, AH, TMP, True)
def select(dst, e):
    A(f"v_cndmask_b32 v{dst}, v{ACC+4*(0+e)}, v{ACC+4*(2+e)}, s[20:21]")
    A(f"v_cndmask_b32 v{dst}, v{dst}, v{ACC+4*(4+e)}, s[22:23]")
    A(f"v_cndmask_b32 v{dst}, v{dst}, v{ACC+4*(6+e)}, s[24:25]")
select(14, 0); select(15, 1)
A("v_mul_f32 v14, v14, v13\nv_mul_f32 v15, v15, v13")
A(f"s_waitcnt vmcnt(8)")
transpose_only(R0, RW2)
A(f"s_waitcnt vmcnt(0)")
transpose_only(R1, R0)
A(f"v_mov_b32 v81, s64\nv_mov_b32 v83, s64\nv_mov_b32 v11, {L_OPUB}\nv_mov_b32 v6, 1")
stamp(8)
lds_wait(L_OCR, 1, 8, name="ocr", sleep=0)
A(f"""
ds_read2_b32 v[{AO}:{AO+1}], v7 offset0:64 offset1:65
ds_read2_b32 v[{AO+2}:{AO+3}], v7 offset0:66 offset1:67
ds_read2_b32 v[{AO+4}:{AO+5}], v7 offset0:96 offset1:97
ds_read2_b32 v[{AO+6}:{AO+7}], v7 offset0:98 offset1:99
s_waitcnt lgkmcnt(0)
""")
for j in range(8):
    A(f"v_mfma_f32_16x16x32_bf16 v[{ACC+4*j}:{ACC+4*j+3}], v[{AO}:{AO+3}], v[{RW2+4*j}:{RW2+4*j+3}], 0")
for j in range(8):
    A(f"v_mfma_f32_16x16x32_bf16 v[{ACC+4*j}:{ACC+4*j+3}], v[{AO+4}:{AO+7}], v[{R0+4*j}:{R0+4*j+3}], v[{ACC+4*j}:{ACC+4*j+3}]")
select(80, 0); select(82, 1)
A(f"""
v_fma_f32 v80, v80, v12, v14
v_fma_f32 v82, v82, v12, v15
buffer_store_dwordx4 v[80:83], v10, s[52:55], s17 offen sc1
""" + ("s_waitcnt vmcnt(0)\n" if FACK else "") + f"""
s_mov_b64 exec, 1
ds_add_u32 v11, v6
s_mov_b64 exec, -1
""")
stamp(9)
A("s_branch L_stamp")
A.label("L_K")
A(f"""
s_load_dwordx2 s[44:45], s[0:1], 8       ; K
s_setprio 2
""")
srd_consts(44, 67108864)
A(f"""
s_lshl_b32 s8, s6, 3
s_add_u32 s8, s8, s4                     ; b*8+x
s_lshl_b32 s17, s8, 9
s_lshl_b32 s8, s8, 21
s_add_u32 s8, s8, 0x180000
s_lshl_b32 s9, s7, 16
s_add_u32 s8, s8, s9
s_lshl_b32 s9, s3, 14
s_add_u32 s8, s8, s9                     ; K base
s_lshl_b32 s13, s7, 6
s_add_u32 s17, s17, s13
s_lshl_b32 s13, s3, 4
s_add_u32 s17, s17, s13
s_add_u32 s17, s17, {WS_ML}
s_lshl_b32 s12, s4, 2
s_add_u32 s12, s12, s6
s_lshl_b32 s12, s12, 14
s_lshl_b32 s13, s3, 10
s_add_u32 s12, s12, s13
s_add_u32 s12, s12, {WS_QP}
s_mov_b32 s27, {D0}
v_and_b32 v3, 15, v2
v_lshrrev_b32 v4, 4, v2
v_lshlrev_b32 v5, 8, v3
v_lshl_add_u32 v5, v4, 4, v5             ; voffK
v_lshlrev_b32 v7, 4, v2                  ; l*16
s_waitcnt lgkmcnt(0)
s_barrier
""")
KR = 16; QB = 80; S = 96; PB = 128; QG = 112
reg = KR
for t in range(4):
    tile_off(t)
    for i in range(4):
        A(f"buffer_load_dwordx4 v[{reg}:{reg+3}], v5, s[44:47], s10 offen offset:{i*64}{ntf}")
        reg += 4
stamp(1)
def qloads():
    A("s_add_u32 s28, s12, s27")
    for ks in range(4):
        A(f"s_add_u32 s13, s28, {ks*4096}")
        A(f"buffer_load_dwordx4 v[{QG+4*ks}:{QG+4*ks+3}], v7, s[52:55], s13 offen sc1")
get_tag(8)
A(f"""
v_lshrrev_b32 v10, 5, v2
v_lshlrev_b32 v10, 7, v10
v_and_b32 v11, 7, v2
v_lshl_add_u32 v10, v11, 4, v10
v_bfe_u32 v11, v2, 3, 1
v_lshl_add_u32 v10, v11, 3, v10
v_bfe_u32 v11, v2, 4, 1
v_lshl_add_u32 v10, v11, 2, v10
s_lshl_b32 s9, s3, 8
v_add_u32 v10, s9, v10
v_and_b32 v8, 3, v2
v_lshlrev_b32 v9, 8, v8
v_lshl_add_u32 v15, v4, 4, v9
v_mov_b32 v14, 1
s_lshl_b32 s9, s3, 11
v_add_u32 v6, s9, v7
s_lshl_b32 s9, s3, 5
v_lshl_add_u32 v12, v8, 3, s9
s_lshl_b32 s9, s3, 2
s_add_u32 s9, s9, {L_PRDY}
v_mov_b32 v11, s9
""")
A(f"s_waitcnt vmcnt({QPOS})")
stamp(2)
qloads()
poll_loop("q", qloads, [QG + 4 * n for n in range(4)], 8, 9, sleep=1, cntreg=96, preissued=0, fast=("alt" if FAST else False))
A("s_mov_b32 s31, s27")
stamp(3)
for c in (0, 2):
    A(f"v_add_f32 v{QG+c}, v{QG+c}, v{QG+4+c}\nv_add_f32 v{QG+8+c}, v{QG+8+c}, v{QG+12+c}")
for c in (0, 2):
    A(f"v_add_f32 v{QG+c}, v{QG+c}, v{QG+8+c}")
A(f"""
v_cvt_pk_bf16_f32 v8, v{QG}, v{QG+2}
v_mov_b32 v13, {L_QRDY}
ds_write_b32 v10, v8 offset:{L_Q}
ds_add_u32 v13, v14
""")
lds_wait(L_QRDY, 256, 8, name="qrdy", sleep=0)
for i in range(4):
    A(f"ds_read_b128 v[{QB+4*i}:{QB+4*i+3}], v15 offset:{L_Q+i*64}")
A("s_waitcnt lgkmcnt(0)")
for i in range(4):
    for t in range(4):
        r = KR + (t * 4 + i) * 4
        c = "0" if i == 0 else f"v[{S+4*t}:{S+4*t+3}]"
        A(f"v_mfma_f32_16x16x32_bf16 v[{S+4*t}:{S+4*t+3}], v[{r}:{r+3}], v[{QB+4*i}:{QB+4*i+3}], {c}")
A("s_mov_b32 s24, 0x3db504f3\ns_mov_b32 s25, 0x3fb8aa3b\ns_mov_b32 s26, 0xffff0000")
if MIMIC:
    T = 16
    for k in range(8): A(f"v_cvt_pk_bf16_f32 v{T+k}, v{S+2*k}, v{S+2*k+1}")
    for k in range(8): A(f"v_lshlrev_b32 v{S+2*k}, 16, v{T+k}\nv_and_b32 v{S+2*k+1}, s26, v{T+k}")
    for k in range(16): A(f"v_mul_f32 v{S+k}, s24, v{S+k}")
    for k in range(8): A(f"v_cvt_pk_bf16_f32 v{T+k}, v{S+2*k}, v{S+2*k+1}")
    for k in range(8): A(f"v_lshlrev_b32 v{S+2*k}, 16, v{T+k}\nv_and_b32 v{S+2*k+1}, s26, v{T+k}")
    A(f"v_max3_f32 v10, v{S}, v{S+1}, v{S+2}\nv_max3_f32 v9, v{S+3}, v{S+4}, v{S+5}")
    A(f"v_max3_f32 v10, v10, v{S+6}, v{S+7}\nv_max3_f32 v9, v9, v{S+8}, v{S+9}")
    A(f"v_max3_f32 v10, v10, v{S+10}, v{S+11}\nv_max3_f32 v9, v9, v{S+12}, v{S+13}")
    A(f"v_max3_f32 v10, v10, v{S+14}, v{S+15}\nv_max_f32 v10, v10, v9")
    SC = "s25"
else:
    A(f"v_max3_f32 v10, v{S}, v{S+1}, v{S+2}\nv_max3_f32 v9, v{S+3}, v{S+4}, v{S+5}")
    A(f"v_max3_f32 v10, v10, v{S+6}, v{S+7}\nv_max3_f32 v9, v9, v{S+8}, v{S+9}")
    A(f"v_max3_f32 v10, v10, v{S+10}, v{S+11}\nv_max3_f32 v9, v9, v{S+12}, v{S+13}")
    A(f"v_max3_f32 v10, v10, v{S+14}, v{S+15}\nv_max_f32 v10, v10, v9")
    A("s_mov_b32 s25, 0x3e0293ee")
    SC = "s25"
A(f"""
v_mov_b32 v9, v10
v_permlane16_swap_b32 v10, v9
v_max_f32 v10, v10, v9
v_mov_b32 v9, v10
v_permlane32_swap_b32 v10, v9
v_max_f32 v10, v10, v9
v_mul_f32 v10, {SC}, v10
""")
for k in range(16):
    A(f"v_fma_f32 v{S+k}, v{S+k}, {SC}, -v10")
for k in range(16):
    A(f"v_exp_f32 v{S+k}, v{S+k}")
for k in range(8):
    A(f"v_cvt_pk_bf16_f32 v{PB+k}, v{S+2*k}, v{S+2*k+1}")
A(f"""
ds_write_b128 v6, v[{PB}:{PB+3}] offset:{L_P}
ds_write_b128 v6, v[{PB+4}:{PB+7}] offset:{L_P+1024}
ds_write_b32 v11, v14
""")
stamp(4)
A(f"v_add_f32 v9, v{S}, v{S+1}\nv_add_f32 v8, v{S+2}, v{S+3}")
for k in range(4, 16, 2):
    A(f"v_add_f32 v9, v9, v{S+k}\nv_add_f32 v8, v8, v{S+k+1}")
A(f"""
v_add_f32 v11, v9, v8
v_mov_b32 v9, v11
v_permlane16_swap_b32 v11, v9
v_add_f32 v11, v11, v9
v_mov_b32 v9, v11
v_permlane32_swap_b32 v11, v9
v_add_f32 v11, v11, v9                   ; l (wave)
v_mov_b32 v13, {L_MLC}
ds_write_b64 v12, v[10:11] offset:{L_ML}
ds_add_u32 v13, v14
""")
lds_wait(L_MLC, 256, 8, name="mlc", sleep=0)
A(f"""
s_lshl_b32 s9, s3, 3
v_mov_b32 v8, s9
ds_read_b64 v[16:17], v8 offset:{L_ML}
ds_read_b64 v[18:19], v8 offset:{L_ML+32}
ds_read_b64 v[20:21], v8 offset:{L_ML+64}
ds_read_b64 v[22:23], v8 offset:{L_ML+96}
s_waitcnt lgkmcnt(0)
v_max_f32 v24, v16, v18
v_max3_f32 v24, v24, v20, v22            ; M
v_sub_f32 v28, v16, v24
v_sub_f32 v29, v18, v24
v_sub_f32 v30, v20, v24
v_sub_f32 v31, v22, v24
v_exp_f32 v28, v28
v_exp_f32 v29, v29
v_exp_f32 v30, v30
v_exp_f32 v31, v31
v_mov_b32 v25, s64
v_mov_b32 v27, s64
v_mul_f32 v26, v28, v17
v_fmac_f32 v26, v29, v19
v_fmac_f32 v26, v30, v21
v_fmac_f32 v26, v31, v23                 ; L
s_lshl_b32 s9, s3, 4
v_mov_b32 v8, s9
v_mov_b32 v9, {L_FRDY}
s_mov_b64 exec, 1
ds_write_b128 v8, v[28:31] offset:{L_F}
ds_add_u32 v9, v14
v_mov_b32 v8, 0
""")
pub("v[24:27]", 8, 17)
A("s_mov_b64 exec, -1")
stamp(5)
A("""
s_cmp_eq_u32 s3, 1
s_cbranch_scc1 L_hg
s_cmp_eq_u32 s3, 2
s_cbranch_scc1 L_mo
s_cmp_eq_u32 s3, 3
s_cbranch_scc1 L_fin
""")
A("s_branch L_mo" if DUAL else "s_branch L_stamp")
A.label("L_hg")
A(f"""
s_mul_i32 s8, s18, 28
v_and_b32 v152, 31, v2
v_min_u32 v152, 13, v152
v_lshl_add_u32 v152, v152, 1, s8
v_lshrrev_b32 v153, 6, v152
v_lshlrev_b32 v153, 9, v153
v_bfe_u32 v154, v152, 1, 1
v_lshl_add_u32 v153, v154, 8, v153
v_bfe_u32 v154, v152, 2, 1
v_lshl_add_u32 v153, v154, 7, v153
v_bfe_u32 v154, v152, 3, 3
v_lshl_add_u32 v153, v154, 4, v153
v_lshrrev_b32 v154, 5, v2
s_mov_b32 s8, 229376
v_mul_lo_u32 v154, v154, s8
v_add_u32 v153, v153, v154
s_mul_i32 s19, s6, 14336
s_add_u32 s19, s19, {WS_HP}
""")
G = 136
def hloads():
    for ks in range(4):
        A(f"s_add_u32 s8, s19, {ks*57344}")
        A(f"buffer_load_dwordx4 v[{G+4*ks}:{G+4*ks+3}], v153, s[52:55], s8 offen sc1")
poll_loop("h", hloads, [G + 4 * n for n in range(4)], 8, 9, cntreg=96)
for c in (0, 2):
    A(f"v_add_f32 v{G+c}, v{G+c}, v{G+4+c}\nv_add_f32 v{G+8+c}, v{G+8+c}, v{G+12+c}")
for c in (0, 2):
    A(f"v_add_f32 v{G+c}, v{G+c}, v{G+8+c}")
A(f"""
v_cvt_pk_bf16_f32 v156, v{G}, v{G+2}
v_mov_b32 v157, v156
v_permlane32_swap_b32 v156, v157
v_lshlrev_b32 v158, 16, v156
v_and_b32 v159, 0xffff0000, v156
v_lshlrev_b32 v160, 16, v157
v_and_b32 v161, 0xffff0000, v157
v_mul_f32 v162, 0xbfb8aa3b, v158
v_mul_f32 v163, 0xbfb8aa3b, v159
v_exp_f32 v162, v162
v_exp_f32 v163, v163
v_add_f32 v162, 1.0, v162
v_add_f32 v163, 1.0, v163
v_rcp_f32 v162, v162
v_rcp_f32 v163, v163
v_mul_f32 v162, v158, v162
v_mul_f32 v163, v159, v163
v_cvt_pk_bf16_f32 v162, v162, v163
v_lshlrev_b32 v163, 16, v162
v_and_b32 v162, 0xffff0000, v162
v_mul_f32 v163, v163, v160
v_mul_f32 v162, v162, v161
v_cvt_pk_bf16_f32 v162, v163, v162
v_and_b32 v164, 31, v2
v_cmp_gt_u32 vcc, 14, v164
v_cndmask_b32 v162, 0, v162, vcc
v_lshrrev_b32 v164, 2, v2
v_lshlrev_b32 v164, 5, v164
v_and_b32 v165, 3, v2
v_lshl_add_u32 v164, v165, 2, v164
v_cmp_gt_u32 vcc, 16, v2
s_and_saveexec_b64 s[20:21], vcc
ds_write_b32 v164, v162 offset:{L_H}
ds_write_b32 v164, v162 offset:{L_H+16}
s_mov_b64 exec, s[20:21]
v_mov_b32 v8, {L_HRDY}
v_mov_b32 v9, 1
ds_write_b32 v8, v9
""")
stamp(6)
A("s_branch L_stamp")
A.label("L_mo")
A(f"""
s_setprio 3
s_lshl_b32 s12, s6, 3
s_add_u32 s12, s12, s4
s_lshl_b32 s16, s12, 9
s_add_u32 s16, s16, {WS_ML}
s_lshl_b32 s12, s12, 15
s_lshl_b32 s8, s7, 12
s_add_u32 s12, s12, s8
s_add_u32 s12, s12, {WS_OP}
v_lshrrev_b32 v8, 5, v2
v_bfe_u32 v10, v2, 3, 2
v_lshlrev_b32 v8, 6, v8
v_lshl_add_u32 v152, v10, 4, v8
v_bfe_u32 v13, v2, 2, 3                  ; (l%32)/4
v_lshlrev_b32 v13, 5, v13
v_and_b32 v8, 3, v2
v_lshl_add_u32 v13, v8, 2, v13
v_mov_b32 v14, {L_OCR}
v_mov_b32 v15, 1
""")
GM = 136; GO = 16
def moloads():
    A("s_add_u32 s28, s12, s27\ns_add_u32 s29, s16, s27")
    for i in range(4):
        A(f"buffer_load_dwordx4 v[{GO+4*i}:{GO+4*i+3}], v7, s[52:55], s28 offen offset:{i*1024} sc1")
    for i in range(4):
        A(f"buffer_load_dwordx4 v[{GM+4*i}:{GM+4*i+3}], v152, s[52:55], s29 offen offset:{i*128} sc1")
lds_wait(L_OPUB, 4, 8, name="opub", sleep=1)
if DUAL:
    A(f"s_cmp_eq_u32 s3, 0\ns_cbranch_scc0 L_nodly\ns_sleep {DUAL}\nL_nodly:")
if MDELAY: A(f"s_sleep {MDELAY}")
stamp(6)
A("s_mov_b32 s27, s31")
poll_loop("mo", moloads, [GO + 4 * i for i in range(4)] + [GM + 4 * i for i in range(4)], 153, 154, sleep=0, cntreg=96, fast=FAST)
stamp(7)
A(f"""
v_max_f32 v153, v{GM}, v{GM+4}
v_max3_f32 v153, v153, v{GM+8}, v{GM+12}
v_mov_b32 v154, v153
v_permlane32_swap_b32 v153, v154
v_max_f32 v153, v153, v154
""")
for i in range(4):
    A(f"v_sub_f32 v{GM+4*i}, v{GM+4*i}, v153")
for i in range(4):
    A(f"v_exp_f32 v{GM+4*i}, v{GM+4*i}")
A(f"""
v_mul_f32 v155, v{GM}, v{GM+2}
v_mul_f32 v161, v{GM}, v{GO}
v_mul_f32 v162, v{GM}, v{GO+2}
""")
for i in range(1, 4):
    A(f"v_fmac_f32 v155, v{GM+4*i}, v{GM+4*i+2}\nv_fmac_f32 v161, v{GM+4*i}, v{GO+4*i}\nv_fmac_f32 v162, v{GM+4*i}, v{GO+4*i+2}")
A(f"""
v_mov_b32 v156, v155
v_mov_b32 v163, v161
v_mov_b32 v164, v162
v_permlane32_swap_b32 v155, v156
v_permlane32_swap_b32 v161, v163
v_permlane32_swap_b32 v162, v164
v_add_f32 v155, v155, v156
v_add_f32 v161, v161, v163
v_add_f32 v162, v162, v164
v_rcp_f32 v155, v155
s_nop 0
v_mul_f32 v161, v161, v155
v_mul_f32 v162, v162, v155
v_cvt_pk_bf16_f32 v161, v161, v162
ds_write_b32 v13, v161 offset:{L_OC}
ds_write_b32 v13, v161 offset:{L_OC+16}
ds_write_b32 v14, v15
""")
stamp(8)
A("s_branch L_stamp")
A.label("L_fin")
A(f"""
s_setprio 3
s_load_dwordx2 s[44:45], s[0:1], 80
s_lshl_b32 s12, s6, 18
s_lshl_b32 s8, s18, 12
s_add_u32 s12, s12, s8
s_add_u32 s12, s12, {WS_FP}
s_mov_b32 s46, 4096
s_mov_b32 s47, 0x20000
s_lshr_b32 s8, s18, 4
s_lshl_b32 s8, s8, 8
s_and_b32 s9, s18, 3
s_lshl_b32 s9, s9, 6
s_add_u32 s8, s8, s9
s_bfe_u32 s9, s18, 0x20002
s_lshl_b32 s9, s9, 2
s_add_u32 s8, s8, s9
s_lshl_b32 s9, s6, 10
s_add_u32 s28, s8, s9
v_lshlrev_b32 v10, 4, v2
""")
lds_wait(L_OPUB, 8, 8, name="fpub", sleep=1)
if FDELAY: A(f"s_sleep {FDELAY}")
stamp(6)
GF = 16
def floads():
    for i in range(4):
        A(f"buffer_load_dwordx4 v[{GF+4*i}:{GF+4*i+3}], v7, s[52:55], s12 offen offset:{i*1024} sc1")
poll_loop("f", floads, [GF + 4 * i for i in range(4)], 8, 9, sleep=0, cntreg=96)
stamp(7)
for c in (0, 2):
    A(f"v_add_f32 v{GF+c}, v{GF+c}, v{GF+4+c}\nv_add_f32 v{GF+8+c}, v{GF+8+c}, v{GF+12+c}")
for c in (0, 2):
    A(f"v_add_f32 v{GF+c}, v{GF+c}, v{GF+8+c}")
for sh in (4, 8):
    for c in (0, 2):
        A(f"v_add_f32_dpp v{48+c}, v{GF+c}, v{GF+c} row_ror:{sh} row_mask:0xf bank_mask:0xf")
    for c in (0, 2):
        A(f"v_mov_b32 v{GF+c}, v{48+c}")
for sw in ("16", "32"):
    for c in (0, 2):
        A(f"v_mov_b32 v{48+c}, v{GF+c}")
    for c in (0, 2):
        A(f"v_permlane{sw}_swap_b32 v{GF+c}, v{48+c}")
    for c in (0, 2):
        A(f"v_add_f32 v{GF+c}, v{GF+c}, v{48+c}")
A(f"""
v_cvt_pk_bf16_f32 v8, v{GF}, v{GF+2}
v_cmp_gt_u32 vcc, 4, v2
s_waitcnt lgkmcnt(0)
s_and_saveexec_b64 s[20:21], vcc
buffer_store_dword v8, v10, s[44:47], s28 offen
s_mov_b64 exec, s[20:21]
s_cmp_eq_u32 s2, 0
s_cbranch_scc0 L_stamp
v_mov_b32 v8, s64
v_mov_b32 v9, {WS_E}
v_cmp_eq_u32 vcc, 0, v2
s_and_saveexec_b64 s[20:21], vcc
buffer_store_dword v8, v9, s[52:55], 0 offen
s_mov_b64 exec, s[20:21]
""")
A.label("L_stamp")
if STAMPS:
    A("s_memrealtime s[94:95]")
    if CLK: A("s_memtime s[92:93]")
    A("s_waitcnt lgkmcnt(0)")
    if CLK: A("s_sub_u32 s96, s92, s90")
    A(f"""
s_lshl_b32 s9, s2, 4
s_add_u32 s9, s9, s99
s_mul_i32 s9, s9, {NST*8}
s_add_u32 s9, s9, {STAMPOFF}
v_mov_b32 v4, 0
s_mov_b64 exec, 1
""")
    if CLK: A("s_mov_b64 s[90:91], 0\ns_mov_b64 s[92:93], 0")
    for k in range(0, NST, 2):
        A(f"v_mov_b32 v10, s{70+2*k}\nv_mov_b32 v11, s{71+2*k}\nv_mov_b32 v12, s{72+2*k}\nv_mov_b32 v13, s{73+2*k}")
        A(f"buffer_store_dwordx4 v[10:13], v4, s[52:55], s9 offen offset:{k*8}")
        A("s_nop 1")
A.label("L_end")
body = A.text()
if STAMPS:
    z = "".join(f"    s_mov_b64 s[{70+2*k}:{71+2*k}], 0\n" for k in range(NST))
    body = z + body
body = hazard.fix(body, verbose=True)
open(sys.argv[1], "w").write(wrap(body, 256, 768, LDS_BYTES, 168, 102))
```

```python
import sys
from asmgen import *
import hazard

opt = dict(a.split("=") for a in sys.argv[2:])
def O(name, default): return type(default)(opt.get(name, default)) if not isinstance(default, bool) else opt.get(name, "1" if default else "0") == "1"
STAMPS = O("stamps", False)
MIMIC = O("mimic", True)
NT = O("nt", True)
NTW = O("ntw", True)
NTO = O("nto", False)
QPOS = O("qpos", 8)
SPINMAX = O("spinmax", 20000)
FAST = O("fast", True)
FDELAY = O("fdelay", 0)
CLK = O("clk", False)
ROT = O("rot", True)
FINE = O("fine", True)
KVROT = O("kvrot", True)
OGATE = O("ogate", 0)
HEARLY = O("hearly", True)
OTH = O("oth", 0)
FACK = O("fack", 0)
ntf = " nt" if NT else ""
ntw = " nt" if NTW else ""
nto = " nt" if NTO else ""

WS_E   = 0
WS_QP  = 0x10000
WS_HP  = 0x100000
WS_ML  = 0x180000
WS_OP  = 0x200000
WS_FP  = 0x300000
FASTD  = 0x400000
WS_SIZE = 268435456
STAMPOFF = 0x8000000
NST = 14
L_TAG = 0
L_QRDY = 8
L_HRDY = 12
L_VISS = 16
L_MLC = 20
L_FRDY = 24
L_OWC = 28
L_OCR = 32
L_GRDY = 36
L_OPUB = 40
L_PRDY = 48
L_Q = 0x100
L_ML = 0x500
L_F = 0x580
L_H = 0x600
L_G = 0x680
L_OC = 0x700
L_OW = 0x800
L_P = 0x2800
LDS_BYTES = 0x4800

A = Asm()
def stamp(k):
    if STAMPS: A(f"s_memrealtime s[{70+2*k}:{71+2*k}]")
def srd_consts(d, size):
    A(f"s_mov_b32 s{d+2}, {size}\ns_mov_b32 s{d+3}, 0x20000")

def lds_wait(addr, val, vt, name="w", sleep=1, addr_is_vreg=None):
    L = A.newlabel("Lw_" + name); Ld = A.newlabel("Lwd_" + name)
    if addr_is_vreg is None:
        A(f"v_mov_b32 v{vt+1}, {addr}"); av = vt + 1
    else: av = addr_is_vreg
    A(f"s_mov_b32 s15, 0")
    A.label(L)
    A(f"""
ds_read_b32 v{vt}, v{av}
s_waitcnt lgkmcnt(0)
v_readfirstlane_b32 s14, v{vt}
s_add_u32 s15, s15, 1
s_cmp_ge_u32 s14, {val}
s_cbranch_scc1 {Ld}
s_cmp_lt_u32 s15, {SPINMAX*16}
""" + (f"s_sleep {sleep}\n" if sleep else "") + f"s_cbranch_scc1 {L}")
    A.label(Ld)

def get_tag(vt):
    L = A.newlabel("Ltag"); Ld = A.newlabel("Ltagd")
    A(f"v_mov_b32 v{vt+2}, {L_TAG}\ns_mov_b32 s15, 0")
    A.label(L)
    A(f"""
ds_read_b64 v[{vt}:{vt+1}], v{vt+2}
s_waitcnt lgkmcnt(0)
v_readfirstlane_b32 s14, v{vt+1}
v_readfirstlane_b32 s64, v{vt}
s_add_u32 s15, s15, 1
s_cmp_eq_u32 s14, 1
s_cbranch_scc1 {Ld}
s_cmp_lt_u32 s15, {SPINMAX*16}
s_sleep 1
s_cbranch_scc1 {L}
""")
    A.label(Ld)

def Pj(raw, j, t, npair=4):
    k = j // 2; sel = "s66" if j % 2 == 0 else "s67"
    for p in range(npair):
        A(f"v_perm_b32 v{t+p}, v{raw+(2*p+1)*4+k}, v{raw+(2*p)*4+k}, {sel}")

def transpose_mfma(raw, acc, aop, tmp, first):
    def P(j): Pj(raw, j, tmp + 4 * (j % 3))
    def M(j):
        t = tmp + 4 * (j % 3)
        c = "0" if first else f"v[{acc+4*j}:{acc+4*j+3}]"
        A(f"v_mfma_f32_16x16x32_bf16 v[{acc+4*j}:{acc+4*j+3}], v[{aop}:{aop+3}], v[{t}:{t+3}], {c}")
    P(0); P(1); M(0)
    for j in range(2, 8):
        P(j); M(j - 1)
    M(7)

def transpose_only(raw, dst):
    for j in range(8): Pj(raw, j, dst + 4 * j)

def tagcheck(regs, vmin, vmax):
    first = True
    for r in regs:
        if first:
            A(f"v_min_u32 v{vmin}, v{r+1}, v{r+3}\nv_max_u32 v{vmax}, v{r+1}, v{r+3}"); first = False
        else:
            A(f"v_min3_u32 v{vmin}, v{vmin}, v{r+1}, v{r+3}\nv_max3_u32 v{vmax}, v{vmax}, v{r+1}, v{r+3}")
    A(f"v_xor_b32 v{vmin}, s64, v{vmin}\nv_xor_b32 v{vmax}, s64, v{vmax}\nv_or_b32 v{vmin}, v{vmin}, v{vmax}\nv_cmp_ne_u32 vcc, 0, v{vmin}")

def poll_loop(name, emit_loads, regs, vmin, vmax, sleep=2, cntreg=None, preissued=None, fast=False):
    L = A.newlabel("Lp_" + name); Ld = A.newlabel("Lpd_" + name); Lc = A.newlabel("Lpc_" + name)
    A("s_mov_b32 s15, 0")
    if preissued is not None:
        A(f"s_waitcnt vmcnt({preissued})")
        A(f"s_branch {Lc}")
    A.label(L)
    if fast == "alt":
        A(f"s_and_b32 s14, s15, 1\ns_cmp_eq_u32 s14, 1\ns_cselect_b32 s27, 0, {FASTD}")
    elif fast:
        A(f"s_sub_u32 s30, {FASTD}, s31\ns_and_b32 s14, s15, 3\ns_cmp_eq_u32 s14, 3\ns_cselect_b32 s27, s30, s31")
    emit_loads()
    A("s_waitcnt vmcnt(0)")
    A.label(Lc)
    tagcheck(regs, vmin, vmax)
    A(f"""
s_add_u32 s15, s15, 1
s_cbranch_vccz {Ld}
s_cmp_lt_u32 s15, {SPINMAX}
""" + (f"s_sleep {sleep}\n" if sleep else "") + f"s_cbranch_scc1 {L}")
    A.label(Ld)
    if cntreg is not None: A(f"s_mov_b32 s{cntreg}, s15")

def pub(regs, voff, soff, off=0, fast=True):
    o = f" offset:{off}" if off else ""
    if fast and FAST:
        A(f"s_add_u32 s29, s{soff}, {FASTD}")
        A(f"buffer_store_dwordx4 {regs}, v{voff}, s[52:55], s29 offen{o}")
    A(f"buffer_store_dwordx4 {regs}, v{voff}, s[52:55], s{soff} offen{o} sc1")

D0 = FASTD if FAST else 0
def tile_off(t):
    if KVROT:
        A(f"s_add_u32 s10, s7, {t}\ns_and_b32 s10, s10, 3\ns_lshl_b32 s10, s10, 12\ns_add_u32 s10, s10, s8")
    else:
        A(f"s_add_u32 s10, s8, {t*4096}")
A("""
s_cmp_ge_u32 s2, 256
s_cbranch_scc1 L_end
v_lshrrev_b32 v1, 6, v0
v_and_b32 v2, 63, v0
v_readfirstlane_b32 s3, v1
s_and_b32 s4, s2, 7
s_lshr_b32 s5, s2, 3                     ; r
s_lshr_b32 s6, s5, 3                     ; b
s_and_b32 s7, s5, 7                      ; s (split)
s_lshl_b32 s18, s4, 3
s_add_u32 s18, s18, s7                   ; j = x*8 + s
s_mov_b32 s66, 0x05040100
s_mov_b32 s67, 0x07060302
s_load_dwordx2 s[52:53], s[0:1], 96      ; ws
""")
stamp(0)
if CLK: A("s_memtime s[90:91]")
srd_consts(52, WS_SIZE)
A("""
s_mov_b32 s99, s3
s_cmp_lt_u32 s3, 4
s_cbranch_scc1 L_K
s_cmp_ge_u32 s3, 8
s_cbranch_scc1 L_O
s_load_dwordx2 s[40:41], s[0:1], 16      ; V
s_sub_u32 s3, s3, 4                      ; a
s_cmp_ge_u32 s3, 2
s_cbranch_scc1 L_V23
""")
A("s_load_dwordx2 s[48:49], s[0:1], 0")
A("s_setprio 3")
A("""
s_cmp_eq_u32 s3, 0
s_cbranch_scc0 L_W1setup
s_load_dwordx2 s[44:45], s[0:1], 24
s_mov_b32 s46, 4194304
s_movk_i32 s10, 8192
s_lshl_b32 s9, s6, 20
s_lshl_b32 s11, s7, 7
s_add_u32 s9, s9, s11
s_lshl_b32 s11, s4, 10
s_add_u32 s9, s9, s11
s_lshl_b32 s11, s6, 8
s_lshl_b32 s12, s4, 16
s_lshl_b32 s13, s6, 12
s_add_u32 s12, s12, s13
s_lshl_b32 s13, s7, 9
s_add_u32 s12, s12, s13
""" + f"""
s_add_u32 s12, s12, {WS_QP}
s_movk_i32 s13, 16384
s_movk_i32 s16, 256
s_branch L_prod
""")
A.label("L_W1setup")
A(f"""
s_and_b32 s8, s2, 1
s_cmp_eq_u32 s8, 0
s_cbranch_scc0 L_W1b
s_load_dwordx2 s[44:45], s[0:1], 48
s_branch L_W1c
""")
A.label("L_W1b")
A("s_load_dwordx2 s[44:45], s[0:1], 56")
A.label("L_W1c")
A(f"""
s_mov_b32 s46, 1835008
s_movk_i32 s10, 3584
s_lshr_b32 s9, s2, 1
s_mul_i32 s11, s9, 2341
s_lshr_b32 s11, s11, 16
s_mul_i32 s12, s11, 28
s_sub_u32 s12, s9, s12
s_mul_i32 s9, s11, {128*3584}
s_lshl_b32 s13, s12, 7
s_add_u32 s9, s9, s13
s_mul_i32 s13, s8, 229376
s_lshl_b32 s12, s12, 9
s_add_u32 s12, s12, s13
s_mul_i32 s13, s11, 57344
s_add_u32 s12, s12, s13
s_add_u32 s12, s12, {WS_HP}
s_movk_i32 s13, 14336
s_lshl_b32 s11, s11, 8
s_movk_i32 s16, 224
""")
A.label("L_prod")
srd_consts(48, 4096)
A(f"""
s_mov_b32 s47, 0x20000
v_lshrrev_b32 v3, 3, v2
v_and_b32 v4, 7, v2
v_lshlrev_b32 v4, 4, v4
s_lshl_b32 s8, s10, 3
v_mul_lo_u32 v5, v3, s8
v_add_u32 v5, v5, v4
v_and_b32 v6, 15, v2
v_lshrrev_b32 v7, 2, v6
v_lshlrev_b32 v7, 10, v7
v_and_b32 v8, 1, v2
v_lshrrev_b32 v9, 4, v2
v_lshl_add_u32 v8, v9, 1, v8
v_lshl_add_u32 v7, v8, 4, v7
v_mul_lo_u32 v10, v9, s13
v_lshl_add_u32 v10, v6, 4, v10
v_cmp_le_u32 s[68:69], 8, v6
s_mul_i32 s17, s10, 57
s_cmp_ge_u32 s2, s16
s_waitcnt lgkmcnt(0)
s_cbranch_scc1 L_prod_skip
""")
XA = 80
RAW = 16
A(f"buffer_load_dwordx4 v[{XA}:{XA+3}], v7, s[48:51], s11 offen")
A(f"buffer_load_dwordx4 v[{XA+4}:{XA+7}], v7, s[48:51], s11 offen offset:128")
A("s_mov_b32 s14, s9")
for e in range(2):
    for i in range(8):
        r = RAW + (e * 8 + i) * 4
        A(f"buffer_load_dwordx4 v[{r}:{r+3}], v5, s[44:47], s14 offen{ntw}")
        if not (e == 1 and i == 7):
            A("s_add_u32 s14, s14, s17" if i == 7 else "s_add_u32 s14, s14, s10")
A(f"s_load_dword s65, s[52:53], {WS_E}")
A("s_barrier")
A(f"""
s_cmp_eq_u32 s3, 0
s_cbranch_scc0 L_prod_notag
s_waitcnt lgkmcnt(0)
s_mul_i32 s64, s65, 0x9E3779B1
s_add_u32 s64, s64, 0x7F4A7C15
v_mov_b32 v96, s64
v_mov_b32 v97, 1
v_mov_b32 v98, {L_TAG}
ds_write_b64 v98, v[96:97]
s_branch L_prod_havetag
""")
A.label("L_prod_notag")
get_tag(96)
A.label("L_prod_havetag")
PUB = 88
for k in range(4):
    A(f"v_mov_b32 v{PUB+2*k+1}, s64")
stamp(1)
ACC = 112; TMP = 96
A("s_waitcnt vmcnt(8)")
transpose_mfma(RAW, ACC, XA, TMP, True)
A("s_waitcnt vmcnt(0)")
transpose_mfma(RAW + 32, ACC, XA + 4, TMP, False)
for k in range(4):
    A(f"v_cndmask_b32 v{144+k}, v{ACC+4*k+0}, v{ACC+4*(4+k)+1}, s[68:69]")
    A(f"v_cndmask_b32 v{148+k}, v{ACC+4*(4+k)+0}, v{ACC+4*k+1}, s[68:69]")
for k in range(4):
    A(f"v_add_f32_dpp v{PUB+2*k}, v{148+k}, v{144+k} row_ror:8 row_mask:0xf bank_mask:0xf")
if FAST:
    A(f"s_cmp_eq_u32 s3, 0\ns_cbranch_scc0 L_nofastq\ns_add_u32 s29, s12, {FASTD}")
    A(f"buffer_store_dwordx4 v[{PUB}:{PUB+3}], v10, s[52:55], s29 offen")
    A(f"buffer_store_dwordx4 v[{PUB+4}:{PUB+7}], v10, s[52:55], s29 offen offset:256")
    A.label("L_nofastq")
A(f"buffer_store_dwordx4 v[{PUB}:{PUB+3}], v10, s[52:55], s12 offen sc1")
A(f"buffer_store_dwordx4 v[{PUB+4}:{PUB+7}], v10, s[52:55], s12 offen offset:256 sc1")
stamp(2)
A("s_branch L_V")
A.label("L_prod_skip")
A("s_barrier\ns_branch L_V")
A.label("L_V23")
A("""
s_cmp_eq_u32 s3, 3
s_cbranch_scc1 L_W3
s_barrier
s_branch L_V
""")
A.label("L_W3")
A(f"""
s_load_dwordx2 s[48:49], s[0:1], 0       ; x
s_load_dwordx2 s[44:45], s[0:1], 72      ; gate_w
s_setprio 3
v_mov_b32 v4, 0
v_mov_b32 v5, 0
v_mov_b32 v6, 0
v_mov_b32 v7, 0
v_mov_b32 v8, 0
ds_write_b128 v8, v[4:7]
ds_write_b128 v8, v[4:7] offset:16
ds_write_b128 v8, v[4:7] offset:32
ds_write_b128 v8, v[4:7] offset:48
s_mov_b32 s50, 4096
s_mov_b32 s51, 0x20000
s_mov_b32 s46, 1024
s_mov_b32 s47, 0x20000
v_and_b32 v4, 31, v2
v_lshlrev_b32 v4, 5, v4                  ; (l%32)*32 B : gate_w offset
v_lshrrev_b32 v5, 5, v2                  ; bb
v_lshl_add_u32 v3, v5, 10, v4
s_lshr_b32 s8, s6, 1
s_lshl_b32 s8, s8, 11                    ; 2bp*1024
s_waitcnt lgkmcnt(0)
buffer_load_dwordx4 v[16:19], v3, s[48:51], s8 offen
buffer_load_dwordx4 v[20:23], v3, s[48:51], s8 offen offset:16
buffer_load_dwordx4 v[24:27], v4, s[44:47], 0 offen
buffer_load_dwordx4 v[28:31], v4, s[44:47], 0 offen offset:16
s_barrier
s_waitcnt vmcnt(0)
v_mov_b32 v44, 0
v_mov_b32 v43, 0
s_mov_b32 s22, 0xffff0000
""")
for k in range(8):
    A(f"""
v_lshlrev_b32 v32, 16, v{16+k}
v_and_b32 v33, s22, v{16+k}
v_lshlrev_b32 v34, 16, v{24+k}
v_and_b32 v35, s22, v{24+k}
v_mul_f32 v32, v32, v34
v_mul_f32 v33, v33, v35
v_cvt_pk_bf16_f32 v36, v32, v33
v_lshlrev_b32 v37, 16, v36
v_and_b32 v38, s22, v36
v_add_f32 v44, v44, v37
v_add_f32 v43, v43, v38
""")
A("v_add_f32 v44, v44, v43")
for sh in (1, 2, 4, 8):
    A(f"v_add_f32_dpp v45, v44, v44 row_ror:{sh} row_mask:0xf bank_mask:0xf\nv_mov_b32 v44, v45")
A("""
v_mov_b32 v45, v44
v_permlane16_swap_b32 v44, v45
v_add_f32 v44, v44, v45
v_cvt_pk_bf16_f32 v44, v44, v44
v_lshlrev_b32 v44, 16, v44
v_mul_f32 v45, 0xbfb8aa3b, v44
v_exp_f32 v45, v45
v_add_f32 v45, 1.0, v45
v_rcp_f32 v45, v45
v_cvt_pk_bf16_f32 v45, v45, v45
v_lshlrev_b32 v46, 16, v45
v_sub_f32 v47, 1.0, v46
v_cvt_pk_bf16_f32 v47, v47, v47
v_lshlrev_b32 v47, 16, v47
""" + f"""
v_lshlrev_b32 v4, 3, v5                  ; bb*8
ds_write_b64 v4, v[46:47] offset:{L_G}
v_mov_b32 v5, {L_GRDY}
v_mov_b32 v6, 1
ds_write_b32 v5, v6
""")
stamp(2)
A.label("L_V")
VR = 16; ACC = 112; TMP = 96; PB = 144
A("s_setprio 1")
A(f"""
s_waitcnt lgkmcnt(0)
s_mov_b32 s48, s40
s_mov_b32 s49, s41
s_mov_b32 s50, 67108864
s_mov_b32 s51, 0x20000
s_lshl_b32 s8, s6, 3
s_add_u32 s8, s8, s4                     ; b*8+x
s_lshl_b32 s8, s8, 21
s_add_u32 s8, s8, 0x180000
s_lshl_b32 s9, s7, 16
s_add_u32 s8, s8, s9
s_lshl_b32 s9, s3, 14
s_add_u32 s8, s8, s9                     ; V base
v_and_b32 v3, 15, v2
v_lshrrev_b32 v4, 4, v2
v_lshlrev_b32 v6, 10, v4
v_lshl_add_u32 v6, v3, 4, v6             ; voffV
""")
reg = VR
for u in range(2):
    for hi in range(2):
        tile_off(2*u+hi)
        for i4 in range(4):
            A(f"buffer_load_dwordx4 v[{reg}:{reg+3}], v6, s[48:51], s10 offen offset:{i4*256}{ntf}")
            reg += 4
def viss_inc():
    A(f"v_mov_b32 v8, {L_VISS}\ns_mov_b64 exec, 1\nds_add_u32 v8, v14\ns_mov_b64 exec, -1")
A("v_mov_b32 v14, 1")
if OGATE == 0: viss_inc()
A("s_setprio 2")
stamp(3)
get_tag(8)
A(f"""
s_lshl_b32 s16, s4, 1
s_lshr_b32 s13, s6, 1
s_add_u32 s16, s16, s13                  ; x*2+bp
s_lshl_b32 s16, s16, 16                  ; *8*8192
s_and_b32 s13, s6, 1
s_lshl_b32 s13, s13, 12
s_add_u32 s16, s16, s13
s_lshl_b32 s13, s7, 9
s_add_u32 s16, s16, s13
s_lshl_b32 s13, s3, 7
s_add_u32 s16, s16, s13
s_add_u32 s16, s16, {WS_OP}
s_lshl_b32 s9, s3, 11
v_lshlrev_b32 v10, 4, v3
v_add_u32 v10, s9, v10
v_and_b32 v11, 3, v2
v_lshlrev_b32 v11, 9, v11
v_lshrrev_b32 v9, 2, v2
v_lshl_add_u32 v11, v9, 4, v11
s_lshl_b32 s9, s3, 2
s_add_u32 s9, s9, {L_OW}
v_add_u32 v11, s9, v11
v_lshrrev_b32 v12, 3, v2
v_lshlrev_b32 v12, 13, v12
v_and_b32 v9, 7, v2
v_lshl_add_u32 v12, v9, 4, v12
v_mov_b32 v153, s64
v_mov_b32 v155, s64
v_mov_b32 v13, {L_OWC}
s_lshl_b32 s9, s3, 2
s_add_u32 s9, s9, {L_PRDY}
v_mov_b32 v15, s9
s_lshl_b32 s9, s3, 11
v_lshlrev_b32 v5, 4, v2
v_add_u32 v5, s9, v5
s_lshl_b32 s9, s3, 4
v_mov_b32 v7, s9
""")
if OGATE == 1:
    A("s_waitcnt vmcnt(8)"); viss_inc()
if OGATE == 2:
    A("s_waitcnt vmcnt(0)"); viss_inc()
lds_wait(None, 1, 8, name="prdy", sleep=1, addr_is_vreg=15)
A(f"""
ds_read_b128 v[{PB}:{PB+3}], v5 offset:{L_P}
ds_read_b128 v[{PB+4}:{PB+7}], v5 offset:{L_P+1024}
""")
stamp(5)
A("s_waitcnt vmcnt(8) lgkmcnt(0)")
transpose_mfma(VR, ACC, PB, TMP, True)
lds_wait(L_FRDY, 4, 8, name="frdy", sleep=0)
A(f"ds_read_b128 v[156:159], v7 offset:{L_F}")
if FINE:
    T1 = 64 if False else 120 + 40
    T1 = 16
    for p in range(4):
        A(f"s_waitcnt vmcnt({6-2*p})")
        for j in range(8):
            k = j // 2; sel = "s66" if j % 2 == 0 else "s67"
            A(f"v_perm_b32 v{T1+4*j+p}, v{VR+32+(2*p+1)*4+k}, v{VR+32+(2*p)*4+k}, {sel}")
    stamp(6)
    for j in range(8):
        A(f"v_mfma_f32_16x16x32_bf16 v[{ACC+4*j}:{ACC+4*j+3}], v[{PB+4}:{PB+7}], v[{T1+4*j}:{T1+4*j+3}], v[{ACC+4*j}:{ACC+4*j+3}]")
else:
    A("s_waitcnt vmcnt(0)")
    stamp(6)
    transpose_mfma(VR + 32, ACC, PB + 4, TMP, False)
A("s_mov_b64 exec, 0xffff")
for j in range(8):
    A(f"ds_write_b128 v10, v[{ACC+4*j}:{ACC+4*j+3}] offset:{L_OW+j*256}")
A(f"""
ds_add_u32 v13, v14
s_mov_b64 exec, -1
""")
lds_wait(L_OWC, 64, 8, name="owc", sleep=0)
for w in range(4):
    A(f"ds_read2st64_b32 v[{16+2*w}:{17+2*w}], v11 offset0:{w*8} offset1:{w*8+1}")
A(f"""
s_waitcnt lgkmcnt(0)
v_mul_f32 v152, v16, v156
v_mul_f32 v154, v17, v156
v_fmac_f32 v152, v18, v157
v_fmac_f32 v154, v19, v157
v_fmac_f32 v152, v20, v158
v_fmac_f32 v154, v21, v158
v_fmac_f32 v152, v22, v159
v_fmac_f32 v154, v23, v159
""")
pub("v[152:155]", 12, 16)
A(f"v_mov_b32 v8, {L_OPUB}\ns_mov_b64 exec, 1\nds_add_u32 v8, v14\ns_mov_b64 exec, -1")
stamp(7)
A("s_branch L_stamp")
A.label("L_O")
RW2 = 16; R0 = 32; TH = 64; TO = 80; ACC = 112; AH = 144; AO = 148
A(f"""
s_load_dwordx2 s[56:57], s[0:1], 32      ; wo
s_load_dwordx2 s[60:61], s[0:1], 64      ; w2
s_sub_u32 s3, s3, 8                      ; cw
s_mov_b32 s58, 4194304
s_mov_b32 s59, 0x20000
s_mov_b32 s62, 1835008
s_mov_b32 s63, 0x20000
v_lshrrev_b32 v4, 4, v2                  ; g
v_bfe_u32 v3, v2, 3, 1                   ; sub'
v_and_b32 v8, 7, v2
v_lshlrev_b32 v8, 4, v8                  ; c*16
v_lshlrev_b32 v5, 17, v4
v_lshl_add_u32 v5, v3, 13, v5
v_add_u32 v5, v5, v8                     ; voffO
v_lshrrev_b32 v6, 3, v2
v_lshlrev_b32 v6, 12, v6
v_add_u32 v6, v6, v8                     ; voffW2
s_and_b32 s8, s6, 1                      ; ch
s_lshl_b32 s10, s8, 9
s_lshl_b32 s9, s3, 7
s_add_u32 s10, s10, s9
s_lshl_b32 s9, s4, 19
s_lshl_b32 s11, s7, 14
s_add_u32 s9, s9, s11
s_add_u32 s9, s9, s10
s_mul_i32 s11, s18, {28*1024}
s_add_u32 s11, s11, s10                  ; w2 base
s_lshr_b32 s17, s6, 1
s_lshl_b32 s17, s17, 7
s_lshl_b32 s13, s8, 5
s_add_u32 s17, s17, s13
s_lshl_b32 s13, s3, 3
s_add_u32 s17, s17, s13
s_lshl_b32 s17, s17, 12
s_lshl_b32 s13, s18, 6
s_add_u32 s17, s17, s13
s_add_u32 s17, s17, {WS_FP}
v_bfe_u32 v9, v2, 2, 1
v_and_b32 v11, 1, v2
v_lshl_add_u32 v11, v4, 1, v11           ; 2g+sub
v_lshlrev_b32 v7, 7, v9
v_lshl_add_u32 v7, v11, 4, v7
v_lshlrev_b32 v12, 6, v9
v_lshl_add_u32 v15, v11, 3, v12
v_cmp_eq_u32 s[20:21], 1, v3
v_cmp_le_u32 s[22:23], 32, v2            ; e = l/32
s_barrier
""")
lds_wait(L_VISS, 4, 8, name="viss", sleep=2)
stamp(3)
oc = 0
for i in range(4):
    if OTH and oc >= OTH: A(f"s_waitcnt vmcnt({OTH-1})")
    A(f"buffer_load_dwordx4 v[{RW2+4*i}:{RW2+4*i+3}], v6, s[60:63], s11 offen offset:{i*1024}{nto}"); oc += 1
A("s_add_u32 s12, s9, 4096")
for i in range(8):
    if OTH and oc >= OTH: A(f"s_waitcnt vmcnt({OTH-1})")
    A(f"buffer_load_dwordx4 v[{R0+4*i}:{R0+4*i+3}], v5, s[56:59], {'s9' if i < 4 else 's12'} offen offset:{(i%4)*1024}{nto}"); oc += 1
A("s_setprio 2")
stamp(4)
get_tag(8)
A(f"""
; FP voff = ((l/16)%2)*262144 + (e*4 + half*2 + q)*4096 + t*16
v_bfe_u32 v8, v2, 4, 1
v_lshlrev_b32 v10, 18, v8
v_lshrrev_b32 v9, 5, v2
v_lshl_add_u32 v10, v9, 14, v10
v_bfe_u32 v9, v2, 3, 1
v_lshl_add_u32 v10, v9, 13, v10
v_bfe_u32 v9, v2, 2, 1
v_lshl_add_u32 v10, v9, 12, v10
v_and_b32 v9, 3, v2
v_lshl_add_u32 v10, v9, 4, v10
v_lshlrev_b32 v11, 3, v8                 ; G addr = bb(u%2)*8
v_mov_b32 v161, s64
v_mov_b32 v163, s64
""")
lds_wait(L_HRDY, 1, 8, name="hrdy")
A(f"ds_read_b64 v[{AH}:{AH+1}], v15 offset:{L_H}")
lds_wait(L_GRDY, 1, 8, name="grdy")
A(f"""
ds_read_b64 v[12:13], v11 offset:{L_G}
s_waitcnt lgkmcnt(0)
s_waitcnt vmcnt(8)
""")
for j in range(8): Pj(RW2, j, TH + 2 * j, npair=2)
for j in range(8):
    A(f"v_mfma_f32_16x16x16_bf16 v[{ACC+4*j}:{ACC+4*j+3}], v[{AH}:{AH+1}], v[{TH+2*j}:{TH+2*j+1}], 0")
def reduce2(d0, d1):
    for k in range(4):
        A(f"v_cndmask_b32 v{152+k}, v{ACC+4*k+0}, v{ACC+4*(4+k)+1}, s[20:21]")
        A(f"v_cndmask_b32 v{156+k}, v{ACC+4*(4+k)+0}, v{ACC+4*k+1}, s[20:21]")
    A(f"v_cndmask_b32 v152, v152, v154, s[22:23]\nv_cndmask_b32 v153, v153, v155, s[22:23]")
    A(f"v_cndmask_b32 v156, v156, v158, s[22:23]\nv_cndmask_b32 v157, v157, v159, s[22:23]")
    A(f"v_add_f32_dpp v{d0}, v156, v152 row_ror:8 row_mask:0xf bank_mask:0xf")
    A(f"v_add_f32_dpp v{d1}, v157, v153 row_ror:8 row_mask:0xf bank_mask:0xf")
A("s_waitcnt vmcnt(0)")
for j in range(8): Pj(R0, j, TO + 4 * j)
reduce2(14, 15)
A("v_mul_f32 v14, v14, v13\nv_mul_f32 v15, v15, v13")
A(f"v_mov_b32 v11, {L_OPUB}\nv_mov_b32 v6, 1")
stamp(8)
lds_wait(L_OCR, 2, 8, name="ocr", sleep=0)
A(f"""
ds_read_b128 v[{AO}:{AO+3}], v7 offset:{L_OC}
s_waitcnt lgkmcnt(0)
""")
for j in range(8):
    A(f"v_mfma_f32_16x16x32_bf16 v[{ACC+4*j}:{ACC+4*j+3}], v[{AO}:{AO+3}], v[{TO+4*j}:{TO+4*j+3}], 0")
reduce2(160, 162)
A(f"""
v_fma_f32 v160, v160, v12, v14
v_fma_f32 v162, v162, v12, v15
buffer_store_dwordx4 v[160:163], v10, s[52:55], s17 offen sc1
""" + ("s_waitcnt vmcnt(0)\n" if FACK else "") + f"""
s_mov_b64 exec, 1
ds_add_u32 v11, v6
s_mov_b64 exec, -1
""")
stamp(9)
A("s_branch L_stamp")
A.label("L_K")
A(f"""
s_load_dwordx2 s[44:45], s[0:1], 8       ; K
s_setprio 2
""")
srd_consts(44, 67108864)
A(f"""
s_lshl_b32 s8, s6, 3
s_add_u32 s8, s8, s4                     ; b*8+x
s_lshl_b32 s17, s8, 9
s_lshl_b32 s8, s8, 21
s_add_u32 s8, s8, 0x180000
s_lshl_b32 s9, s7, 16
s_add_u32 s8, s8, s9
s_lshl_b32 s9, s3, 14
s_add_u32 s8, s8, s9                     ; K base
s_lshl_b32 s13, s7, 6
s_add_u32 s17, s17, s13
s_lshl_b32 s13, s3, 4
s_add_u32 s17, s17, s13
s_add_u32 s17, s17, {WS_ML}
s_lshl_b32 s12, s4, 2
s_add_u32 s12, s12, s6
s_lshl_b32 s12, s12, 14
s_lshl_b32 s13, s3, 10
s_add_u32 s12, s12, s13
s_add_u32 s12, s12, {WS_QP}
s_mov_b32 s27, {D0}
v_and_b32 v3, 15, v2
v_lshrrev_b32 v4, 4, v2
v_lshlrev_b32 v5, 8, v3
v_lshl_add_u32 v5, v4, 4, v5             ; voffK
v_lshlrev_b32 v7, 4, v2                  ; l*16
s_waitcnt lgkmcnt(0)
s_barrier
""")
KR = 16; QB = 80; S = 96; PB = 128; QG = 112
reg = KR
for t in range(4):
    tile_off(t)
    for i in range(4):
        A(f"buffer_load_dwordx4 v[{reg}:{reg+3}], v5, s[44:47], s10 offen offset:{i*64}{ntf}")
        reg += 4
stamp(1)
def qloads():
    A("s_add_u32 s28, s12, s27")
    for ks in range(4):
        A(f"s_add_u32 s13, s28, {ks*4096}")
        A(f"buffer_load_dwordx4 v[{QG+4*ks}:{QG+4*ks+3}], v7, s[52:55], s13 offen sc1")
get_tag(8)
A(f"""
v_lshrrev_b32 v10, 5, v2
v_lshlrev_b32 v10, 7, v10
v_and_b32 v11, 7, v2
v_lshl_add_u32 v10, v11, 4, v10
v_bfe_u32 v11, v2, 3, 1
v_lshl_add_u32 v10, v11, 3, v10
v_bfe_u32 v11, v2, 4, 1
v_lshl_add_u32 v10, v11, 2, v10
s_lshl_b32 s9, s3, 8
v_add_u32 v10, s9, v10
v_and_b32 v8, 3, v2
v_lshlrev_b32 v9, 8, v8
v_lshl_add_u32 v15, v4, 4, v9
v_mov_b32 v14, 1
s_lshl_b32 s9, s3, 11
v_add_u32 v6, s9, v7
s_lshl_b32 s9, s3, 5
v_lshl_add_u32 v12, v8, 3, s9
s_lshl_b32 s9, s3, 2
s_add_u32 s9, s9, {L_PRDY}
v_mov_b32 v11, s9
""")
A(f"s_waitcnt vmcnt({QPOS})")
stamp(2)
qloads()
poll_loop("q", qloads, [QG + 4 * n for n in range(4)], 8, 9, sleep=1, cntreg=96, preissued=0, fast=("alt" if FAST else False))
A("s_mov_b32 s31, s27")
NS = 2 if FAST else 1
G = 136
def haddr():
    A(f"""
    s_mul_i32 s8, s18, 28
    v_and_b32 v152, 15, v2
    v_min_u32 v152, 13, v152
    v_lshl_add_u32 v152, v152, 1, s8
    v_lshrrev_b32 v153, 6, v152
    v_lshlrev_b32 v153, 9, v153
    v_bfe_u32 v154, v152, 1, 1
    v_lshl_add_u32 v153, v154, 8, v153
    v_bfe_u32 v154, v152, 2, 1
    v_lshl_add_u32 v153, v154, 7, v153
    v_bfe_u32 v154, v152, 3, 3
    v_lshl_add_u32 v153, v154, 4, v153
    v_lshrrev_b32 v154, 5, v2
    s_mov_b32 s8, 229376
    v_mul_lo_u32 v154, v154, s8
    v_add_u32 v153, v153, v154
    v_bfe_u32 v154, v2, 4, 1                 ; bb
    s_movk_i32 s8, 14336
    v_mul_lo_u32 v154, v154, s8
    v_add_u32 v153, v153, v154
    s_and_b32 s19, s6, 2                     ; 2bp
    s_mul_i32 s19, s19, 14336
    s_add_u32 s19, s19, {WS_HP}
    """)
def hloads():
    for ks in range(4):
        A(f"s_add_u32 s8, s19, {ks*57344}")
        A(f"buffer_load_dwordx4 v[{G+4*ks}:{G+4*ks+3}], v153, s[52:55], s8 offen sc1")
stamp(3)
if HEARLY:
    haddr()
    A("s_cmp_eq_u32 s3, 1\ns_cbranch_scc0 L_nohl")
    hloads()
    A.label("L_nohl")
for c in (0, 2):
    A(f"v_add_f32 v{QG+c}, v{QG+c}, v{QG+4+c}\nv_add_f32 v{QG+8+c}, v{QG+8+c}, v{QG+12+c}")
for c in (0, 2):
    A(f"v_add_f32 v{QG+c}, v{QG+c}, v{QG+8+c}")
A(f"""
v_cvt_pk_bf16_f32 v8, v{QG}, v{QG+2}
v_mov_b32 v13, {L_QRDY}
ds_write_b32 v10, v8 offset:{L_Q}
ds_add_u32 v13, v14
""")
lds_wait(L_QRDY, 256, 8, name="qrdy", sleep=0)
for i in range(4):
    A(f"ds_read_b128 v[{QB+4*i}:{QB+4*i+3}], v15 offset:{L_Q+i*64}")
A("s_waitcnt lgkmcnt(0)")
for i in range(4):
    for t in range(4):
        r = KR + (t * 4 + i) * 4
        c = "0" if i == 0 else f"v[{S+4*t}:{S+4*t+3}]"
        A(f"v_mfma_f32_16x16x32_bf16 v[{S+4*t}:{S+4*t+3}], v[{r}:{r+3}], v[{QB+4*i}:{QB+4*i+3}], {c}")
A("s_mov_b32 s24, 0x3db504f3\ns_mov_b32 s25, 0x3fb8aa3b\ns_mov_b32 s26, 0xffff0000")
if MIMIC:
    T = 16
    for k in range(8): A(f"v_cvt_pk_bf16_f32 v{T+k}, v{S+2*k}, v{S+2*k+1}")
    for k in range(8): A(f"v_lshlrev_b32 v{S+2*k}, 16, v{T+k}\nv_and_b32 v{S+2*k+1}, s26, v{T+k}")
    for k in range(16): A(f"v_mul_f32 v{S+k}, s24, v{S+k}")
    for k in range(8): A(f"v_cvt_pk_bf16_f32 v{T+k}, v{S+2*k}, v{S+2*k+1}")
    for k in range(8): A(f"v_lshlrev_b32 v{S+2*k}, 16, v{T+k}\nv_and_b32 v{S+2*k+1}, s26, v{T+k}")
    A(f"v_max3_f32 v10, v{S}, v{S+1}, v{S+2}\nv_max3_f32 v9, v{S+3}, v{S+4}, v{S+5}")
    A(f"v_max3_f32 v10, v10, v{S+6}, v{S+7}\nv_max3_f32 v9, v9, v{S+8}, v{S+9}")
    A(f"v_max3_f32 v10, v10, v{S+10}, v{S+11}\nv_max3_f32 v9, v9, v{S+12}, v{S+13}")
    A(f"v_max3_f32 v10, v10, v{S+14}, v{S+15}\nv_max_f32 v10, v10, v9")
    SC = "s25"
else:
    A(f"v_max3_f32 v10, v{S}, v{S+1}, v{S+2}\nv_max3_f32 v9, v{S+3}, v{S+4}, v{S+5}")
    A(f"v_max3_f32 v10, v10, v{S+6}, v{S+7}\nv_max3_f32 v9, v9, v{S+8}, v{S+9}")
    A(f"v_max3_f32 v10, v10, v{S+10}, v{S+11}\nv_max3_f32 v9, v9, v{S+12}, v{S+13}")
    A(f"v_max3_f32 v10, v10, v{S+14}, v{S+15}\nv_max_f32 v10, v10, v9")
    A("s_mov_b32 s25, 0x3e0293ee")
    SC = "s25"
A(f"""
v_mov_b32 v9, v10
v_permlane16_swap_b32 v10, v9
v_max_f32 v10, v10, v9
v_mov_b32 v9, v10
v_permlane32_swap_b32 v10, v9
v_max_f32 v10, v10, v9
v_mul_f32 v10, {SC}, v10
""")
for k in range(16):
    A(f"v_fma_f32 v{S+k}, v{S+k}, {SC}, -v10")
for k in range(16):
    A(f"v_exp_f32 v{S+k}, v{S+k}")
for k in range(8):
    A(f"v_cvt_pk_bf16_f32 v{PB+k}, v{S+2*k}, v{S+2*k+1}")
A(f"""
ds_write_b128 v6, v[{PB}:{PB+3}] offset:{L_P}
ds_write_b128 v6, v[{PB+4}:{PB+7}] offset:{L_P+1024}
ds_write_b32 v11, v14
""")
stamp(4)
A(f"v_add_f32 v9, v{S}, v{S+1}\nv_add_f32 v8, v{S+2}, v{S+3}")
for k in range(4, 16, 2):
    A(f"v_add_f32 v9, v9, v{S+k}\nv_add_f32 v8, v8, v{S+k+1}")
A(f"""
v_add_f32 v11, v9, v8
v_mov_b32 v9, v11
v_permlane16_swap_b32 v11, v9
v_add_f32 v11, v11, v9
v_mov_b32 v9, v11
v_permlane32_swap_b32 v11, v9
v_add_f32 v11, v11, v9                   ; l (wave)
v_mov_b32 v13, {L_MLC}
ds_write_b64 v12, v[10:11] offset:{L_ML}
ds_add_u32 v13, v14
""")
lds_wait(L_MLC, 256, 8, name="mlc", sleep=0)
A(f"""
s_lshl_b32 s9, s3, 3
v_mov_b32 v8, s9
ds_read_b64 v[16:17], v8 offset:{L_ML}
ds_read_b64 v[18:19], v8 offset:{L_ML+32}
ds_read_b64 v[20:21], v8 offset:{L_ML+64}
ds_read_b64 v[22:23], v8 offset:{L_ML+96}
s_waitcnt lgkmcnt(0)
v_max_f32 v24, v16, v18
v_max3_f32 v24, v24, v20, v22            ; M
v_sub_f32 v28, v16, v24
v_sub_f32 v29, v18, v24
v_sub_f32 v30, v20, v24
v_sub_f32 v31, v22, v24
v_exp_f32 v28, v28
v_exp_f32 v29, v29
v_exp_f32 v30, v30
v_exp_f32 v31, v31
v_mov_b32 v25, s64
v_mov_b32 v27, s64
v_mul_f32 v26, v28, v17
v_fmac_f32 v26, v29, v19
v_fmac_f32 v26, v30, v21
v_fmac_f32 v26, v31, v23                 ; L
s_lshl_b32 s9, s3, 4
v_mov_b32 v8, s9
v_mov_b32 v9, {L_FRDY}
s_mov_b64 exec, 1
ds_write_b128 v8, v[28:31] offset:{L_F}
ds_add_u32 v9, v14
v_mov_b32 v8, 0
""")
pub("v[24:27]", 8, 17)
A("s_mov_b64 exec, -1")
stamp(5)
A("""
s_cmp_eq_u32 s3, 1
s_cbranch_scc1 L_hg
s_cmp_eq_u32 s3, 3
s_cbranch_scc1 L_fin
s_branch L_mo
""")
A.label("L_hg")
if not HEARLY: haddr()
poll_loop("h", hloads, [G + 4 * n for n in range(4)], 8, 9, cntreg=96, preissued=(NS if HEARLY else None))
for c in (0, 2):
    A(f"v_add_f32 v{G+c}, v{G+c}, v{G+4+c}\nv_add_f32 v{G+8+c}, v{G+8+c}, v{G+12+c}")
for c in (0, 2):
    A(f"v_add_f32 v{G+c}, v{G+c}, v{G+8+c}")
A(f"""
v_cvt_pk_bf16_f32 v156, v{G}, v{G+2}
v_mov_b32 v157, v156
v_permlane32_swap_b32 v156, v157
v_lshlrev_b32 v158, 16, v156
v_and_b32 v159, 0xffff0000, v156
v_lshlrev_b32 v160, 16, v157
v_and_b32 v161, 0xffff0000, v157
v_mul_f32 v162, 0xbfb8aa3b, v158
v_mul_f32 v163, 0xbfb8aa3b, v159
v_exp_f32 v162, v162
v_exp_f32 v163, v163
v_add_f32 v162, 1.0, v162
v_add_f32 v163, 1.0, v163
v_rcp_f32 v162, v162
v_rcp_f32 v163, v163
v_mul_f32 v162, v158, v162
v_mul_f32 v163, v159, v163
v_cvt_pk_bf16_f32 v162, v162, v163
v_lshlrev_b32 v163, 16, v162
v_and_b32 v162, 0xffff0000, v162
v_mul_f32 v163, v163, v160
v_mul_f32 v162, v162, v161
v_cvt_pk_bf16_f32 v162, v163, v162
v_and_b32 v164, 15, v2
v_cmp_gt_u32 vcc, 14, v164
v_cndmask_b32 v162, 0, v162, vcc
v_lshlrev_b32 v164, 2, v2                ; (bb*16 + p)*4
v_cmp_gt_u32 vcc, 32, v2
s_and_saveexec_b64 s[20:21], vcc
ds_write_b32 v164, v162 offset:{L_H}
s_mov_b64 exec, s[20:21]
v_mov_b32 v8, {L_HRDY}
v_mov_b32 v9, 1
ds_write_b32 v8, v9
""")
stamp(6)
A("s_branch L_stamp")
A.label("L_mo")
A(f"""
s_setprio 3
s_lshr_b32 s19, s3, 1                    ; bb
s_and_b32 s13, s6, 2
s_add_u32 s13, s13, s19
s_lshl_b32 s16, s13, 3
s_add_u32 s16, s16, s4
s_lshl_b32 s16, s16, 9
s_add_u32 s16, s16, {WS_ML}
s_lshl_b32 s12, s4, 1
s_lshr_b32 s13, s6, 1
s_add_u32 s12, s12, s13
s_lshl_b32 s12, s12, 3
s_add_u32 s12, s12, s7
s_lshl_b32 s12, s12, 13
s_lshl_b32 s13, s19, 12
s_add_u32 s12, s12, s13
s_add_u32 s12, s12, {WS_OP}
v_lshrrev_b32 v8, 5, v2
v_bfe_u32 v10, v2, 3, 2
v_lshlrev_b32 v8, 6, v8
v_lshl_add_u32 v152, v10, 4, v8
v_and_b32 v13, 31, v2
v_lshlrev_b32 v13, 2, v13
s_lshl_b32 s13, s19, 7
v_add_u32 v13, s13, v13
v_mov_b32 v14, {L_OCR}
v_mov_b32 v15, 1
""")
GM = 136; GO = 16
def moloads():
    A("s_add_u32 s28, s12, s27\ns_add_u32 s29, s16, s27")
    for i in range(4):
        A(f"buffer_load_dwordx4 v[{GO+4*i}:{GO+4*i+3}], v7, s[52:55], s28 offen offset:{i*1024} sc1")
    for i in range(4):
        A(f"buffer_load_dwordx4 v[{GM+4*i}:{GM+4*i+3}], v152, s[52:55], s29 offen offset:{i*128} sc1")
lds_wait(L_OPUB, 4, 8, name="opub", sleep=1)
stamp(6)
A("s_mov_b32 s27, s31")
poll_loop("mo", moloads, [GO + 4 * i for i in range(4)] + [GM + 4 * i for i in range(4)], 153, 154, sleep=0, cntreg=96, fast=FAST)
stamp(7)
A(f"""
v_max_f32 v153, v{GM}, v{GM+4}
v_max3_f32 v153, v153, v{GM+8}, v{GM+12}
v_mov_b32 v154, v153
v_permlane32_swap_b32 v153, v154
v_max_f32 v153, v153, v154
""")
for i in range(4):
    A(f"v_sub_f32 v{GM+4*i}, v{GM+4*i}, v153")
for i in range(4):
    A(f"v_exp_f32 v{GM+4*i}, v{GM+4*i}")
A(f"""
v_mul_f32 v155, v{GM}, v{GM+2}
v_mul_f32 v161, v{GM}, v{GO}
v_mul_f32 v162, v{GM}, v{GO+2}
""")
for i in range(1, 4):
    A(f"v_fmac_f32 v155, v{GM+4*i}, v{GM+4*i+2}\nv_fmac_f32 v161, v{GM+4*i}, v{GO+4*i}\nv_fmac_f32 v162, v{GM+4*i}, v{GO+4*i+2}")
A(f"""
v_mov_b32 v156, v155
v_mov_b32 v163, v161
v_mov_b32 v164, v162
v_permlane32_swap_b32 v155, v156
v_permlane32_swap_b32 v161, v163
v_permlane32_swap_b32 v162, v164
v_add_f32 v155, v155, v156
v_add_f32 v161, v161, v163
v_add_f32 v162, v162, v164
v_rcp_f32 v155, v155
s_nop 0
v_mul_f32 v161, v161, v155
v_mul_f32 v162, v162, v155
v_cvt_pk_bf16_f32 v161, v161, v162
ds_write_b32 v13, v161 offset:{L_OC}
s_mov_b64 exec, 1
ds_add_u32 v14, v15
s_mov_b64 exec, -1
""")
stamp(8)
A("s_branch L_stamp")
A.label("L_fin")
A(f"""
s_setprio 3
s_load_dwordx2 s[44:45], s[0:1], 80
s_lshl_b32 s12, s6, 18
s_lshl_b32 s8, s18, 12
s_add_u32 s12, s12, s8
s_add_u32 s12, s12, {WS_FP}
s_mov_b32 s46, 4096
s_mov_b32 s47, 0x20000
s_lshr_b32 s8, s18, 5                    ; ch'
s_lshl_b32 s8, s8, 9
s_bfe_u32 s9, s18, 0x20003               ; cw'
s_lshl_b32 s9, s9, 7
s_add_u32 s8, s8, s9
s_and_b32 s9, s18, 1                     ; q'
s_lshl_b32 s9, s9, 6
s_add_u32 s8, s8, s9
s_bfe_u32 s9, s18, 0x10001               ; half'
s_lshl_b32 s9, s9, 3
s_add_u32 s8, s8, s9
s_bfe_u32 s9, s18, 0x10002               ; e'
s_lshl_b32 s9, s9, 2
s_add_u32 s8, s8, s9
s_lshl_b32 s9, s6, 10
s_add_u32 s28, s8, s9
v_lshlrev_b32 v10, 4, v2
""")
lds_wait(L_OPUB, 8, 8, name="fpub", sleep=1)
if FDELAY: A(f"s_sleep {FDELAY}")
stamp(6)
GF = 16
def floads():
    for i in range(4):
        A(f"buffer_load_dwordx4 v[{GF+4*i}:{GF+4*i+3}], v7, s[52:55], s12 offen offset:{i*1024} sc1")
poll_loop("f", floads, [GF + 4 * i for i in range(4)], 8, 9, sleep=0, cntreg=96)
stamp(7)
for c in (0, 2):
    A(f"v_add_f32 v{GF+c}, v{GF+c}, v{GF+4+c}\nv_add_f32 v{GF+8+c}, v{GF+8+c}, v{GF+12+c}")
for c in (0, 2):
    A(f"v_add_f32 v{GF+c}, v{GF+c}, v{GF+8+c}")
for sh in (4, 8):
    for c in (0, 2):
        A(f"v_add_f32_dpp v{48+c}, v{GF+c}, v{GF+c} row_ror:{sh} row_mask:0xf bank_mask:0xf")
    for c in (0, 2):
        A(f"v_mov_b32 v{GF+c}, v{48+c}")
for sw in ("16", "32"):
    for c in (0, 2):
        A(f"v_mov_b32 v{48+c}, v{GF+c}")
    for c in (0, 2):
        A(f"v_permlane{sw}_swap_b32 v{GF+c}, v{48+c}")
    for c in (0, 2):
        A(f"v_add_f32 v{GF+c}, v{GF+c}, v{48+c}")
A(f"""
v_cvt_pk_bf16_f32 v8, v{GF}, v{GF+2}
v_cmp_gt_u32 vcc, 4, v2
s_waitcnt lgkmcnt(0)
s_and_saveexec_b64 s[20:21], vcc
buffer_store_dword v8, v10, s[44:47], s28 offen
s_mov_b64 exec, s[20:21]
s_cmp_eq_u32 s2, 0
s_cbranch_scc0 L_stamp
v_mov_b32 v8, s64
v_mov_b32 v9, {WS_E}
v_cmp_eq_u32 vcc, 0, v2
s_and_saveexec_b64 s[20:21], vcc
buffer_store_dword v8, v9, s[52:55], 0 offen
s_mov_b64 exec, s[20:21]
""")
A.label("L_stamp")
if STAMPS:
    A("s_memrealtime s[94:95]")
    if CLK: A("s_memtime s[92:93]")
    A("s_waitcnt lgkmcnt(0)")
    if CLK: A("s_sub_u32 s96, s92, s90")
    A(f"""
s_lshl_b32 s9, s2, 4
s_add_u32 s9, s9, s99
s_mul_i32 s9, s9, {NST*8}
s_add_u32 s9, s9, {STAMPOFF}
v_mov_b32 v4, 0
s_mov_b64 exec, 1
""")
    if CLK: A("s_mov_b64 s[90:91], 0\ns_mov_b64 s[92:93], 0")
    for k in range(0, NST, 2):
        A(f"v_mov_b32 v10, s{70+2*k}\nv_mov_b32 v11, s{71+2*k}\nv_mov_b32 v12, s{72+2*k}\nv_mov_b32 v13, s{73+2*k}")
        A(f"buffer_store_dwordx4 v[10:13], v4, s[52:55], s9 offen offset:{k*8}")
        A("s_nop 1")
A.label("L_end")
body = A.text()
if STAMPS:
    z = "".join(f"    s_mov_b64 s[{70+2*k}:{71+2*k}], 0\n" for k in range(NST))
    body = z + body
body = hazard.fix(body, verbose=True)
open(sys.argv[1], "w").write(wrap(body, 256, 768, LDS_BYTES, 168, 102))
```

```python
import sys
from asmgen import *
import hazard

opt = dict(a.split("=") for a in sys.argv[2:])
def O(name, default): return type(default)(opt.get(name, default)) if not isinstance(default, bool) else opt.get(name, "1" if default else "0") == "1"
STAMPS = O("stamps", False)
MIMIC = O("mimic", True)
NT = O("nt", True)
NTW = O("ntw", True)
NTO = O("nto", False)
QPOS = O("qpos", 8)
SPINMAX = O("spinmax", 20000)
FAST = O("fast", True)
FDELAY = O("fdelay", 0)
CLK = O("clk", False)
ROT = O("rot", True)
FINE = O("fine", True)
KVROT = O("kvrot", True)
OGATE = O("ogate", 0)
HEARLY = O("hearly", True)
OTH = O("oth", 0)
FACK = O("fack", 0)
HSKIP = O("hskip", -1)
ntf = " nt" if NT else ""
ntw = " nt" if NTW else ""
nto = " nt" if NTO else ""

WS_E   = 0
WS_QP  = 0x10000
WS_HP  = 0x100000
WS_ML  = 0x180000
WS_OP  = 0x200000
WS_FP  = 0x300000
FASTD  = 0x400000
WS_SIZE = 268435456
STAMPOFF = 0x8000000
NST = 14
L_TAG = 0
L_QRDY = 8
L_HRDY = 12
L_VISS = 16
L_MLC = 20
L_FRDY = 24
L_OWC = 28
L_OCR = 32
L_GRDY = 36
L_OPUB = 40
L_PRDY = 48
L_Q = 0x100
L_ML = 0x500
L_F = 0x580
L_H = 0x600
L_G = 0x680
L_OC = 0x700
L_OW = 0x800
L_P = 0x2800
LDS_BYTES = 0x4800

A = Asm()
def stamp(k):
    if STAMPS: A(f"s_memrealtime s[{70+2*k}:{71+2*k}]")
def srd_consts(d, size):
    A(f"s_mov_b32 s{d+2}, {size}\ns_mov_b32 s{d+3}, 0x20000")

def lds_wait(addr, val, vt, name="w", sleep=1, addr_is_vreg=None):
    L = A.newlabel("Lw_" + name); Ld = A.newlabel("Lwd_" + name)
    if addr_is_vreg is None:
        A(f"v_mov_b32 v{vt+1}, {addr}"); av = vt + 1
    else: av = addr_is_vreg
    A(f"s_mov_b32 s15, 0")
    A.label(L)
    A(f"""
ds_read_b32 v{vt}, v{av}
s_waitcnt lgkmcnt(0)
v_readfirstlane_b32 s14, v{vt}
s_add_u32 s15, s15, 1
s_cmp_ge_u32 s14, {val}
s_cbranch_scc1 {Ld}
s_cmp_lt_u32 s15, {SPINMAX*16}
""" + (f"s_sleep {sleep}\n" if sleep else "") + f"s_cbranch_scc1 {L}")
    A.label(Ld)

def get_tag(vt):
    L = A.newlabel("Ltag"); Ld = A.newlabel("Ltagd")
    A(f"v_mov_b32 v{vt+2}, {L_TAG}\ns_mov_b32 s15, 0")
    A.label(L)
    A(f"""
ds_read_b64 v[{vt}:{vt+1}], v{vt+2}
s_waitcnt lgkmcnt(0)
v_readfirstlane_b32 s14, v{vt+1}
v_readfirstlane_b32 s64, v{vt}
s_add_u32 s15, s15, 1
s_cmp_eq_u32 s14, 1
s_cbranch_scc1 {Ld}
s_cmp_lt_u32 s15, {SPINMAX*16}
s_sleep 1
s_cbranch_scc1 {L}
""")
    A.label(Ld)

def Pj(raw, j, t, npair=4):
    k = j // 2; sel = "s66" if j % 2 == 0 else "s67"
    for p in range(npair):
        A(f"v_perm_b32 v{t+p}, v{raw+(2*p+1)*4+k}, v{raw+(2*p)*4+k}, {sel}")

def transpose_mfma(raw, acc, aop, tmp, first):
    def P(j): Pj(raw, j, tmp + 4 * (j % 3))
    def M(j):
        t = tmp + 4 * (j % 3)
        c = "0" if first else f"v[{acc+4*j}:{acc+4*j+3}]"
        A(f"v_mfma_f32_16x16x32_bf16 v[{acc+4*j}:{acc+4*j+3}], v[{aop}:{aop+3}], v[{t}:{t+3}], {c}")
    P(0); P(1); M(0)
    for j in range(2, 8):
        P(j); M(j - 1)
    M(7)

def transpose_only(raw, dst):
    for j in range(8): Pj(raw, j, dst + 4 * j)

def tagcheck(regs, vmin, vmax):
    first = True
    for r in regs:
        if first:
            A(f"v_min_u32 v{vmin}, v{r+1}, v{r+3}\nv_max_u32 v{vmax}, v{r+1}, v{r+3}"); first = False
        else:
            A(f"v_min3_u32 v{vmin}, v{vmin}, v{r+1}, v{r+3}\nv_max3_u32 v{vmax}, v{vmax}, v{r+1}, v{r+3}")
    A(f"v_xor_b32 v{vmin}, s64, v{vmin}\nv_xor_b32 v{vmax}, s64, v{vmax}\nv_or_b32 v{vmin}, v{vmin}, v{vmax}\nv_cmp_ne_u32 vcc, 0, v{vmin}")

def poll_loop(name, emit_loads, regs, vmin, vmax, sleep=2, cntreg=None, preissued=None, fast=False):
    L = A.newlabel("Lp_" + name); Ld = A.newlabel("Lpd_" + name); Lc = A.newlabel("Lpc_" + name)
    A("s_mov_b32 s15, 0")
    if preissued is not None:
        A(f"s_waitcnt vmcnt({preissued})")
        A(f"s_branch {Lc}")
    A.label(L)
    if fast == "alt":
        A(f"s_and_b32 s14, s15, 1\ns_cmp_eq_u32 s14, 1\ns_cselect_b32 s27, 0, {FASTD}")
    elif fast:
        A(f"s_sub_u32 s30, {FASTD}, s31\ns_and_b32 s14, s15, 3\ns_cmp_eq_u32 s14, 3\ns_cselect_b32 s27, s30, s31")
    emit_loads()
    A("s_waitcnt vmcnt(0)")
    A.label(Lc)
    tagcheck(regs, vmin, vmax)
    A(f"""
s_add_u32 s15, s15, 1
s_cbranch_vccz {Ld}
s_cmp_lt_u32 s15, {SPINMAX}
""" + (f"s_sleep {sleep}\n" if sleep else "") + f"s_cbranch_scc1 {L}")
    A.label(Ld)
    if cntreg is not None: A(f"s_mov_b32 s{cntreg}, s15")

def pub(regs, voff, soff, off=0, fast=True):
    o = f" offset:{off}" if off else ""
    if fast and FAST:
        A(f"s_add_u32 s29, s{soff}, {FASTD}")
        A(f"buffer_store_dwordx4 {regs}, v{voff}, s[52:55], s29 offen{o}")
    A(f"buffer_store_dwordx4 {regs}, v{voff}, s[52:55], s{soff} offen{o} sc1")

D0 = FASTD if FAST else 0
def tile_off(t):
    if KVROT:
        A(f"s_add_u32 s10, s7, {t}\ns_and_b32 s10, s10, 3\ns_lshl_b32 s10, s10, 12\ns_add_u32 s10, s10, s8")
    else:
        A(f"s_add_u32 s10, s8, {t*4096}")
A("""
s_cmp_ge_u32 s2, 256
s_cbranch_scc1 L_end
v_lshrrev_b32 v1, 6, v0
v_and_b32 v2, 63, v0
v_readfirstlane_b32 s3, v1
s_and_b32 s4, s2, 7
s_lshr_b32 s5, s2, 3                     ; r
s_lshr_b32 s6, s5, 3                     ; b
s_and_b32 s7, s5, 7                      ; s (split)
s_lshl_b32 s18, s4, 3
s_add_u32 s18, s18, s7                   ; j = x*8 + s
s_mov_b32 s66, 0x05040100
s_mov_b32 s67, 0x07060302
s_load_dwordx2 s[52:53], s[0:1], 96      ; ws
""")
stamp(0)
if CLK: A("s_memtime s[90:91]")
srd_consts(52, WS_SIZE)
A("""
s_mov_b32 s99, s3
s_cmp_lt_u32 s3, 4
s_cbranch_scc1 L_K
s_cmp_ge_u32 s3, 8
s_cbranch_scc1 L_O
s_load_dwordx2 s[40:41], s[0:1], 16      ; V
s_sub_u32 s3, s3, 4                      ; a
s_cmp_ge_u32 s3, 2
s_cbranch_scc1 L_V23
""")
A("s_load_dwordx2 s[48:49], s[0:1], 0")
A("s_setprio 3")
A("""
s_cmp_eq_u32 s3, 0
s_cbranch_scc0 L_W1setup
s_load_dwordx2 s[44:45], s[0:1], 24
s_mov_b32 s46, 4194304
s_movk_i32 s10, 8192
s_lshl_b32 s9, s6, 20
s_lshl_b32 s11, s7, 7
s_add_u32 s9, s9, s11
s_lshl_b32 s11, s4, 10
s_add_u32 s9, s9, s11
s_lshl_b32 s11, s6, 8
s_lshl_b32 s12, s4, 16
s_lshl_b32 s13, s6, 12
s_add_u32 s12, s12, s13
s_lshl_b32 s13, s7, 9
s_add_u32 s12, s12, s13
""" + f"""
s_add_u32 s12, s12, {WS_QP}
s_movk_i32 s13, 16384
s_movk_i32 s16, 256
s_mov_b32 s19, 0
s_branch L_prod
""")
A.label("L_W1setup")
if HSKIP >= 0:
    A(f"s_add_u32 s19, s5, {7-HSKIP}\ns_lshr_b32 s19, s19, 3\ns_sub_u32 s19, s5, s19\ns_mul_i32 s8, s4, 28\ns_add_u32 s19, s19, s8")
    A(f"s_cmp_eq_u32 s7, {HSKIP}\ns_cselect_b32 s19, 255, s19")
else:
    A("s_mov_b32 s19, s2")
A(f"""
s_and_b32 s8, s19, 1
s_cmp_eq_u32 s8, 0
s_cbranch_scc0 L_W1b
s_load_dwordx2 s[44:45], s[0:1], 48
s_branch L_W1c
""")
A.label("L_W1b")
A("s_load_dwordx2 s[44:45], s[0:1], 56")
A.label("L_W1c")
A(f"""
s_mov_b32 s46, 1835008
s_movk_i32 s10, 3584
s_lshr_b32 s9, s19, 1
s_mul_i32 s11, s9, 2341
s_lshr_b32 s11, s11, 16
s_mul_i32 s12, s11, 28
s_sub_u32 s12, s9, s12
s_mul_i32 s9, s11, {128*3584}
s_lshl_b32 s13, s12, 7
s_add_u32 s9, s9, s13
s_mul_i32 s13, s8, 229376
s_lshl_b32 s12, s12, 9
s_add_u32 s12, s12, s13
s_mul_i32 s13, s11, 57344
s_add_u32 s12, s12, s13
s_add_u32 s12, s12, {WS_HP}
s_movk_i32 s13, 14336
s_lshl_b32 s11, s11, 8
s_movk_i32 s16, 224
""")
A.label("L_prod")
srd_consts(48, 4096)
A(f"""
s_mov_b32 s47, 0x20000
v_lshrrev_b32 v3, 3, v2
v_and_b32 v4, 7, v2
v_lshlrev_b32 v4, 4, v4
s_lshl_b32 s8, s10, 3
v_mul_lo_u32 v5, v3, s8
v_add_u32 v5, v5, v4
v_and_b32 v6, 15, v2
v_lshrrev_b32 v7, 2, v6
v_lshlrev_b32 v7, 10, v7
v_and_b32 v8, 1, v2
v_lshrrev_b32 v9, 4, v2
v_lshl_add_u32 v8, v9, 1, v8
v_lshl_add_u32 v7, v8, 4, v7
v_mul_lo_u32 v10, v9, s13
v_lshl_add_u32 v10, v6, 4, v10
v_cmp_le_u32 s[68:69], 8, v6
s_mul_i32 s17, s10, 57
s_cmp_ge_u32 s19, s16
s_waitcnt lgkmcnt(0)
s_cbranch_scc1 L_prod_skip
""")
XA = 80
RAW = 16
A(f"buffer_load_dwordx4 v[{XA}:{XA+3}], v7, s[48:51], s11 offen")
A(f"buffer_load_dwordx4 v[{XA+4}:{XA+7}], v7, s[48:51], s11 offen offset:128")
A("s_mov_b32 s14, s9")
for e in range(2):
    for i in range(8):
        r = RAW + (e * 8 + i) * 4
        A(f"buffer_load_dwordx4 v[{r}:{r+3}], v5, s[44:47], s14 offen{ntw}")
        if not (e == 1 and i == 7):
            A("s_add_u32 s14, s14, s17" if i == 7 else "s_add_u32 s14, s14, s10")
A(f"s_load_dword s65, s[52:53], {WS_E}")
A("s_barrier")
A(f"""
s_cmp_eq_u32 s3, 0
s_cbranch_scc0 L_prod_notag
s_waitcnt lgkmcnt(0)
s_mul_i32 s64, s65, 0x9E3779B1
s_add_u32 s64, s64, 0x7F4A7C15
v_mov_b32 v96, s64
v_mov_b32 v97, 1
v_mov_b32 v98, {L_TAG}
ds_write_b64 v98, v[96:97]
s_branch L_prod_havetag
""")
A.label("L_prod_notag")
get_tag(96)
A.label("L_prod_havetag")
PUB = 88
for k in range(4):
    A(f"v_mov_b32 v{PUB+2*k+1}, s64")
stamp(1)
ACC = 112; TMP = 96
A("s_waitcnt vmcnt(8)")
transpose_mfma(RAW, ACC, XA, TMP, True)
A("s_waitcnt vmcnt(0)")
transpose_mfma(RAW + 32, ACC, XA + 4, TMP, False)
for k in range(4):
    A(f"v_cndmask_b32 v{144+k}, v{ACC+4*k+0}, v{ACC+4*(4+k)+1}, s[68:69]")
    A(f"v_cndmask_b32 v{148+k}, v{ACC+4*(4+k)+0}, v{ACC+4*k+1}, s[68:69]")
for k in range(4):
    A(f"v_add_f32_dpp v{PUB+2*k}, v{148+k}, v{144+k} row_ror:8 row_mask:0xf bank_mask:0xf")
if FAST:
    A(f"s_cmp_eq_u32 s3, 0\ns_cbranch_scc0 L_nofastq\ns_add_u32 s29, s12, {FASTD}")
    A(f"buffer_store_dwordx4 v[{PUB}:{PUB+3}], v10, s[52:55], s29 offen")
    A(f"buffer_store_dwordx4 v[{PUB+4}:{PUB+7}], v10, s[52:55], s29 offen offset:256")
    A.label("L_nofastq")
A(f"buffer_store_dwordx4 v[{PUB}:{PUB+3}], v10, s[52:55], s12 offen sc1")
A(f"buffer_store_dwordx4 v[{PUB+4}:{PUB+7}], v10, s[52:55], s12 offen offset:256 sc1")
stamp(2)
A("s_branch L_V")
A.label("L_prod_skip")
A("s_barrier\ns_branch L_V")
A.label("L_V23")
A("""
s_cmp_eq_u32 s3, 3
s_cbranch_scc1 L_W3
s_barrier
s_branch L_V
""")
A.label("L_W3")
A(f"""
s_load_dwordx2 s[48:49], s[0:1], 0       ; x
s_load_dwordx2 s[44:45], s[0:1], 72      ; gate_w
s_setprio 3
v_mov_b32 v4, 0
v_mov_b32 v5, 0
v_mov_b32 v6, 0
v_mov_b32 v7, 0
v_mov_b32 v8, 0
ds_write_b128 v8, v[4:7]
ds_write_b128 v8, v[4:7] offset:16
ds_write_b128 v8, v[4:7] offset:32
ds_write_b128 v8, v[4:7] offset:48
s_mov_b32 s50, 4096
s_mov_b32 s51, 0x20000
s_mov_b32 s46, 1024
s_mov_b32 s47, 0x20000
v_and_b32 v4, 31, v2
v_lshlrev_b32 v4, 5, v4                  ; (l%32)*32 B : gate_w offset
v_lshrrev_b32 v5, 5, v2                  ; bb
v_lshl_add_u32 v3, v5, 10, v4
s_lshr_b32 s8, s6, 1
s_lshl_b32 s8, s8, 11                    ; 2bp*1024
s_waitcnt lgkmcnt(0)
buffer_load_dwordx4 v[16:19], v3, s[48:51], s8 offen
buffer_load_dwordx4 v[20:23], v3, s[48:51], s8 offen offset:16
buffer_load_dwordx4 v[24:27], v4, s[44:47], 0 offen
buffer_load_dwordx4 v[28:31], v4, s[44:47], 0 offen offset:16
s_barrier
s_waitcnt vmcnt(0)
v_mov_b32 v44, 0
v_mov_b32 v43, 0
s_mov_b32 s22, 0xffff0000
""")
for k in range(8):
    A(f"""
v_lshlrev_b32 v32, 16, v{16+k}
v_and_b32 v33, s22, v{16+k}
v_lshlrev_b32 v34, 16, v{24+k}
v_and_b32 v35, s22, v{24+k}
v_mul_f32 v32, v32, v34
v_mul_f32 v33, v33, v35
v_cvt_pk_bf16_f32 v36, v32, v33
v_lshlrev_b32 v37, 16, v36
v_and_b32 v38, s22, v36
v_add_f32 v44, v44, v37
v_add_f32 v43, v43, v38
""")
A("v_add_f32 v44, v44, v43")
for sh in (1, 2, 4, 8):
    A(f"v_add_f32_dpp v45, v44, v44 row_ror:{sh} row_mask:0xf bank_mask:0xf\nv_mov_b32 v44, v45")
A("""
v_mov_b32 v45, v44
v_permlane16_swap_b32 v44, v45
v_add_f32 v44, v44, v45
v_cvt_pk_bf16_f32 v44, v44, v44
v_lshlrev_b32 v44, 16, v44
v_mul_f32 v45, 0xbfb8aa3b, v44
v_exp_f32 v45, v45
v_add_f32 v45, 1.0, v45
v_rcp_f32 v45, v45
v_cvt_pk_bf16_f32 v45, v45, v45
v_lshlrev_b32 v46, 16, v45
v_sub_f32 v47, 1.0, v46
v_cvt_pk_bf16_f32 v47, v47, v47
v_lshlrev_b32 v47, 16, v47
""" + f"""
v_lshlrev_b32 v4, 3, v5                  ; bb*8
ds_write_b64 v4, v[46:47] offset:{L_G}
v_mov_b32 v5, {L_GRDY}
v_mov_b32 v6, 1
ds_write_b32 v5, v6
""")
stamp(2)
A.label("L_V")
VR = 16; ACC = 112; TMP = 96; PB = 144
A("s_setprio 1")
A(f"""
s_waitcnt lgkmcnt(0)
s_mov_b32 s48, s40
s_mov_b32 s49, s41
s_mov_b32 s50, 67108864
s_mov_b32 s51, 0x20000
s_lshl_b32 s8, s6, 3
s_add_u32 s8, s8, s4                     ; b*8+x
s_lshl_b32 s8, s8, 21
s_add_u32 s8, s8, 0x180000
s_lshl_b32 s9, s7, 16
s_add_u32 s8, s8, s9
s_lshl_b32 s9, s3, 14
s_add_u32 s8, s8, s9                     ; V base
v_and_b32 v3, 15, v2
v_lshrrev_b32 v4, 4, v2
v_lshlrev_b32 v6, 10, v4
v_lshl_add_u32 v6, v3, 4, v6             ; voffV
""")
reg = VR
for u in range(2):
    for hi in range(2):
        tile_off(2*u+hi)
        for i4 in range(4):
            A(f"buffer_load_dwordx4 v[{reg}:{reg+3}], v6, s[48:51], s10 offen offset:{i4*256}{ntf}")
            reg += 4
def viss_inc():
    A(f"v_mov_b32 v8, {L_VISS}\ns_mov_b64 exec, 1\nds_add_u32 v8, v14\ns_mov_b64 exec, -1")
A("v_mov_b32 v14, 1")
if OGATE == 0: viss_inc()
A("s_setprio 2")
stamp(3)
get_tag(8)
A(f"""
s_lshl_b32 s16, s4, 1
s_lshr_b32 s13, s6, 1
s_add_u32 s16, s16, s13                  ; x*2+bp
s_lshl_b32 s16, s16, 16                  ; *8*8192
s_and_b32 s13, s6, 1
s_lshl_b32 s13, s13, 12
s_add_u32 s16, s16, s13
s_lshl_b32 s13, s7, 9
s_add_u32 s16, s16, s13
s_lshl_b32 s13, s3, 7
s_add_u32 s16, s16, s13
s_add_u32 s16, s16, {WS_OP}
s_lshl_b32 s9, s3, 11
v_lshlrev_b32 v10, 4, v3
v_add_u32 v10, s9, v10
v_and_b32 v11, 3, v2
v_lshlrev_b32 v11, 9, v11
v_lshrrev_b32 v9, 2, v2
v_lshl_add_u32 v11, v9, 4, v11
s_lshl_b32 s9, s3, 2
s_add_u32 s9, s9, {L_OW}
v_add_u32 v11, s9, v11
v_lshrrev_b32 v12, 3, v2
v_lshlrev_b32 v12, 13, v12
v_and_b32 v9, 7, v2
v_lshl_add_u32 v12, v9, 4, v12
v_mov_b32 v153, s64
v_mov_b32 v155, s64
v_mov_b32 v13, {L_OWC}
s_lshl_b32 s9, s3, 2
s_add_u32 s9, s9, {L_PRDY}
v_mov_b32 v15, s9
s_lshl_b32 s9, s3, 11
v_lshlrev_b32 v5, 4, v2
v_add_u32 v5, s9, v5
s_lshl_b32 s9, s3, 4
v_mov_b32 v7, s9
""")
if OGATE == 1:
    A("s_waitcnt vmcnt(8)"); viss_inc()
if OGATE == 2:
    A("s_waitcnt vmcnt(0)"); viss_inc()
lds_wait(None, 1, 8, name="prdy", sleep=1, addr_is_vreg=15)
A(f"""
ds_read_b128 v[{PB}:{PB+3}], v5 offset:{L_P}
ds_read_b128 v[{PB+4}:{PB+7}], v5 offset:{L_P+1024}
""")
stamp(5)
A("s_waitcnt vmcnt(8) lgkmcnt(0)")
transpose_mfma(VR, ACC, PB, TMP, True)
lds_wait(L_FRDY, 4, 8, name="frdy", sleep=0)
A(f"ds_read_b128 v[156:159], v7 offset:{L_F}")
if FINE:
    T1 = 64 if False else 120 + 40
    T1 = 16
    for p in range(4):
        A(f"s_waitcnt vmcnt({6-2*p})")
        for j in range(8):
            k = j // 2; sel = "s66" if j % 2 == 0 else "s67"
            A(f"v_perm_b32 v{T1+4*j+p}, v{VR+32+(2*p+1)*4+k}, v{VR+32+(2*p)*4+k}, {sel}")
    stamp(6)
    for j in range(8):
        A(f"v_mfma_f32_16x16x32_bf16 v[{ACC+4*j}:{ACC+4*j+3}], v[{PB+4}:{PB+7}], v[{T1+4*j}:{T1+4*j+3}], v[{ACC+4*j}:{ACC+4*j+3}]")
else:
    A("s_waitcnt vmcnt(0)")
    stamp(6)
    transpose_mfma(VR + 32, ACC, PB + 4, TMP, False)
A("s_mov_b64 exec, 0xffff")
for j in range(8):
    A(f"ds_write_b128 v10, v[{ACC+4*j}:{ACC+4*j+3}] offset:{L_OW+j*256}")
A(f"""
ds_add_u32 v13, v14
s_mov_b64 exec, -1
""")
lds_wait(L_OWC, 64, 8, name="owc", sleep=0)
for w in range(4):
    A(f"ds_read2st64_b32 v[{16+2*w}:{17+2*w}], v11 offset0:{w*8} offset1:{w*8+1}")
A(f"""
s_waitcnt lgkmcnt(0)
v_mul_f32 v152, v16, v156
v_mul_f32 v154, v17, v156
v_fmac_f32 v152, v18, v157
v_fmac_f32 v154, v19, v157
v_fmac_f32 v152, v20, v158
v_fmac_f32 v154, v21, v158
v_fmac_f32 v152, v22, v159
v_fmac_f32 v154, v23, v159
""")
pub("v[152:155]", 12, 16)
A(f"v_mov_b32 v8, {L_OPUB}\ns_mov_b64 exec, 1\nds_add_u32 v8, v14\ns_mov_b64 exec, -1")
stamp(7)
A("s_branch L_stamp")
A.label("L_O")
RW2 = 16; R0 = 32; TH = 64; TO = 80; ACC = 112; AH = 144; AO = 148
A(f"""
s_load_dwordx2 s[56:57], s[0:1], 32      ; wo
s_load_dwordx2 s[60:61], s[0:1], 64      ; w2
s_sub_u32 s3, s3, 8                      ; cw
s_mov_b32 s58, 4194304
s_mov_b32 s59, 0x20000
s_mov_b32 s62, 1835008
s_mov_b32 s63, 0x20000
v_lshrrev_b32 v4, 4, v2                  ; g
v_bfe_u32 v3, v2, 3, 1                   ; sub'
v_and_b32 v8, 7, v2
v_lshlrev_b32 v8, 4, v8                  ; c*16
v_lshlrev_b32 v5, 17, v4
v_lshl_add_u32 v5, v3, 13, v5
v_add_u32 v5, v5, v8                     ; voffO
v_lshrrev_b32 v6, 3, v2
v_lshlrev_b32 v6, 12, v6
v_add_u32 v6, v6, v8                     ; voffW2
s_and_b32 s8, s6, 1                      ; ch
s_lshl_b32 s10, s8, 9
s_lshl_b32 s9, s3, 7
s_add_u32 s10, s10, s9
s_lshl_b32 s9, s4, 19
s_lshl_b32 s11, s7, 14
s_add_u32 s9, s9, s11
s_add_u32 s9, s9, s10
s_mul_i32 s11, s18, {28*1024}
s_add_u32 s11, s11, s10                  ; w2 base
s_lshr_b32 s17, s6, 1
s_lshl_b32 s17, s17, 7
s_lshl_b32 s13, s8, 5
s_add_u32 s17, s17, s13
s_lshl_b32 s13, s3, 3
s_add_u32 s17, s17, s13
s_lshl_b32 s17, s17, 12
s_lshl_b32 s13, s18, 6
s_add_u32 s17, s17, s13
s_add_u32 s17, s17, {WS_FP}
v_bfe_u32 v9, v2, 2, 1
v_and_b32 v11, 1, v2
v_lshl_add_u32 v11, v4, 1, v11           ; 2g+sub
v_lshlrev_b32 v7, 7, v9
v_lshl_add_u32 v7, v11, 4, v7
v_lshlrev_b32 v12, 6, v9
v_lshl_add_u32 v15, v11, 3, v12
v_cmp_eq_u32 s[20:21], 1, v3
v_cmp_le_u32 s[22:23], 32, v2            ; e = l/32
s_barrier
""")
lds_wait(L_VISS, 4, 8, name="viss", sleep=2)
stamp(3)
oc = 0
for i in range(4):
    if OTH and oc >= OTH: A(f"s_waitcnt vmcnt({OTH-1})")
    A(f"buffer_load_dwordx4 v[{RW2+4*i}:{RW2+4*i+3}], v6, s[60:63], s11 offen offset:{i*1024}{nto}"); oc += 1
A("s_add_u32 s12, s9, 4096")
for i in range(8):
    if OTH and oc >= OTH: A(f"s_waitcnt vmcnt({OTH-1})")
    A(f"buffer_load_dwordx4 v[{R0+4*i}:{R0+4*i+3}], v5, s[56:59], {'s9' if i < 4 else 's12'} offen offset:{(i%4)*1024}{nto}"); oc += 1
A("s_setprio 2")
stamp(4)
get_tag(8)
A(f"""
; FP voff = ((l/16)%2)*262144 + (e*4 + half*2 + q)*4096 + t*16
v_bfe_u32 v8, v2, 4, 1
v_lshlrev_b32 v10, 18, v8
v_lshrrev_b32 v9, 5, v2
v_lshl_add_u32 v10, v9, 14, v10
v_bfe_u32 v9, v2, 3, 1
v_lshl_add_u32 v10, v9, 13, v10
v_bfe_u32 v9, v2, 2, 1
v_lshl_add_u32 v10, v9, 12, v10
v_and_b32 v9, 3, v2
v_lshl_add_u32 v10, v9, 4, v10
v_lshlrev_b32 v11, 3, v8                 ; G addr = bb(u%2)*8
v_mov_b32 v161, s64
v_mov_b32 v163, s64
""")
lds_wait(L_HRDY, 1, 8, name="hrdy")
A(f"ds_read_b64 v[{AH}:{AH+1}], v15 offset:{L_H}")
lds_wait(L_GRDY, 1, 8, name="grdy")
A(f"""
ds_read_b64 v[12:13], v11 offset:{L_G}
s_waitcnt lgkmcnt(0)
s_waitcnt vmcnt(8)
""")
for j in range(8): Pj(RW2, j, TH + 2 * j, npair=2)
for j in range(8):
    A(f"v_mfma_f32_16x16x16_bf16 v[{ACC+4*j}:{ACC+4*j+3}], v[{AH}:{AH+1}], v[{TH+2*j}:{TH+2*j+1}], 0")
def reduce2(d0, d1):
    for k in range(4):
        A(f"v_cndmask_b32 v{152+k}, v{ACC+4*k+0}, v{ACC+4*(4+k)+1}, s[20:21]")
        A(f"v_cndmask_b32 v{156+k}, v{ACC+4*(4+k)+0}, v{ACC+4*k+1}, s[20:21]")
    A(f"v_cndmask_b32 v152, v152, v154, s[22:23]\nv_cndmask_b32 v153, v153, v155, s[22:23]")
    A(f"v_cndmask_b32 v156, v156, v158, s[22:23]\nv_cndmask_b32 v157, v157, v159, s[22:23]")
    A(f"v_add_f32_dpp v{d0}, v156, v152 row_ror:8 row_mask:0xf bank_mask:0xf")
    A(f"v_add_f32_dpp v{d1}, v157, v153 row_ror:8 row_mask:0xf bank_mask:0xf")
A("s_waitcnt vmcnt(0)")
for j in range(8): Pj(R0, j, TO + 4 * j)
reduce2(14, 15)
A("v_mul_f32 v14, v14, v13\nv_mul_f32 v15, v15, v13")
A(f"v_mov_b32 v11, {L_OPUB}\nv_mov_b32 v6, 1")
stamp(8)
lds_wait(L_OCR, 2, 8, name="ocr", sleep=0)
A(f"""
ds_read_b128 v[{AO}:{AO+3}], v7 offset:{L_OC}
s_waitcnt lgkmcnt(0)
""")
for j in range(8):
    A(f"v_mfma_f32_16x16x32_bf16 v[{ACC+4*j}:{ACC+4*j+3}], v[{AO}:{AO+3}], v[{TO+4*j}:{TO+4*j+3}], 0")
reduce2(160, 162)
A(f"""
v_fma_f32 v160, v160, v12, v14
v_fma_f32 v162, v162, v12, v15
buffer_store_dwordx4 v[160:163], v10, s[52:55], s17 offen sc1
""" + ("s_waitcnt vmcnt(0)\n" if FACK else "") + f"""
s_mov_b64 exec, 1
ds_add_u32 v11, v6
s_mov_b64 exec, -1
""")
stamp(9)
A("s_branch L_stamp")
A.label("L_K")
A(f"""
s_load_dwordx2 s[44:45], s[0:1], 8       ; K
s_setprio 2
""")
srd_consts(44, 67108864)
A(f"""
s_lshl_b32 s8, s6, 3
s_add_u32 s8, s8, s4                     ; b*8+x
s_lshl_b32 s17, s8, 9
s_lshl_b32 s8, s8, 21
s_add_u32 s8, s8, 0x180000
s_lshl_b32 s9, s7, 16
s_add_u32 s8, s8, s9
s_lshl_b32 s9, s3, 14
s_add_u32 s8, s8, s9                     ; K base
s_lshl_b32 s13, s7, 6
s_add_u32 s17, s17, s13
s_lshl_b32 s13, s3, 4
s_add_u32 s17, s17, s13
s_add_u32 s17, s17, {WS_ML}
s_lshl_b32 s12, s4, 2
s_add_u32 s12, s12, s6
s_lshl_b32 s12, s12, 14
s_lshl_b32 s13, s3, 10
s_add_u32 s12, s12, s13
s_add_u32 s12, s12, {WS_QP}
s_mov_b32 s27, {D0}
v_and_b32 v3, 15, v2
v_lshrrev_b32 v4, 4, v2
v_lshlrev_b32 v5, 8, v3
v_lshl_add_u32 v5, v4, 4, v5             ; voffK
v_lshlrev_b32 v7, 4, v2                  ; l*16
s_waitcnt lgkmcnt(0)
s_barrier
""")
KR = 16; QB = 80; S = 96; PB = 128; QG = 112
reg = KR
for t in range(4):
    tile_off(t)
    for i in range(4):
        A(f"buffer_load_dwordx4 v[{reg}:{reg+3}], v5, s[44:47], s10 offen offset:{i*64}{ntf}")
        reg += 4
stamp(1)
def qloads():
    A("s_add_u32 s28, s12, s27")
    for ks in range(4):
        A(f"s_add_u32 s13, s28, {ks*4096}")
        A(f"buffer_load_dwordx4 v[{QG+4*ks}:{QG+4*ks+3}], v7, s[52:55], s13 offen sc1")
get_tag(8)
A(f"""
v_lshrrev_b32 v10, 5, v2
v_lshlrev_b32 v10, 7, v10
v_and_b32 v11, 7, v2
v_lshl_add_u32 v10, v11, 4, v10
v_bfe_u32 v11, v2, 3, 1
v_lshl_add_u32 v10, v11, 3, v10
v_bfe_u32 v11, v2, 4, 1
v_lshl_add_u32 v10, v11, 2, v10
s_lshl_b32 s9, s3, 8
v_add_u32 v10, s9, v10
v_and_b32 v8, 3, v2
v_lshlrev_b32 v9, 8, v8
v_lshl_add_u32 v15, v4, 4, v9
v_mov_b32 v14, 1
s_lshl_b32 s9, s3, 11
v_add_u32 v6, s9, v7
s_lshl_b32 s9, s3, 5
v_lshl_add_u32 v12, v8, 3, s9
s_lshl_b32 s9, s3, 2
s_add_u32 s9, s9, {L_PRDY}
v_mov_b32 v11, s9
""")
A(f"s_waitcnt vmcnt({QPOS})")
stamp(2)
qloads()
poll_loop("q", qloads, [QG + 4 * n for n in range(4)], 8, 9, sleep=1, cntreg=96, preissued=0, fast=("alt" if FAST else False))
A("s_mov_b32 s31, s27")
NS = 2 if FAST else 1
G = 136
def haddr():
    A(f"""
    s_mul_i32 s8, s18, 28
    v_and_b32 v152, 15, v2
    v_min_u32 v152, 13, v152
    v_lshl_add_u32 v152, v152, 1, s8
    v_lshrrev_b32 v153, 6, v152
    v_lshlrev_b32 v153, 9, v153
    v_bfe_u32 v154, v152, 1, 1
    v_lshl_add_u32 v153, v154, 8, v153
    v_bfe_u32 v154, v152, 2, 1
    v_lshl_add_u32 v153, v154, 7, v153
    v_bfe_u32 v154, v152, 3, 3
    v_lshl_add_u32 v153, v154, 4, v153
    v_lshrrev_b32 v154, 5, v2
    s_mov_b32 s8, 229376
    v_mul_lo_u32 v154, v154, s8
    v_add_u32 v153, v153, v154
    v_bfe_u32 v154, v2, 4, 1                 ; bb
    s_movk_i32 s8, 14336
    v_mul_lo_u32 v154, v154, s8
    v_add_u32 v153, v153, v154
    s_and_b32 s19, s6, 2                     ; 2bp
    s_mul_i32 s19, s19, 14336
    s_add_u32 s19, s19, {WS_HP}
    """)
def hloads():
    for ks in range(4):
        A(f"s_add_u32 s8, s19, {ks*57344}")
        A(f"buffer_load_dwordx4 v[{G+4*ks}:{G+4*ks+3}], v153, s[52:55], s8 offen sc1")
stamp(3)
if HEARLY:
    haddr()
    A("s_cmp_eq_u32 s3, 1\ns_cbranch_scc0 L_nohl")
    hloads()
    A.label("L_nohl")
for c in (0, 2):
    A(f"v_add_f32 v{QG+c}, v{QG+c}, v{QG+4+c}\nv_add_f32 v{QG+8+c}, v{QG+8+c}, v{QG+12+c}")
for c in (0, 2):
    A(f"v_add_f32 v{QG+c}, v{QG+c}, v{QG+8+c}")
A(f"""
v_cvt_pk_bf16_f32 v8, v{QG}, v{QG+2}
v_mov_b32 v13, {L_QRDY}
ds_write_b32 v10, v8 offset:{L_Q}
ds_add_u32 v13, v14
""")
lds_wait(L_QRDY, 256, 8, name="qrdy", sleep=0)
for i in range(4):
    A(f"ds_read_b128 v[{QB+4*i}:{QB+4*i+3}], v15 offset:{L_Q+i*64}")
A("s_waitcnt lgkmcnt(0)")
for i in range(4):
    for t in range(4):
        r = KR + (t * 4 + i) * 4
        c = "0" if i == 0 else f"v[{S+4*t}:{S+4*t+3}]"
        A(f"v_mfma_f32_16x16x32_bf16 v[{S+4*t}:{S+4*t+3}], v[{r}:{r+3}], v[{QB+4*i}:{QB+4*i+3}], {c}")
A("s_mov_b32 s24, 0x3db504f3\ns_mov_b32 s25, 0x3fb8aa3b\ns_mov_b32 s26, 0xffff0000")
if MIMIC:
    T = 16
    for k in range(8): A(f"v_cvt_pk_bf16_f32 v{T+k}, v{S+2*k}, v{S+2*k+1}")
    for k in range(8): A(f"v_lshlrev_b32 v{S+2*k}, 16, v{T+k}\nv_and_b32 v{S+2*k+1}, s26, v{T+k}")
    for k in range(16): A(f"v_mul_f32 v{S+k}, s24, v{S+k}")
    for k in range(8): A(f"v_cvt_pk_bf16_f32 v{T+k}, v{S+2*k}, v{S+2*k+1}")
    for k in range(8): A(f"v_lshlrev_b32 v{S+2*k}, 16, v{T+k}\nv_and_b32 v{S+2*k+1}, s26, v{T+k}")
    A(f"v_max3_f32 v10, v{S}, v{S+1}, v{S+2}\nv_max3_f32 v9, v{S+3}, v{S+4}, v{S+5}")
    A(f"v_max3_f32 v10, v10, v{S+6}, v{S+7}\nv_max3_f32 v9, v9, v{S+8}, v{S+9}")
    A(f"v_max3_f32 v10, v10, v{S+10}, v{S+11}\nv_max3_f32 v9, v9, v{S+12}, v{S+13}")
    A(f"v_max3_f32 v10, v10, v{S+14}, v{S+15}\nv_max_f32 v10, v10, v9")
    SC = "s25"
else:
    A(f"v_max3_f32 v10, v{S}, v{S+1}, v{S+2}\nv_max3_f32 v9, v{S+3}, v{S+4}, v{S+5}")
    A(f"v_max3_f32 v10, v10, v{S+6}, v{S+7}\nv_max3_f32 v9, v9, v{S+8}, v{S+9}")
    A(f"v_max3_f32 v10, v10, v{S+10}, v{S+11}\nv_max3_f32 v9, v9, v{S+12}, v{S+13}")
    A(f"v_max3_f32 v10, v10, v{S+14}, v{S+15}\nv_max_f32 v10, v10, v9")
    A("s_mov_b32 s25, 0x3e0293ee")
    SC = "s25"
A(f"""
v_mov_b32 v9, v10
v_permlane16_swap_b32 v10, v9
v_max_f32 v10, v10, v9
v_mov_b32 v9, v10
v_permlane32_swap_b32 v10, v9
v_max_f32 v10, v10, v9
v_mul_f32 v10, {SC}, v10
""")
for k in range(16):
    A(f"v_fma_f32 v{S+k}, v{S+k}, {SC}, -v10")
for k in range(16):
    A(f"v_exp_f32 v{S+k}, v{S+k}")
for k in range(8):
    A(f"v_cvt_pk_bf16_f32 v{PB+k}, v{S+2*k}, v{S+2*k+1}")
A(f"""
ds_write_b128 v6, v[{PB}:{PB+3}] offset:{L_P}
ds_write_b128 v6, v[{PB+4}:{PB+7}] offset:{L_P+1024}
ds_write_b32 v11, v14
""")
stamp(4)
A(f"v_add_f32 v9, v{S}, v{S+1}\nv_add_f32 v8, v{S+2}, v{S+3}")
for k in range(4, 16, 2):
    A(f"v_add_f32 v9, v9, v{S+k}\nv_add_f32 v8, v8, v{S+k+1}")
A(f"""
v_add_f32 v11, v9, v8
v_mov_b32 v9, v11
v_permlane16_swap_b32 v11, v9
v_add_f32 v11, v11, v9
v_mov_b32 v9, v11
v_permlane32_swap_b32 v11, v9
v_add_f32 v11, v11, v9                   ; l (wave)
v_mov_b32 v13, {L_MLC}
ds_write_b64 v12, v[10:11] offset:{L_ML}
ds_add_u32 v13, v14
""")
lds_wait(L_MLC, 256, 8, name="mlc", sleep=0)
A(f"""
s_lshl_b32 s9, s3, 3
v_mov_b32 v8, s9
ds_read_b64 v[16:17], v8 offset:{L_ML}
ds_read_b64 v[18:19], v8 offset:{L_ML+32}
ds_read_b64 v[20:21], v8 offset:{L_ML+64}
ds_read_b64 v[22:23], v8 offset:{L_ML+96}
s_waitcnt lgkmcnt(0)
v_max_f32 v24, v16, v18
v_max3_f32 v24, v24, v20, v22            ; M
v_sub_f32 v28, v16, v24
v_sub_f32 v29, v18, v24
v_sub_f32 v30, v20, v24
v_sub_f32 v31, v22, v24
v_exp_f32 v28, v28
v_exp_f32 v29, v29
v_exp_f32 v30, v30
v_exp_f32 v31, v31
v_mov_b32 v25, s64
v_mov_b32 v27, s64
v_mul_f32 v26, v28, v17
v_fmac_f32 v26, v29, v19
v_fmac_f32 v26, v30, v21
v_fmac_f32 v26, v31, v23                 ; L
s_lshl_b32 s9, s3, 4
v_mov_b32 v8, s9
v_mov_b32 v9, {L_FRDY}
s_mov_b64 exec, 1
ds_write_b128 v8, v[28:31] offset:{L_F}
ds_add_u32 v9, v14
v_mov_b32 v8, 0
""")
pub("v[24:27]", 8, 17)
A("s_mov_b64 exec, -1")
stamp(5)
A("""
s_cmp_eq_u32 s3, 1
s_cbranch_scc1 L_hg
s_cmp_eq_u32 s3, 3
s_cbranch_scc1 L_fin
s_branch L_mo
""")
A.label("L_hg")
if not HEARLY: haddr()
poll_loop("h", hloads, [G + 4 * n for n in range(4)], 8, 9, cntreg=96, preissued=(NS if HEARLY else None))
for c in (0, 2):
    A(f"v_add_f32 v{G+c}, v{G+c}, v{G+4+c}\nv_add_f32 v{G+8+c}, v{G+8+c}, v{G+12+c}")
for c in (0, 2):
    A(f"v_add_f32 v{G+c}, v{G+c}, v{G+8+c}")
A(f"""
v_cvt_pk_bf16_f32 v156, v{G}, v{G+2}
v_mov_b32 v157, v156
v_permlane32_swap_b32 v156, v157
v_lshlrev_b32 v158, 16, v156
v_and_b32 v159, 0xffff0000, v156
v_lshlrev_b32 v160, 16, v157
v_and_b32 v161, 0xffff0000, v157
v_mul_f32 v162, 0xbfb8aa3b, v158
v_mul_f32 v163, 0xbfb8aa3b, v159
v_exp_f32 v162, v162
v_exp_f32 v163, v163
v_add_f32 v162, 1.0, v162
v_add_f32 v163, 1.0, v163
v_rcp_f32 v162, v162
v_rcp_f32 v163, v163
v_mul_f32 v162, v158, v162
v_mul_f32 v163, v159, v163
v_cvt_pk_bf16_f32 v162, v162, v163
v_lshlrev_b32 v163, 16, v162
v_and_b32 v162, 0xffff0000, v162
v_mul_f32 v163, v163, v160
v_mul_f32 v162, v162, v161
v_cvt_pk_bf16_f32 v162, v163, v162
v_and_b32 v164, 15, v2
v_cmp_gt_u32 vcc, 14, v164
v_cndmask_b32 v162, 0, v162, vcc
v_lshlrev_b32 v164, 2, v2                ; (bb*16 + p)*4
v_cmp_gt_u32 vcc, 32, v2
s_and_saveexec_b64 s[20:21], vcc
ds_write_b32 v164, v162 offset:{L_H}
s_mov_b64 exec, s[20:21]
v_mov_b32 v8, {L_HRDY}
v_mov_b32 v9, 1
ds_write_b32 v8, v9
""")
stamp(6)
A("s_branch L_stamp")
A.label("L_mo")
A(f"""
s_setprio 3
s_lshr_b32 s19, s3, 1                    ; bb
s_and_b32 s13, s6, 2
s_add_u32 s13, s13, s19
s_lshl_b32 s16, s13, 3
s_add_u32 s16, s16, s4
s_lshl_b32 s16, s16, 9
s_add_u32 s16, s16, {WS_ML}
s_lshl_b32 s12, s4, 1
s_lshr_b32 s13, s6, 1
s_add_u32 s12, s12, s13
s_lshl_b32 s12, s12, 3
s_add_u32 s12, s12, s7
s_lshl_b32 s12, s12, 13
s_lshl_b32 s13, s19, 12
s_add_u32 s12, s12, s13
s_add_u32 s12, s12, {WS_OP}
v_lshrrev_b32 v8, 5, v2
v_bfe_u32 v10, v2, 3, 2
v_lshlrev_b32 v8, 6, v8
v_lshl_add_u32 v152, v10, 4, v8
v_and_b32 v13, 31, v2
v_lshlrev_b32 v13, 2, v13
s_lshl_b32 s13, s19, 7
v_add_u32 v13, s13, v13
v_mov_b32 v14, {L_OCR}
v_mov_b32 v15, 1
""")
GM = 136; GO = 16
def moloads():
    A("s_add_u32 s28, s12, s27\ns_add_u32 s29, s16, s27")
    for i in range(4):
        A(f"buffer_load_dwordx4 v[{GO+4*i}:{GO+4*i+3}], v7, s[52:55], s28 offen offset:{i*1024} sc1")
    for i in range(4):
        A(f"buffer_load_dwordx4 v[{GM+4*i}:{GM+4*i+3}], v152, s[52:55], s29 offen offset:{i*128} sc1")
lds_wait(L_OPUB, 4, 8, name="opub", sleep=1)
stamp(6)
A("s_mov_b32 s27, s31")
poll_loop("mo", moloads, [GO + 4 * i for i in range(4)] + [GM + 4 * i for i in range(4)], 153, 154, sleep=0, cntreg=96, fast=FAST)
stamp(7)
A(f"""
v_max_f32 v153, v{GM}, v{GM+4}
v_max3_f32 v153, v153, v{GM+8}, v{GM+12}
v_mov_b32 v154, v153
v_permlane32_swap_b32 v153, v154
v_max_f32 v153, v153, v154
""")
for i in range(4):
    A(f"v_sub_f32 v{GM+4*i}, v{GM+4*i}, v153")
for i in range(4):
    A(f"v_exp_f32 v{GM+4*i}, v{GM+4*i}")
A(f"""
v_mul_f32 v155, v{GM}, v{GM+2}
v_mul_f32 v161, v{GM}, v{GO}
v_mul_f32 v162, v{GM}, v{GO+2}
""")
for i in range(1, 4):
    A(f"v_fmac_f32 v155, v{GM+4*i}, v{GM+4*i+2}\nv_fmac_f32 v161, v{GM+4*i}, v{GO+4*i}\nv_fmac_f32 v162, v{GM+4*i}, v{GO+4*i+2}")
A(f"""
v_mov_b32 v156, v155
v_mov_b32 v163, v161
v_mov_b32 v164, v162
v_permlane32_swap_b32 v155, v156
v_permlane32_swap_b32 v161, v163
v_permlane32_swap_b32 v162, v164
v_add_f32 v155, v155, v156
v_add_f32 v161, v161, v163
v_add_f32 v162, v162, v164
v_rcp_f32 v155, v155
s_nop 0
v_mul_f32 v161, v161, v155
v_mul_f32 v162, v162, v155
v_cvt_pk_bf16_f32 v161, v161, v162
ds_write_b32 v13, v161 offset:{L_OC}
s_mov_b64 exec, 1
ds_add_u32 v14, v15
s_mov_b64 exec, -1
""")
stamp(8)
A("s_branch L_stamp")
A.label("L_fin")
A(f"""
s_setprio 3
s_load_dwordx2 s[44:45], s[0:1], 80
s_lshl_b32 s12, s6, 18
s_lshl_b32 s8, s18, 12
s_add_u32 s12, s12, s8
s_add_u32 s12, s12, {WS_FP}
s_mov_b32 s46, 4096
s_mov_b32 s47, 0x20000
s_lshr_b32 s8, s18, 5                    ; ch'
s_lshl_b32 s8, s8, 9
s_bfe_u32 s9, s18, 0x20003               ; cw'
s_lshl_b32 s9, s9, 7
s_add_u32 s8, s8, s9
s_and_b32 s9, s18, 1                     ; q'
s_lshl_b32 s9, s9, 6
s_add_u32 s8, s8, s9
s_bfe_u32 s9, s18, 0x10001               ; half'
s_lshl_b32 s9, s9, 3
s_add_u32 s8, s8, s9
s_bfe_u32 s9, s18, 0x10002               ; e'
s_lshl_b32 s9, s9, 2
s_add_u32 s8, s8, s9
s_lshl_b32 s9, s6, 10
s_add_u32 s28, s8, s9
v_lshlrev_b32 v10, 4, v2
""")
lds_wait(L_OPUB, 8, 8, name="fpub", sleep=1)
if FDELAY: A(f"s_sleep {FDELAY}")
stamp(6)
GF = 16
def floads():
    for i in range(4):
        A(f"buffer_load_dwordx4 v[{GF+4*i}:{GF+4*i+3}], v7, s[52:55], s12 offen offset:{i*1024} sc1")
poll_loop("f", floads, [GF + 4 * i for i in range(4)], 8, 9, sleep=0, cntreg=96)
stamp(7)
for c in (0, 2):
    A(f"v_add_f32 v{GF+c}, v{GF+c}, v{GF+4+c}\nv_add_f32 v{GF+8+c}, v{GF+8+c}, v{GF+12+c}")
for c in (0, 2):
    A(f"v_add_f32 v{GF+c}, v{GF+c}, v{GF+8+c}")
for sh in (4, 8):
    for c in (0, 2):
        A(f"v_add_f32_dpp v{48+c}, v{GF+c}, v{GF+c} row_ror:{sh} row_mask:0xf bank_mask:0xf")
    for c in (0, 2):
        A(f"v_mov_b32 v{GF+c}, v{48+c}")
for sw in ("16", "32"):
    for c in (0, 2):
        A(f"v_mov_b32 v{48+c}, v{GF+c}")
    for c in (0, 2):
        A(f"v_permlane{sw}_swap_b32 v{GF+c}, v{48+c}")
    for c in (0, 2):
        A(f"v_add_f32 v{GF+c}, v{GF+c}, v{48+c}")
A(f"""
v_cvt_pk_bf16_f32 v8, v{GF}, v{GF+2}
v_cmp_gt_u32 vcc, 4, v2
s_waitcnt lgkmcnt(0)
s_and_saveexec_b64 s[20:21], vcc
buffer_store_dword v8, v10, s[44:47], s28 offen
s_mov_b64 exec, s[20:21]
s_cmp_eq_u32 s2, 0
s_cbranch_scc0 L_stamp
v_mov_b32 v8, s64
v_mov_b32 v9, {WS_E}
v_cmp_eq_u32 vcc, 0, v2
s_and_saveexec_b64 s[20:21], vcc
buffer_store_dword v8, v9, s[52:55], 0 offen
s_mov_b64 exec, s[20:21]
""")
A.label("L_stamp")
if STAMPS:
    A("s_memrealtime s[94:95]")
    if CLK: A("s_memtime s[92:93]")
    A("s_waitcnt lgkmcnt(0)")
    if CLK: A("s_sub_u32 s96, s92, s90")
    A(f"""
s_lshl_b32 s9, s2, 4
s_add_u32 s9, s9, s99
s_mul_i32 s9, s9, {NST*8}
s_add_u32 s9, s9, {STAMPOFF}
v_mov_b32 v4, 0
s_mov_b64 exec, 1
""")
    if CLK: A("s_mov_b64 s[90:91], 0\ns_mov_b64 s[92:93], 0")
    for k in range(0, NST, 2):
        A(f"v_mov_b32 v10, s{70+2*k}\nv_mov_b32 v11, s{71+2*k}\nv_mov_b32 v12, s{72+2*k}\nv_mov_b32 v13, s{73+2*k}")
        A(f"buffer_store_dwordx4 v[10:13], v4, s[52:55], s9 offen offset:{k*8}")
        A("s_nop 1")
A.label("L_end")
body = A.text()
if STAMPS:
    z = "".join(f"    s_mov_b64 s[{70+2*k}:{71+2*k}], 0\n" for k in range(NST))
    body = z + body
body = hazard.fix(body, verbose=True)
open(sys.argv[1], "w").write(wrap(body, 256, 768, LDS_BYTES, 168, 102))
```

```python
import sys
from asmgen import *
import hazard

opt = dict(a.split("=") for a in sys.argv[2:])
def O(name, default): return type(default)(opt.get(name, default)) if not isinstance(default, bool) else opt.get(name, "1" if default else "0") == "1"
STAMPS = O("stamps", False)
MIMIC = O("mimic", True)
NT = O("nt", True)
NTW = O("ntw", True)
NTO = O("nto", False)
QPOS = O("qpos", 8)
SPINMAX = O("spinmax", 20000)
FAST = O("fast", True)
FDELAY = O("fdelay", 0)
CLK = O("clk", False)
ROT = O("rot", True)
FINE = O("fine", True)
KVROT = O("kvrot", True)
OGATE = O("ogate", 0)
HEARLY = O("hearly", True)
OTH = O("oth", 0)
FACK = O("fack", 0)
DBG = O("dbg", False)
HSKIP = O("hskip", -1)
ntf = " nt" if NT else ""
ntw = " nt" if NTW else ""
nto = " nt" if NTO else ""

WS_E   = 0
WS_QP  = 0x10000
WS_HP  = 0x100000
WS_ML  = 0x180000
WS_OP  = 0x200000
WS_FP  = 0x300000
FASTD  = 0x400000
WS_SIZE = 268435456
STAMPOFF = 0x8000000
NST = 14
L_TAG = 0
L_QRDY = 8
L_HRDY = 12
L_VISS = 16
L_MLC = 20
L_FRDY = 24
L_OWC = 28
L_OCR = 32
L_GRDY = 36
L_OPUB = 40
L_PRDY = 48
L_Q = 0x100
L_ML = 0x500
L_F = 0x580
L_H = 0x600
L_G = 0x680
L_OC = 0x700
L_OW = 0x800
L_P = 0x2800
LDS_BYTES = 0x4800

A = Asm()
def stamp(k):
    if STAMPS: A(f"s_memrealtime s[{70+2*k}:{71+2*k}]")
def srd_consts(d, size):
    A(f"s_mov_b32 s{d+2}, {size}\ns_mov_b32 s{d+3}, 0x20000")

def lds_wait(addr, val, vt, name="w", sleep=1, addr_is_vreg=None):
    L = A.newlabel("Lw_" + name); Ld = A.newlabel("Lwd_" + name)
    if addr_is_vreg is None:
        A(f"v_mov_b32 v{vt+1}, {addr}"); av = vt + 1
    else: av = addr_is_vreg
    A(f"s_mov_b32 s15, 0")
    A.label(L)
    A(f"""
ds_read_b32 v{vt}, v{av}
s_waitcnt lgkmcnt(0)
v_readfirstlane_b32 s14, v{vt}
s_add_u32 s15, s15, 1
s_cmp_ge_u32 s14, {val}
s_cbranch_scc1 {Ld}
s_cmp_lt_u32 s15, {SPINMAX*16}
""" + (f"s_sleep {sleep}\n" if sleep else "") + f"s_cbranch_scc1 {L}")
    A.label(Ld)

def get_tag(vt):
    L = A.newlabel("Ltag"); Ld = A.newlabel("Ltagd")
    A(f"v_mov_b32 v{vt+2}, {L_TAG}\ns_mov_b32 s15, 0")
    A.label(L)
    A(f"""
ds_read_b64 v[{vt}:{vt+1}], v{vt+2}
s_waitcnt lgkmcnt(0)
v_readfirstlane_b32 s14, v{vt+1}
v_readfirstlane_b32 s64, v{vt}
s_add_u32 s15, s15, 1
s_cmp_eq_u32 s14, 1
s_cbranch_scc1 {Ld}
s_cmp_lt_u32 s15, {SPINMAX*16}
s_sleep 1
s_cbranch_scc1 {L}
""")
    A.label(Ld)

def Pj(raw, j, t, npair=4):
    k = j // 2; sel = "s66" if j % 2 == 0 else "s67"
    for p in range(npair):
        A(f"v_perm_b32 v{t+p}, v{raw+(2*p+1)*4+k}, v{raw+(2*p)*4+k}, {sel}")

def transpose_mfma(raw, acc, aop, tmp, first):
    def P(j): Pj(raw, j, tmp + 4 * (j % 3))
    def M(j):
        t = tmp + 4 * (j % 3)
        c = "0" if first else f"v[{acc+4*j}:{acc+4*j+3}]"
        A(f"v_mfma_f32_16x16x32_bf16 v[{acc+4*j}:{acc+4*j+3}], v[{aop}:{aop+3}], v[{t}:{t+3}], {c}")
    P(0); P(1); M(0)
    for j in range(2, 8):
        P(j); M(j - 1)
    M(7)

def transpose_only(raw, dst):
    for j in range(8): Pj(raw, j, dst + 4 * j)

def tagcheck(regs, vmin, vmax):
    first = True
    for r in regs:
        if first:
            A(f"v_min_u32 v{vmin}, v{r+1}, v{r+3}\nv_max_u32 v{vmax}, v{r+1}, v{r+3}"); first = False
        else:
            A(f"v_min3_u32 v{vmin}, v{vmin}, v{r+1}, v{r+3}\nv_max3_u32 v{vmax}, v{vmax}, v{r+1}, v{r+3}")
    A(f"v_xor_b32 v{vmin}, s64, v{vmin}\nv_xor_b32 v{vmax}, s64, v{vmax}\nv_or_b32 v{vmin}, v{vmin}, v{vmax}\nv_cmp_ne_u32 vcc, 0, v{vmin}")

def poll_loop(name, emit_loads, regs, vmin, vmax, sleep=2, cntreg=None, preissued=None, fast=False):
    L = A.newlabel("Lp_" + name); Ld = A.newlabel("Lpd_" + name); Lc = A.newlabel("Lpc_" + name)
    A("s_mov_b32 s15, 0")
    if preissued is not None:
        A(f"s_waitcnt vmcnt({preissued})")
        A(f"s_branch {Lc}")
    A.label(L)
    if fast == "alt":
        A(f"s_and_b32 s14, s15, 1\ns_cmp_eq_u32 s14, 1\ns_cselect_b32 s27, 0, {FASTD}")
    elif fast:
        A(f"s_sub_u32 s30, {FASTD}, s31\ns_and_b32 s14, s15, 3\ns_cmp_eq_u32 s14, 3\ns_cselect_b32 s27, s30, s31")
    emit_loads()
    A("s_waitcnt vmcnt(0)")
    A.label(Lc)
    tagcheck(regs, vmin, vmax)
    A(f"""
s_add_u32 s15, s15, 1
s_cbranch_vccz {Ld}
s_cmp_lt_u32 s15, {SPINMAX}
""" + (f"s_sleep {sleep}\n" if sleep else "") + f"s_cbranch_scc1 {L}")
    A.label(Ld)
    if cntreg is not None: A(f"s_mov_b32 s{cntreg}, s15")

def pub(regs, voff, soff, off=0, fast=True):
    o = f" offset:{off}" if off else ""
    if fast and FAST:
        A(f"s_add_u32 s29, s{soff}, {FASTD}")
        A(f"buffer_store_dwordx4 {regs}, v{voff}, s[52:55], s29 offen{o}")
    A(f"buffer_store_dwordx4 {regs}, v{voff}, s[52:55], s{soff} offen{o} sc1")

D0 = FASTD if FAST else 0
def tile_off(t):
    if KVROT:
        A(f"s_add_u32 s10, s7, {t}\ns_and_b32 s10, s10, 3\ns_lshl_b32 s10, s10, 12\ns_add_u32 s10, s10, s8")
    else:
        A(f"s_add_u32 s10, s8, {t*4096}")
A("""
s_cmp_ge_u32 s2, 256
s_cbranch_scc1 L_end
v_lshrrev_b32 v1, 6, v0
v_and_b32 v2, 63, v0
v_readfirstlane_b32 s3, v1
s_and_b32 s4, s2, 7
s_lshr_b32 s5, s2, 3                     ; r
s_lshr_b32 s6, s5, 3                     ; b
s_and_b32 s7, s5, 7                      ; s (split)
s_lshl_b32 s18, s4, 3
s_add_u32 s18, s18, s7                   ; j = x*8 + s
s_mov_b32 s66, 0x05040100
s_mov_b32 s67, 0x07060302
s_load_dwordx2 s[52:53], s[0:1], 96      ; ws
""")
stamp(0)
if CLK: A("s_memtime s[90:91]")
srd_consts(52, WS_SIZE)
A("""
s_mov_b32 s99, s3
s_cmp_lt_u32 s3, 4
s_cbranch_scc1 L_K
s_cmp_ge_u32 s3, 8
s_cbranch_scc1 L_O
s_load_dwordx2 s[40:41], s[0:1], 16      ; V
s_sub_u32 s3, s3, 4                      ; a
s_cmp_ge_u32 s3, 2
s_cbranch_scc1 L_V23
""")
A("s_load_dwordx2 s[48:49], s[0:1], 0")
A("s_setprio 3")
A("""
s_cmp_eq_u32 s3, 0
s_cbranch_scc0 L_W1setup
s_load_dwordx2 s[44:45], s[0:1], 24
s_mov_b32 s46, 4194304
s_movk_i32 s10, 8192
s_lshl_b32 s9, s6, 20
s_lshl_b32 s11, s7, 7
s_add_u32 s9, s9, s11
s_lshl_b32 s11, s4, 10
s_add_u32 s9, s9, s11
s_lshl_b32 s11, s6, 8
s_lshl_b32 s12, s4, 16
s_lshl_b32 s13, s6, 12
s_add_u32 s12, s12, s13
s_lshl_b32 s13, s7, 9
s_add_u32 s12, s12, s13
""" + f"""
s_add_u32 s12, s12, {WS_QP}
s_movk_i32 s13, 16384
s_movk_i32 s16, 256
s_mov_b32 s19, 0
s_branch L_prod
""")
A.label("L_W1setup")
if HSKIP >= 0:
    A(f"s_add_u32 s19, s5, {7-HSKIP}\ns_lshr_b32 s19, s19, 3\ns_sub_u32 s19, s5, s19\ns_mul_i32 s8, s4, 28\ns_add_u32 s19, s19, s8")
    A(f"s_cmp_eq_u32 s7, {HSKIP}\ns_cselect_b32 s19, 255, s19")
else:
    A("s_mov_b32 s19, s2")
A(f"""
s_and_b32 s8, s19, 1
s_cmp_eq_u32 s8, 0
s_cbranch_scc0 L_W1b
s_load_dwordx2 s[44:45], s[0:1], 48
s_branch L_W1c
""")
A.label("L_W1b")
A("s_load_dwordx2 s[44:45], s[0:1], 56")
A.label("L_W1c")
A(f"""
s_mov_b32 s46, 1835008
s_movk_i32 s10, 3584
s_lshr_b32 s9, s19, 1
s_mul_i32 s11, s9, 2341
s_lshr_b32 s11, s11, 16
s_mul_i32 s12, s11, 28
s_sub_u32 s12, s9, s12
s_mul_i32 s9, s11, {128*3584}
s_lshl_b32 s13, s12, 7
s_add_u32 s9, s9, s13
s_mul_i32 s13, s8, 229376
s_lshl_b32 s12, s12, 9
s_add_u32 s12, s12, s13
s_mul_i32 s13, s11, 57344
s_add_u32 s12, s12, s13
s_add_u32 s12, s12, {WS_HP}
s_movk_i32 s13, 14336
s_lshl_b32 s11, s11, 8
s_movk_i32 s16, 224
""")
A.label("L_prod")
srd_consts(48, 4096)
A(f"""
s_mov_b32 s47, 0x20000
v_lshrrev_b32 v3, 3, v2
v_and_b32 v4, 7, v2
v_lshlrev_b32 v4, 4, v4
s_lshl_b32 s8, s10, 3
v_mul_lo_u32 v5, v3, s8
v_add_u32 v5, v5, v4
v_and_b32 v6, 15, v2
v_lshrrev_b32 v7, 2, v6
v_lshlrev_b32 v7, 10, v7
v_and_b32 v8, 1, v2
v_lshrrev_b32 v9, 4, v2
v_lshl_add_u32 v8, v9, 1, v8
v_lshl_add_u32 v7, v8, 4, v7
v_mul_lo_u32 v10, v9, s13
v_lshl_add_u32 v10, v6, 4, v10
v_cmp_le_u32 s[68:69], 8, v6
s_mul_i32 s17, s10, 57
s_cmp_ge_u32 s19, s16
s_waitcnt lgkmcnt(0)
s_cbranch_scc1 L_prod_skip
""")
XA = 80
RAW = 16
A(f"buffer_load_dwordx4 v[{XA}:{XA+3}], v7, s[48:51], s11 offen")
A(f"buffer_load_dwordx4 v[{XA+4}:{XA+7}], v7, s[48:51], s11 offen offset:128")
A("s_mov_b32 s14, s9")
for e in range(2):
    for i in range(8):
        r = RAW + (e * 8 + i) * 4
        A(f"buffer_load_dwordx4 v[{r}:{r+3}], v5, s[44:47], s14 offen{ntw}")
        if not (e == 1 and i == 7):
            A("s_add_u32 s14, s14, s17" if i == 7 else "s_add_u32 s14, s14, s10")
A(f"s_load_dword s65, s[52:53], {WS_E}")
A("s_barrier")
A(f"""
s_cmp_eq_u32 s3, 0
s_cbranch_scc0 L_prod_notag
s_waitcnt lgkmcnt(0)
s_mul_i32 s64, s65, 0x9E3779B1
s_add_u32 s64, s64, 0x7F4A7C15
v_mov_b32 v96, s64
v_mov_b32 v97, 1
v_mov_b32 v98, {L_TAG}
ds_write_b64 v98, v[96:97]
s_branch L_prod_havetag
""")
A.label("L_prod_notag")
get_tag(96)
A.label("L_prod_havetag")
PUB = 88
for k in range(4):
    A(f"v_mov_b32 v{PUB+2*k+1}, s64")
stamp(1)
ACC = 112; TMP = 96
A("s_waitcnt vmcnt(8)")
transpose_mfma(RAW, ACC, XA, TMP, True)
A("s_waitcnt vmcnt(0)")
transpose_mfma(RAW + 32, ACC, XA + 4, TMP, False)
for k in range(4):
    A(f"v_cndmask_b32 v{144+k}, v{ACC+4*k+0}, v{ACC+4*(4+k)+1}, s[68:69]")
    A(f"v_cndmask_b32 v{148+k}, v{ACC+4*(4+k)+0}, v{ACC+4*k+1}, s[68:69]")
for k in range(4):
    A(f"v_add_f32_dpp v{PUB+2*k}, v{148+k}, v{144+k} row_ror:8 row_mask:0xf bank_mask:0xf")
if FAST:
    A(f"s_cmp_eq_u32 s3, 0\ns_cbranch_scc0 L_nofastq\ns_add_u32 s29, s12, {FASTD}")
    A(f"buffer_store_dwordx4 v[{PUB}:{PUB+3}], v10, s[52:55], s29 offen")
    A(f"buffer_store_dwordx4 v[{PUB+4}:{PUB+7}], v10, s[52:55], s29 offen offset:256")
    A.label("L_nofastq")
A(f"buffer_store_dwordx4 v[{PUB}:{PUB+3}], v10, s[52:55], s12 offen sc1")
A(f"buffer_store_dwordx4 v[{PUB+4}:{PUB+7}], v10, s[52:55], s12 offen offset:256 sc1")
stamp(2)
A("s_branch L_V")
A.label("L_prod_skip")
A("s_barrier\ns_branch L_V")
A.label("L_V23")
A("""
s_cmp_eq_u32 s3, 3
s_cbranch_scc1 L_W3
s_barrier
s_branch L_V
""")
A.label("L_W3")
A(f"""
s_load_dwordx2 s[48:49], s[0:1], 0       ; x
s_load_dwordx2 s[44:45], s[0:1], 72      ; gate_w
s_setprio 3
v_mov_b32 v4, 0
v_mov_b32 v5, 0
v_mov_b32 v6, 0
v_mov_b32 v7, 0
v_mov_b32 v8, 0
ds_write_b128 v8, v[4:7]
ds_write_b128 v8, v[4:7] offset:16
ds_write_b128 v8, v[4:7] offset:32
ds_write_b128 v8, v[4:7] offset:48
s_mov_b32 s50, 4096
s_mov_b32 s51, 0x20000
s_mov_b32 s46, 1024
s_mov_b32 s47, 0x20000
v_and_b32 v4, 31, v2
v_lshlrev_b32 v4, 5, v4                  ; (l%32)*32 B : gate_w offset
v_lshrrev_b32 v5, 5, v2                  ; bb
v_lshl_add_u32 v3, v5, 10, v4
s_lshr_b32 s8, s6, 1
s_lshl_b32 s8, s8, 11                    ; 2bp*1024
s_waitcnt lgkmcnt(0)
buffer_load_dwordx4 v[16:19], v3, s[48:51], s8 offen
buffer_load_dwordx4 v[20:23], v3, s[48:51], s8 offen offset:16
buffer_load_dwordx4 v[24:27], v4, s[44:47], 0 offen
buffer_load_dwordx4 v[28:31], v4, s[44:47], 0 offen offset:16
s_barrier
s_waitcnt vmcnt(0)
v_mov_b32 v44, 0
v_mov_b32 v43, 0
s_mov_b32 s22, 0xffff0000
""")
for k in range(8):
    A(f"""
v_lshlrev_b32 v32, 16, v{16+k}
v_and_b32 v33, s22, v{16+k}
v_lshlrev_b32 v34, 16, v{24+k}
v_and_b32 v35, s22, v{24+k}
v_mul_f32 v32, v32, v34
v_mul_f32 v33, v33, v35
v_cvt_pk_bf16_f32 v36, v32, v33
v_lshlrev_b32 v37, 16, v36
v_and_b32 v38, s22, v36
v_add_f32 v44, v44, v37
v_add_f32 v43, v43, v38
""")
A("v_add_f32 v44, v44, v43")
for sh in (1, 2, 4, 8):
    A(f"v_add_f32_dpp v45, v44, v44 row_ror:{sh} row_mask:0xf bank_mask:0xf\nv_mov_b32 v44, v45")
A("""
v_mov_b32 v45, v44
v_permlane16_swap_b32 v44, v45
v_add_f32 v44, v44, v45
v_cvt_pk_bf16_f32 v44, v44, v44
v_lshlrev_b32 v44, 16, v44
v_mul_f32 v45, 0xbfb8aa3b, v44
v_exp_f32 v45, v45
v_add_f32 v45, 1.0, v45
v_rcp_f32 v45, v45
v_cvt_pk_bf16_f32 v45, v45, v45
v_lshlrev_b32 v46, 16, v45
v_sub_f32 v47, 1.0, v46
v_cvt_pk_bf16_f32 v47, v47, v47
v_lshlrev_b32 v47, 16, v47
""" + f"""
v_lshlrev_b32 v4, 3, v5                  ; bb*8
ds_write_b64 v4, v[46:47] offset:{L_G}
v_mov_b32 v5, {L_GRDY}
v_mov_b32 v6, 1
ds_write_b32 v5, v6
""")
stamp(2)
A.label("L_V")
VR = 16; ACC = 112; TMP = 96; PB = 144
A("s_setprio 1")
A(f"""
s_waitcnt lgkmcnt(0)
s_mov_b32 s48, s40
s_mov_b32 s49, s41
s_mov_b32 s50, 67108864
s_mov_b32 s51, 0x20000
s_lshl_b32 s8, s6, 3
s_add_u32 s8, s8, s4                     ; b*8+x
s_lshl_b32 s8, s8, 21
s_add_u32 s8, s8, 0x180000
s_lshl_b32 s9, s7, 16
s_add_u32 s8, s8, s9
s_lshl_b32 s9, s3, 14
s_add_u32 s8, s8, s9                     ; V base
v_and_b32 v3, 15, v2
v_lshrrev_b32 v4, 4, v2
v_lshlrev_b32 v6, 10, v4
v_lshl_add_u32 v6, v3, 4, v6             ; voffV
""")
reg = VR
for u in range(2):
    for hi in range(2):
        tile_off(2*u+hi)
        for i4 in range(4):
            A(f"buffer_load_dwordx4 v[{reg}:{reg+3}], v6, s[48:51], s10 offen offset:{i4*256}{ntf}")
            reg += 4
def viss_inc():
    A(f"v_mov_b32 v8, {L_VISS}\ns_mov_b64 exec, 1\nds_add_u32 v8, v14\ns_mov_b64 exec, -1")
A("v_mov_b32 v14, 1")
if OGATE == 0: viss_inc()
A("s_setprio 2")
stamp(3)
get_tag(8)
A(f"""
s_lshl_b32 s16, s4, 1
s_lshr_b32 s13, s6, 1
s_add_u32 s16, s16, s13                  ; x*2+bp
s_lshl_b32 s16, s16, 16                  ; *8*8192
s_and_b32 s13, s6, 1
s_lshl_b32 s13, s13, 12
s_add_u32 s16, s16, s13
s_lshl_b32 s13, s7, 9
s_add_u32 s16, s16, s13
s_lshl_b32 s13, s3, 7
s_add_u32 s16, s16, s13
s_add_u32 s16, s16, {WS_OP}
s_lshl_b32 s9, s3, 11
v_lshlrev_b32 v10, 4, v3
v_add_u32 v10, s9, v10
v_and_b32 v11, 3, v2
v_lshlrev_b32 v11, 9, v11
v_lshrrev_b32 v9, 2, v2
v_lshl_add_u32 v11, v9, 4, v11
s_lshl_b32 s9, s3, 2
s_add_u32 s9, s9, {L_OW}
v_add_u32 v11, s9, v11
v_lshrrev_b32 v12, 3, v2
v_lshlrev_b32 v12, 13, v12
v_and_b32 v9, 7, v2
v_lshl_add_u32 v12, v9, 4, v12
v_mov_b32 v153, s64
v_mov_b32 v155, s64
v_mov_b32 v13, {L_OWC}
s_lshl_b32 s9, s3, 2
s_add_u32 s9, s9, {L_PRDY}
v_mov_b32 v15, s9
s_lshl_b32 s9, s3, 11
v_lshlrev_b32 v5, 4, v2
v_add_u32 v5, s9, v5
s_lshl_b32 s9, s3, 4
v_mov_b32 v7, s9
""")
if OGATE == 1:
    A("s_waitcnt vmcnt(8)"); viss_inc()
if OGATE == 2:
    A("s_waitcnt vmcnt(0)"); viss_inc()
lds_wait(None, 1, 8, name="prdy", sleep=1, addr_is_vreg=15)
A(f"""
ds_read_b128 v[{PB}:{PB+3}], v5 offset:{L_P}
ds_read_b128 v[{PB+4}:{PB+7}], v5 offset:{L_P+1024}
""")
stamp(5)
A("s_waitcnt vmcnt(8) lgkmcnt(0)")
transpose_mfma(VR, ACC, PB, TMP, True)
lds_wait(L_FRDY, 4, 8, name="frdy", sleep=0)
A(f"ds_read_b128 v[156:159], v7 offset:{L_F}")
if FINE:
    T1 = 64 if False else 120 + 40
    T1 = 16
    for p in range(4):
        A(f"s_waitcnt vmcnt({6-2*p})")
        for j in range(8):
            k = j // 2; sel = "s66" if j % 2 == 0 else "s67"
            A(f"v_perm_b32 v{T1+4*j+p}, v{VR+32+(2*p+1)*4+k}, v{VR+32+(2*p)*4+k}, {sel}")
    stamp(6)
    for j in range(8):
        A(f"v_mfma_f32_16x16x32_bf16 v[{ACC+4*j}:{ACC+4*j+3}], v[{PB+4}:{PB+7}], v[{T1+4*j}:{T1+4*j+3}], v[{ACC+4*j}:{ACC+4*j+3}]")
else:
    A("s_waitcnt vmcnt(0)")
    stamp(6)
    transpose_mfma(VR + 32, ACC, PB + 4, TMP, False)
A("s_mov_b64 exec, 0xffff")
for j in range(8):
    A(f"ds_write_b128 v10, v[{ACC+4*j}:{ACC+4*j+3}] offset:{L_OW+j*256}")
A(f"""
ds_add_u32 v13, v14
s_mov_b64 exec, -1
""")
lds_wait(L_OWC, 64, 8, name="owc", sleep=0)
for w in range(4):
    A(f"ds_read2st64_b32 v[{16+2*w}:{17+2*w}], v11 offset0:{w*8} offset1:{w*8+1}")
A(f"""
s_waitcnt lgkmcnt(0)
v_mul_f32 v152, v16, v156
v_mul_f32 v154, v17, v156
v_fmac_f32 v152, v18, v157
v_fmac_f32 v154, v19, v157
v_fmac_f32 v152, v20, v158
v_fmac_f32 v154, v21, v158
v_fmac_f32 v152, v22, v159
v_fmac_f32 v154, v23, v159
""")
pub("v[152:155]", 12, 16)
A(f"v_mov_b32 v8, {L_OPUB}\ns_mov_b64 exec, 1\nds_add_u32 v8, v14\ns_mov_b64 exec, -1")
stamp(7)
A("s_branch L_stamp")
A.label("L_O")
RW2 = 16; R0 = 32; TH = 64; TO = 80; ACC = 112; AH = 144; AO = 148
A(f"""
s_load_dwordx2 s[56:57], s[0:1], 32      ; wo
s_load_dwordx2 s[60:61], s[0:1], 64      ; w2
s_sub_u32 s3, s3, 8                      ; cw
s_mov_b32 s58, 4194304
s_mov_b32 s59, 0x20000
s_mov_b32 s62, 1835008
s_mov_b32 s63, 0x20000
v_lshrrev_b32 v4, 4, v2                  ; g
v_bfe_u32 v3, v2, 3, 1                   ; sub'
v_and_b32 v8, 7, v2
v_lshlrev_b32 v8, 4, v8                  ; c*16
v_lshlrev_b32 v5, 17, v4
v_lshl_add_u32 v5, v3, 13, v5
v_add_u32 v5, v5, v8                     ; voffO
v_lshrrev_b32 v6, 3, v2
v_lshlrev_b32 v6, 12, v6
v_add_u32 v6, v6, v8                     ; voffW2
s_and_b32 s8, s6, 1                      ; ch
s_lshl_b32 s10, s8, 9
s_lshl_b32 s9, s3, 7
s_add_u32 s10, s10, s9
s_lshl_b32 s9, s4, 19
s_lshl_b32 s11, s7, 14
s_add_u32 s9, s9, s11
s_add_u32 s9, s9, s10
s_mul_i32 s11, s18, {28*1024}
s_add_u32 s11, s11, s10                  ; w2 base
s_lshr_b32 s17, s6, 1
s_lshl_b32 s17, s17, 7
s_lshl_b32 s13, s8, 5
s_add_u32 s17, s17, s13
s_lshl_b32 s13, s3, 3
s_add_u32 s17, s17, s13
s_lshl_b32 s17, s17, 12
s_lshl_b32 s13, s18, 6
s_add_u32 s17, s17, s13
s_add_u32 s17, s17, {WS_FP}
v_bfe_u32 v9, v2, 2, 1
v_and_b32 v11, 1, v2
v_lshl_add_u32 v11, v4, 1, v11           ; 2g+sub
v_lshlrev_b32 v7, 7, v9
v_lshl_add_u32 v7, v11, 4, v7
v_lshlrev_b32 v12, 6, v9
v_lshl_add_u32 v15, v11, 3, v12
v_cmp_eq_u32 s[20:21], 1, v3
v_cmp_le_u32 s[22:23], 32, v2            ; e = l/32
s_barrier
""")
lds_wait(L_VISS, 4, 8, name="viss", sleep=2)
stamp(3)
oc = 0
for i in range(4):
    if OTH and oc >= OTH: A(f"s_waitcnt vmcnt({OTH-1})")
    A(f"buffer_load_dwordx4 v[{RW2+4*i}:{RW2+4*i+3}], v6, s[60:63], s11 offen offset:{i*1024}{nto}"); oc += 1
A("s_add_u32 s12, s9, 4096")
for i in range(8):
    if OTH and oc >= OTH: A(f"s_waitcnt vmcnt({OTH-1})")
    A(f"buffer_load_dwordx4 v[{R0+4*i}:{R0+4*i+3}], v5, s[56:59], {'s9' if i < 4 else 's12'} offen offset:{(i%4)*1024}{nto}"); oc += 1
A("s_setprio 2")
stamp(4)
get_tag(8)
A(f"""
; FP voff = ((l/16)%2)*262144 + (e*4 + half*2 + q)*4096 + t*16
v_bfe_u32 v8, v2, 4, 1
v_lshlrev_b32 v10, 18, v8
v_lshrrev_b32 v9, 5, v2
v_lshl_add_u32 v10, v9, 14, v10
v_bfe_u32 v9, v2, 3, 1
v_lshl_add_u32 v10, v9, 13, v10
v_bfe_u32 v9, v2, 2, 1
v_lshl_add_u32 v10, v9, 12, v10
v_and_b32 v9, 3, v2
v_lshl_add_u32 v10, v9, 4, v10
v_lshlrev_b32 v11, 3, v8                 ; G addr = bb(u%2)*8
v_mov_b32 v161, s64
v_mov_b32 v163, s64
""")
lds_wait(L_HRDY, 1, 8, name="hrdy")
A(f"ds_read_b64 v[{AH}:{AH+1}], v15 offset:{L_H}")
lds_wait(L_GRDY, 1, 8, name="grdy")
A(f"""
ds_read_b64 v[12:13], v11 offset:{L_G}
s_waitcnt lgkmcnt(0)
s_waitcnt vmcnt(8)
""")
for j in range(8): Pj(RW2, j, TH + 2 * j, npair=2)
for j in range(8):
    A(f"v_mfma_f32_16x16x16_bf16 v[{ACC+4*j}:{ACC+4*j+3}], v[{AH}:{AH+1}], v[{TH+2*j}:{TH+2*j+1}], 0")
def reduce2(d0, d1):
    for k in range(4):
        A(f"v_cndmask_b32 v{152+k}, v{ACC+4*k+0}, v{ACC+4*(4+k)+1}, s[20:21]")
        A(f"v_cndmask_b32 v{156+k}, v{ACC+4*(4+k)+0}, v{ACC+4*k+1}, s[20:21]")
    A(f"v_cndmask_b32 v152, v152, v154, s[22:23]\nv_cndmask_b32 v153, v153, v155, s[22:23]")
    A(f"v_cndmask_b32 v156, v156, v158, s[22:23]\nv_cndmask_b32 v157, v157, v159, s[22:23]")
    A(f"v_add_f32_dpp v{d0}, v156, v152 row_ror:8 row_mask:0xf bank_mask:0xf")
    A(f"v_add_f32_dpp v{d1}, v157, v153 row_ror:8 row_mask:0xf bank_mask:0xf")
A("s_waitcnt vmcnt(0)")
for j in range(8): Pj(R0, j, TO + 4 * j)
reduce2(14, 15)
A("v_mul_f32 v14, v14, v13\nv_mul_f32 v15, v15, v13")
A(f"v_mov_b32 v11, {L_OPUB}\nv_mov_b32 v6, 1")
stamp(8)
lds_wait(L_OCR, 2, 8, name="ocr", sleep=0)
A(f"""
ds_read_b128 v[{AO}:{AO+3}], v7 offset:{L_OC}
s_waitcnt lgkmcnt(0)
""")
for j in range(8):
    A(f"v_mfma_f32_16x16x32_bf16 v[{ACC+4*j}:{ACC+4*j+3}], v[{AO}:{AO+3}], v[{TO+4*j}:{TO+4*j+3}], 0")
reduce2(160, 162)
A(f"""
v_fma_f32 v160, v160, v12, v14
v_fma_f32 v162, v162, v12, v15
buffer_store_dwordx4 v[160:163], v10, s[52:55], s17 offen sc1
""" + ("s_waitcnt vmcnt(0)\n" if FACK else "") + f"""
s_mov_b64 exec, 1
ds_add_u32 v11, v6
s_mov_b64 exec, -1
""")
stamp(9)
A("s_branch L_stamp")
A.label("L_K")
A(f"""
s_load_dwordx2 s[44:45], s[0:1], 8       ; K
s_setprio 2
""")
srd_consts(44, 67108864)
A(f"""
s_lshl_b32 s8, s6, 3
s_add_u32 s8, s8, s4                     ; b*8+x
s_lshl_b32 s17, s8, 9
s_lshl_b32 s8, s8, 21
s_add_u32 s8, s8, 0x180000
s_lshl_b32 s9, s7, 16
s_add_u32 s8, s8, s9
s_lshl_b32 s9, s3, 14
s_add_u32 s8, s8, s9                     ; K base
s_lshl_b32 s13, s7, 6
s_add_u32 s17, s17, s13
s_lshl_b32 s13, s3, 4
s_add_u32 s17, s17, s13
s_add_u32 s17, s17, {WS_ML}
s_lshl_b32 s12, s4, 2
s_add_u32 s12, s12, s6
s_lshl_b32 s12, s12, 14
s_lshl_b32 s13, s3, 10
s_add_u32 s12, s12, s13
s_add_u32 s12, s12, {WS_QP}
s_mov_b32 s27, {D0}
v_and_b32 v3, 15, v2
v_lshrrev_b32 v4, 4, v2
v_lshlrev_b32 v5, 8, v3
v_lshl_add_u32 v5, v4, 4, v5             ; voffK
v_lshlrev_b32 v7, 4, v2                  ; l*16
s_waitcnt lgkmcnt(0)
s_barrier
""")
KR = 16; QB = 80; S = 96; PB = 128; QG = 112
reg = KR
for t in range(4):
    tile_off(t)
    for i in range(4):
        A(f"buffer_load_dwordx4 v[{reg}:{reg+3}], v5, s[44:47], s10 offen offset:{i*64}{ntf}")
        reg += 4
stamp(1)
def qloads():
    A("s_add_u32 s28, s12, s27")
    for ks in range(4):
        A(f"s_add_u32 s13, s28, {ks*4096}")
        A(f"buffer_load_dwordx4 v[{QG+4*ks}:{QG+4*ks+3}], v7, s[52:55], s13 offen sc1")
get_tag(8)
A(f"""
v_lshrrev_b32 v10, 5, v2
v_lshlrev_b32 v10, 7, v10
v_and_b32 v11, 7, v2
v_lshl_add_u32 v10, v11, 4, v10
v_bfe_u32 v11, v2, 3, 1
v_lshl_add_u32 v10, v11, 3, v10
v_bfe_u32 v11, v2, 4, 1
v_lshl_add_u32 v10, v11, 2, v10
s_lshl_b32 s9, s3, 8
v_add_u32 v10, s9, v10
v_and_b32 v8, 3, v2
v_lshlrev_b32 v9, 8, v8
v_lshl_add_u32 v15, v4, 4, v9
v_mov_b32 v14, 1
s_lshl_b32 s9, s3, 11
v_add_u32 v6, s9, v7
s_lshl_b32 s9, s3, 5
v_lshl_add_u32 v12, v8, 3, s9
s_lshl_b32 s9, s3, 2
s_add_u32 s9, s9, {L_PRDY}
v_mov_b32 v11, s9
""")
A(f"s_waitcnt vmcnt({QPOS})")
stamp(2)
qloads()
poll_loop("q", qloads, [QG + 4 * n for n in range(4)], 8, 9, sleep=1, cntreg=96, preissued=0, fast=("alt" if FAST else False))
A("s_mov_b32 s31, s27")
NS = 2 if FAST else 1
G = 136
def haddr():
    A(f"""
    s_mul_i32 s8, s18, 28
    v_and_b32 v152, 15, v2
    v_min_u32 v152, 13, v152
    v_lshl_add_u32 v152, v152, 1, s8
    v_lshrrev_b32 v153, 6, v152
    v_lshlrev_b32 v153, 9, v153
    v_bfe_u32 v154, v152, 1, 1
    v_lshl_add_u32 v153, v154, 8, v153
    v_bfe_u32 v154, v152, 2, 1
    v_lshl_add_u32 v153, v154, 7, v153
    v_bfe_u32 v154, v152, 3, 3
    v_lshl_add_u32 v153, v154, 4, v153
    v_lshrrev_b32 v154, 5, v2
    s_mov_b32 s8, 229376
    v_mul_lo_u32 v154, v154, s8
    v_add_u32 v153, v153, v154
    v_bfe_u32 v154, v2, 4, 1                 ; bb
    s_movk_i32 s8, 14336
    v_mul_lo_u32 v154, v154, s8
    v_add_u32 v153, v153, v154
    s_and_b32 s19, s6, 2                     ; 2bp
    s_mul_i32 s19, s19, 14336
    s_add_u32 s19, s19, {WS_HP}
    """)
def hloads():
    for ks in range(4):
        A(f"s_add_u32 s8, s19, {ks*57344}")
        A(f"buffer_load_dwordx4 v[{G+4*ks}:{G+4*ks+3}], v153, s[52:55], s8 offen sc1")
stamp(3)
if HEARLY:
    haddr()
    A("s_cmp_eq_u32 s3, 1\ns_cbranch_scc0 L_nohl")
    hloads()
    A.label("L_nohl")
for c in (0, 2):
    A(f"v_add_f32 v{QG+c}, v{QG+c}, v{QG+4+c}\nv_add_f32 v{QG+8+c}, v{QG+8+c}, v{QG+12+c}")
for c in (0, 2):
    A(f"v_add_f32 v{QG+c}, v{QG+c}, v{QG+8+c}")
A(f"""
v_cvt_pk_bf16_f32 v8, v{QG}, v{QG+2}
v_mov_b32 v13, {L_QRDY}
ds_write_b32 v10, v8 offset:{L_Q}
ds_add_u32 v13, v14
""")
lds_wait(L_QRDY, 256, 8, name="qrdy", sleep=0)
for i in range(4):
    A(f"ds_read_b128 v[{QB+4*i}:{QB+4*i+3}], v15 offset:{L_Q+i*64}")
A("s_waitcnt lgkmcnt(0)")
for i in range(4):
    for t in range(4):
        r = KR + (t * 4 + i) * 4
        c = "0" if i == 0 else f"v[{S+4*t}:{S+4*t+3}]"
        A(f"v_mfma_f32_16x16x32_bf16 v[{S+4*t}:{S+4*t+3}], v[{r}:{r+3}], v[{QB+4*i}:{QB+4*i+3}], {c}")
A("s_mov_b32 s24, 0x3db504f3\ns_mov_b32 s25, 0x3fb8aa3b\ns_mov_b32 s26, 0xffff0000")
if MIMIC:
    T = 16
    for k in range(8): A(f"v_cvt_pk_bf16_f32 v{T+k}, v{S+2*k}, v{S+2*k+1}")
    for k in range(8): A(f"v_lshlrev_b32 v{S+2*k}, 16, v{T+k}\nv_and_b32 v{S+2*k+1}, s26, v{T+k}")
    for k in range(16): A(f"v_mul_f32 v{S+k}, s24, v{S+k}")
    for k in range(8): A(f"v_cvt_pk_bf16_f32 v{T+k}, v{S+2*k}, v{S+2*k+1}")
    for k in range(8): A(f"v_lshlrev_b32 v{S+2*k}, 16, v{T+k}\nv_and_b32 v{S+2*k+1}, s26, v{T+k}")
    A(f"v_max3_f32 v10, v{S}, v{S+1}, v{S+2}\nv_max3_f32 v9, v{S+3}, v{S+4}, v{S+5}")
    A(f"v_max3_f32 v10, v10, v{S+6}, v{S+7}\nv_max3_f32 v9, v9, v{S+8}, v{S+9}")
    A(f"v_max3_f32 v10, v10, v{S+10}, v{S+11}\nv_max3_f32 v9, v9, v{S+12}, v{S+13}")
    A(f"v_max3_f32 v10, v10, v{S+14}, v{S+15}\nv_max_f32 v10, v10, v9")
    SC = "s25"
else:
    A(f"v_max3_f32 v10, v{S}, v{S+1}, v{S+2}\nv_max3_f32 v9, v{S+3}, v{S+4}, v{S+5}")
    A(f"v_max3_f32 v10, v10, v{S+6}, v{S+7}\nv_max3_f32 v9, v9, v{S+8}, v{S+9}")
    A(f"v_max3_f32 v10, v10, v{S+10}, v{S+11}\nv_max3_f32 v9, v9, v{S+12}, v{S+13}")
    A(f"v_max3_f32 v10, v10, v{S+14}, v{S+15}\nv_max_f32 v10, v10, v9")
    A("s_mov_b32 s25, 0x3e0293ee")
    SC = "s25"
A(f"""
v_mov_b32 v9, v10
v_permlane16_swap_b32 v10, v9
v_max_f32 v10, v10, v9
v_mov_b32 v9, v10
v_permlane32_swap_b32 v10, v9
v_max_f32 v10, v10, v9
v_mul_f32 v10, {SC}, v10
""")
for k in range(16):
    A(f"v_fma_f32 v{S+k}, v{S+k}, {SC}, -v10")
for k in range(16):
    A(f"v_exp_f32 v{S+k}, v{S+k}")
for k in range(8):
    A(f"v_cvt_pk_bf16_f32 v{PB+k}, v{S+2*k}, v{S+2*k+1}")
A(f"""
ds_write_b128 v6, v[{PB}:{PB+3}] offset:{L_P}
ds_write_b128 v6, v[{PB+4}:{PB+7}] offset:{L_P+1024}
ds_write_b32 v11, v14
""")
stamp(4)
A(f"v_add_f32 v9, v{S}, v{S+1}\nv_add_f32 v8, v{S+2}, v{S+3}")
for k in range(4, 16, 2):
    A(f"v_add_f32 v9, v9, v{S+k}\nv_add_f32 v8, v8, v{S+k+1}")
A(f"""
v_add_f32 v11, v9, v8
v_mov_b32 v9, v11
v_permlane16_swap_b32 v11, v9
v_add_f32 v11, v11, v9
v_mov_b32 v9, v11
v_permlane32_swap_b32 v11, v9
v_add_f32 v11, v11, v9                   ; l (wave)
v_mov_b32 v13, {L_MLC}
ds_write_b64 v12, v[10:11] offset:{L_ML}
ds_add_u32 v13, v14
""")
lds_wait(L_MLC, 256, 8, name="mlc", sleep=0)
A(f"""
s_lshl_b32 s9, s3, 3
v_mov_b32 v8, s9
ds_read_b64 v[16:17], v8 offset:{L_ML}
ds_read_b64 v[18:19], v8 offset:{L_ML+32}
ds_read_b64 v[20:21], v8 offset:{L_ML+64}
ds_read_b64 v[22:23], v8 offset:{L_ML+96}
s_waitcnt lgkmcnt(0)
v_max_f32 v24, v16, v18
v_max3_f32 v24, v24, v20, v22            ; M
v_sub_f32 v28, v16, v24
v_sub_f32 v29, v18, v24
v_sub_f32 v30, v20, v24
v_sub_f32 v31, v22, v24
v_exp_f32 v28, v28
v_exp_f32 v29, v29
v_exp_f32 v30, v30
v_exp_f32 v31, v31
v_mov_b32 v25, s64
v_mov_b32 v27, s64
v_mul_f32 v26, v28, v17
v_fmac_f32 v26, v29, v19
v_fmac_f32 v26, v30, v21
v_fmac_f32 v26, v31, v23                 ; L
s_lshl_b32 s9, s3, 4
v_mov_b32 v8, s9
v_mov_b32 v9, {L_FRDY}
s_mov_b64 exec, 1
ds_write_b128 v8, v[28:31] offset:{L_F}
ds_add_u32 v9, v14
v_mov_b32 v8, 0
""")
pub("v[24:27]", 8, 17)
A("s_mov_b64 exec, -1")
stamp(5)
A("""
s_cmp_eq_u32 s3, 1
s_cbranch_scc1 L_hg
s_cmp_eq_u32 s3, 3
s_cbranch_scc1 L_fin
s_branch L_mo
""")
A.label("L_hg")
if not HEARLY: haddr()
poll_loop("h", hloads, [G + 4 * n for n in range(4)], 8, 9, cntreg=96, preissued=(NS if HEARLY else None))
for c in (0, 2):
    A(f"v_add_f32 v{G+c}, v{G+c}, v{G+4+c}\nv_add_f32 v{G+8+c}, v{G+8+c}, v{G+12+c}")
for c in (0, 2):
    A(f"v_add_f32 v{G+c}, v{G+c}, v{G+8+c}")
A(f"""
v_cvt_pk_bf16_f32 v156, v{G}, v{G+2}
v_mov_b32 v157, v156
v_permlane32_swap_b32 v156, v157
v_lshlrev_b32 v158, 16, v156
v_and_b32 v159, 0xffff0000, v156
v_lshlrev_b32 v160, 16, v157
v_and_b32 v161, 0xffff0000, v157
v_mul_f32 v162, 0xbfb8aa3b, v158
v_mul_f32 v163, 0xbfb8aa3b, v159
v_exp_f32 v162, v162
v_exp_f32 v163, v163
v_add_f32 v162, 1.0, v162
v_add_f32 v163, 1.0, v163
v_rcp_f32 v162, v162
v_rcp_f32 v163, v163
v_mul_f32 v162, v158, v162
v_mul_f32 v163, v159, v163
v_cvt_pk_bf16_f32 v162, v162, v163
v_lshlrev_b32 v163, 16, v162
v_and_b32 v162, 0xffff0000, v162
v_mul_f32 v163, v163, v160
v_mul_f32 v162, v162, v161
v_cvt_pk_bf16_f32 v162, v163, v162
v_and_b32 v164, 15, v2
v_cmp_gt_u32 vcc, 14, v164
v_cndmask_b32 v162, 0, v162, vcc
v_lshlrev_b32 v164, 2, v2                ; (bb*16 + p)*4
v_cmp_gt_u32 vcc, 32, v2
s_and_saveexec_b64 s[20:21], vcc
ds_write_b32 v164, v162 offset:{L_H}
s_mov_b64 exec, s[20:21]
v_mov_b32 v8, {L_HRDY}
v_mov_b32 v9, 1
ds_write_b32 v8, v9
""")
stamp(6)
A("s_branch L_stamp")
A.label("L_mo")
A(f"""
s_setprio 3
s_lshr_b32 s19, s3, 1                    ; bb
s_and_b32 s13, s6, 2
s_add_u32 s13, s13, s19
s_lshl_b32 s16, s13, 3
s_add_u32 s16, s16, s4
s_lshl_b32 s16, s16, 9
s_add_u32 s16, s16, {WS_ML}
s_lshl_b32 s12, s4, 1
s_lshr_b32 s13, s6, 1
s_add_u32 s12, s12, s13
s_lshl_b32 s12, s12, 3
s_add_u32 s12, s12, s7
s_lshl_b32 s12, s12, 13
s_lshl_b32 s13, s19, 12
s_add_u32 s12, s12, s13
s_add_u32 s12, s12, {WS_OP}
v_lshrrev_b32 v8, 5, v2
v_bfe_u32 v10, v2, 3, 2
v_lshlrev_b32 v8, 6, v8
v_lshl_add_u32 v152, v10, 4, v8
v_and_b32 v13, 31, v2
v_lshlrev_b32 v13, 2, v13
s_lshl_b32 s13, s19, 7
v_add_u32 v13, s13, v13
v_mov_b32 v14, {L_OCR}
v_mov_b32 v15, 1
""")
GM = 136; GO = 16
def moloads():
    A("s_add_u32 s28, s12, s27\ns_add_u32 s29, s16, s27")
    for i in range(4):
        A(f"buffer_load_dwordx4 v[{GO+4*i}:{GO+4*i+3}], v7, s[52:55], s28 offen offset:{i*1024} sc1")
    for i in range(4):
        A(f"buffer_load_dwordx4 v[{GM+4*i}:{GM+4*i+3}], v152, s[52:55], s29 offen offset:{i*128} sc1")
lds_wait(L_OPUB, 4, 8, name="opub", sleep=1)
stamp(6)
A("s_mov_b32 s27, s31")
poll_loop("mo", moloads, [GO + 4 * i for i in range(4)] + [GM + 4 * i for i in range(4)], 153, 154, sleep=0, cntreg=96, fast=FAST)
stamp(7)
A(f"""
v_max_f32 v153, v{GM}, v{GM+4}
v_max3_f32 v153, v153, v{GM+8}, v{GM+12}
v_mov_b32 v154, v153
v_permlane32_swap_b32 v153, v154
v_max_f32 v153, v153, v154
""")
for i in range(4):
    A(f"v_sub_f32 v{GM+4*i}, v{GM+4*i}, v153")
for i in range(4):
    A(f"v_exp_f32 v{GM+4*i}, v{GM+4*i}")
A(f"""
v_mul_f32 v155, v{GM}, v{GM+2}
v_mul_f32 v161, v{GM}, v{GO}
v_mul_f32 v162, v{GM}, v{GO+2}
""")
for i in range(1, 4):
    A(f"v_fmac_f32 v155, v{GM+4*i}, v{GM+4*i+2}\nv_fmac_f32 v161, v{GM+4*i}, v{GO+4*i}\nv_fmac_f32 v162, v{GM+4*i}, v{GO+4*i+2}")
A(f"""
v_mov_b32 v156, v155
v_mov_b32 v163, v161
v_mov_b32 v164, v162
v_permlane32_swap_b32 v155, v156
v_permlane32_swap_b32 v161, v163
v_permlane32_swap_b32 v162, v164
v_add_f32 v155, v155, v156
v_add_f32 v161, v161, v163
v_add_f32 v162, v162, v164
v_rcp_f32 v155, v155
s_nop 0
v_mul_f32 v161, v161, v155
v_mul_f32 v162, v162, v155
v_cvt_pk_bf16_f32 v161, v161, v162
ds_write_b32 v13, v161 offset:{L_OC}
s_mov_b64 exec, 1
ds_add_u32 v14, v15
s_mov_b64 exec, -1
""")
stamp(8)
A("s_branch L_stamp")
A.label("L_fin")
A(f"""
s_setprio 3
s_load_dwordx2 s[44:45], s[0:1], 80
s_lshl_b32 s12, s6, 18
s_lshl_b32 s8, s18, 12
s_add_u32 s12, s12, s8
s_add_u32 s12, s12, {WS_FP}
s_mov_b32 s46, 4096
s_mov_b32 s47, 0x20000
s_lshr_b32 s8, s18, 5                    ; ch'
s_lshl_b32 s8, s8, 9
s_bfe_u32 s9, s18, 0x20003               ; cw'
s_lshl_b32 s9, s9, 7
s_add_u32 s8, s8, s9
s_and_b32 s9, s18, 1                     ; q'
s_lshl_b32 s9, s9, 6
s_add_u32 s8, s8, s9
s_bfe_u32 s9, s18, 0x10001               ; half'
s_lshl_b32 s9, s9, 3
s_add_u32 s8, s8, s9
s_bfe_u32 s9, s18, 0x10002               ; e'
s_lshl_b32 s9, s9, 2
s_add_u32 s8, s8, s9
s_lshl_b32 s9, s6, 10
s_add_u32 s28, s8, s9
v_lshlrev_b32 v10, 4, v2
""")
lds_wait(L_OPUB, 8, 8, name="fpub", sleep=1)
if FDELAY: A(f"s_sleep {FDELAY}")
stamp(6)
GF = 16
def floads():
    for i in range(4):
        A(f"buffer_load_dwordx4 v[{GF+4*i}:{GF+4*i+3}], v7, s[52:55], s12 offen offset:{i*1024} sc1")
poll_loop("f", floads, [GF + 4 * i for i in range(4)], 8, 9, sleep=0, cntreg=96)
stamp(7)
for c in (0, 2):
    A(f"v_add_f32 v{GF+c}, v{GF+c}, v{GF+4+c}\nv_add_f32 v{GF+8+c}, v{GF+8+c}, v{GF+12+c}")
for c in (0, 2):
    A(f"v_add_f32 v{GF+c}, v{GF+c}, v{GF+8+c}")
for sh in (4, 8):
    for c in (0, 2):
        A(f"v_add_f32_dpp v{48+c}, v{GF+c}, v{GF+c} row_ror:{sh} row_mask:0xf bank_mask:0xf")
    for c in (0, 2):
        A(f"v_mov_b32 v{GF+c}, v{48+c}")
for sw in ("16", "32"):
    for c in (0, 2):
        A(f"v_mov_b32 v{48+c}, v{GF+c}")
    for c in (0, 2):
        A(f"v_permlane{sw}_swap_b32 v{GF+c}, v{48+c}")
    for c in (0, 2):
        A(f"v_add_f32 v{GF+c}, v{GF+c}, v{48+c}")
A(f"""
v_cvt_pk_bf16_f32 v8, v{GF}, v{GF+2}
v_cmp_gt_u32 vcc, 4, v2
s_waitcnt lgkmcnt(0)
s_and_saveexec_b64 s[20:21], vcc
buffer_store_dword v8, v10, s[44:47], s28 offen
s_mov_b64 exec, s[20:21]
s_cmp_eq_u32 s2, 0
s_cbranch_scc0 L_stamp
v_mov_b32 v8, s64
v_mov_b32 v9, {WS_E}
v_cmp_eq_u32 vcc, 0, v2
s_and_saveexec_b64 s[20:21], vcc
buffer_store_dword v8, v9, s[52:55], 0 offen
s_mov_b64 exec, s[20:21]
""")
A.label("L_stamp")
if DBG:
    A("s_memrealtime s[94:95]\ns_load_dwordx2 s[44:45], s[0:1], 88\ns_mov_b32 s46, 256\ns_mov_b32 s47, 0x20000\ns_waitcnt lgkmcnt(0)\ns_mov_b64 exec, 1")
    A("s_not_b32 s8, s70\nv_mov_b32 v10, s8\nv_mov_b32 v4, 0\nbuffer_atomic_umax v10, v4, s[44:47], 0 offen")
    A("v_mov_b32 v10, s94\nv_mov_b32 v4, 4\nbuffer_atomic_umax v10, v4, s[44:47], 0 offen")
    A("s_cmp_lt_u32 s99, 4\ns_cbranch_scc0 L_dbgV")
    for sl, d in ((3, 2), (4, 3), (1, 10), (7, 8)):
        A(f"v_mov_b32 v10, s{70+2*sl}\nv_mov_b32 v4, {4*d}\nbuffer_atomic_umax v10, v4, s[44:47], 0 offen")
    A("s_branch L_dbgE\nL_dbgV:\ns_cmp_lt_u32 s99, 8\ns_cbranch_scc0 L_dbgO")
    for sl, d in ((6, 4), (7, 5), (2, 9), (3, 11)):
        A(f"v_mov_b32 v10, s{70+2*sl}\nv_mov_b32 v4, {4*d}\nbuffer_atomic_umax v10, v4, s[44:47], 0 offen")
    A("s_branch L_dbgE\nL_dbgO:")
    for sl, d in ((8, 6), (9, 7), (4, 12)):
        A(f"v_mov_b32 v10, s{70+2*sl}\nv_mov_b32 v4, {4*d}\nbuffer_atomic_umax v10, v4, s[44:47], 0 offen")
    A("L_dbgE:\ns_endpgm")
if STAMPS:
    A("s_memrealtime s[94:95]")
    if CLK: A("s_memtime s[92:93]")
    A("s_waitcnt lgkmcnt(0)")
    if CLK: A("s_sub_u32 s96, s92, s90")
    A(f"""
s_lshl_b32 s9, s2, 4
s_add_u32 s9, s9, s99
s_mul_i32 s9, s9, {NST*8}
s_add_u32 s9, s9, {STAMPOFF}
v_mov_b32 v4, 0
s_mov_b64 exec, 1
""")
    if CLK: A("s_mov_b64 s[90:91], 0\ns_mov_b64 s[92:93], 0")
    for k in range(0, NST, 2):
        A(f"v_mov_b32 v10, s{70+2*k}\nv_mov_b32 v11, s{71+2*k}\nv_mov_b32 v12, s{72+2*k}\nv_mov_b32 v13, s{73+2*k}")
        A(f"buffer_store_dwordx4 v[10:13], v4, s[52:55], s9 offen offset:{k*8}")
        A("s_nop 1")
A.label("L_end")
body = A.text()
if STAMPS:
    z = "".join(f"    s_mov_b64 s[{70+2*k}:{71+2*k}], 0\n" for k in range(NST))
    body = z + body
body = hazard.fix(body, verbose=True)
open(sys.argv[1], "w").write(wrap(body, 256, 768, LDS_BYTES, 168, 102))
```

```python
import sys
from asmgen import *
import hazard

opt = dict(a.split("=") for a in sys.argv[2:])
def O(name, default): return type(default)(opt.get(name, default)) if not isinstance(default, bool) else opt.get(name, "1" if default else "0") == "1"
STAMPS = O("stamps", False)
MIMIC = O("mimic", True)
NT = O("nt", True)
NTW = O("ntw", True)
NTO = O("nto", False)
QPOS = O("qpos", 8)
SPINMAX = O("spinmax", 1000000)
FAST = O("fast", True)
FDELAY = O("fdelay", 0)
CLK = O("clk", False)
ROT = O("rot", True)
FINE = O("fine", True)
KVROT = O("kvrot", True)
OGATE = O("ogate", 1)
HEARLY = O("hearly", True)
OTH = O("oth", 6)
FACK = O("fack", 1)
DBG = O("dbg", False)
PRETOUCH = O("pretouch", 0)
CPF = O("cpf", 0)
FLAGFIRST = O("flagfirst", 1)
HSKIP = O("hskip", 3)
ntf = " nt" if NT else ""
ntw = " nt" if NTW else ""
nto = " nt" if NTO else ""

WS_E   = 0
WS_QP  = 0x10000
WS_HP  = 0x100000
WS_ML  = 0x180000
WS_OP  = 0x200000
WS_FP  = 0x400000
FASTD  = 0x500000
WS_SIZE = 268435456
STAMPOFF = 0x8000000
NST = 14
L_TAG = 0
L_QRDY = 8
L_HRDY = 12
L_VISS = 16
L_MLC = 20
L_FRDY = 24
L_OWC = 28
L_OCR = 32
L_GRDY = 36
L_OPUB = 40
L_PRDY = 48
L_Q = 0x100
L_ML = 0x500
L_F = 0x580
L_H = 0x600
L_G = 0x680
L_OC = 0x700
L_OW = 0x800
L_P = 0x2800
LDS_BYTES = 0x4800

A = Asm()
HDR = """; ---------------------------------------------------------------------------------------------------------
; Hand-offs between workgroups go through d_ws as 8-byte {value, tag} granules; the tag is derived from a word
; ---------------------------------------------------------------------------------------------------------
"""
def stamp(k):
    if STAMPS: A(f"s_memrealtime s[{70+2*k}:{71+2*k}]")
def srd_consts(d, size):
    A(f"s_mov_b32 s{d+2}, {size}\ns_mov_b32 s{d+3}, 0x20000")

def lds_wait(addr, val, vt, name="w", sleep=1, addr_is_vreg=None):
    L = A.newlabel("Lw_" + name); Ld = A.newlabel("Lwd_" + name)
    if addr_is_vreg is None:
        A(f"v_mov_b32 v{vt+1}, {addr}"); av = vt + 1
    else: av = addr_is_vreg
    A(f"s_mov_b32 s15, 0")
    A.label(L)
    A(f"""
ds_read_b32 v{vt}, v{av}
s_waitcnt lgkmcnt(0)
v_readfirstlane_b32 s14, v{vt}
s_add_u32 s15, s15, 1
s_cmp_ge_u32 s14, {val}
s_cbranch_scc1 {Ld}
s_cmp_lt_u32 s15, {SPINMAX*16}
""" + (f"s_sleep {sleep}\n" if sleep else "") + f"s_cbranch_scc1 {L}")
    A.label(Ld)

def get_tag(vt):
    L = A.newlabel("Ltag"); Ld = A.newlabel("Ltagd")
    A(f"v_mov_b32 v{vt+2}, {L_TAG}\ns_mov_b32 s15, 0")
    A.label(L)
    A(f"""
ds_read_b64 v[{vt}:{vt+1}], v{vt+2}
s_waitcnt lgkmcnt(0)
v_readfirstlane_b32 s14, v{vt+1}
v_readfirstlane_b32 s64, v{vt}
s_add_u32 s15, s15, 1
s_cmp_eq_u32 s14, 1
s_cbranch_scc1 {Ld}
s_cmp_lt_u32 s15, {SPINMAX*16}
s_sleep 1
s_cbranch_scc1 {L}
""")
    A.label(Ld)

def Pj(raw, j, t, npair=4):
    k = j // 2; sel = "s66" if j % 2 == 0 else "s67"
    for p in range(npair):
        A(f"v_perm_b32 v{t+p}, v{raw+(2*p+1)*4+k}, v{raw+(2*p)*4+k}, {sel}")

def transpose_mfma(raw, acc, aop, tmp, first):
    def P(j): Pj(raw, j, tmp + 4 * (j % 3))
    def M(j):
        t = tmp + 4 * (j % 3)
        c = "0" if first else f"v[{acc+4*j}:{acc+4*j+3}]"
        A(f"v_mfma_f32_16x16x32_bf16 v[{acc+4*j}:{acc+4*j+3}], v[{aop}:{aop+3}], v[{t}:{t+3}], {c}")
    P(0); P(1); M(0)
    for j in range(2, 8):
        P(j); M(j - 1)
    M(7)

def transpose_only(raw, dst):
    for j in range(8): Pj(raw, j, dst + 4 * j)

def tagcheck(regs, vmin, vmax):
    first = True
    for r in regs:
        if first:
            A(f"v_min_u32 v{vmin}, v{r+1}, v{r+3}\nv_max_u32 v{vmax}, v{r+1}, v{r+3}"); first = False
        else:
            A(f"v_min3_u32 v{vmin}, v{vmin}, v{r+1}, v{r+3}\nv_max3_u32 v{vmax}, v{vmax}, v{r+1}, v{r+3}")
    A(f"v_xor_b32 v{vmin}, s64, v{vmin}\nv_xor_b32 v{vmax}, s64, v{vmax}\nv_or_b32 v{vmin}, v{vmin}, v{vmax}\nv_cmp_ne_u32 vcc, 0, v{vmin}")

def poll_loop(name, emit_loads, regs, vmin, vmax, sleep=2, cntreg=None, preissued=None, fast=False):
    L = A.newlabel("Lp_" + name); Ld = A.newlabel("Lpd_" + name); Lc = A.newlabel("Lpc_" + name)
    A("s_mov_b32 s15, 0")
    if preissued is not None:
        A(f"s_waitcnt vmcnt({preissued})")
        A(f"s_branch {Lc}")
    A.label(L)
    if fast == "alt":
        A(f"s_and_b32 s14, s15, 1\ns_cmp_eq_u32 s14, 1\ns_cselect_b32 s27, 0, {FASTD}")
    elif fast:
        A(f"s_sub_u32 s30, {FASTD}, s31\ns_and_b32 s14, s15, 3\ns_cmp_eq_u32 s14, 3\ns_cselect_b32 s27, s30, s31")
    emit_loads()
    A("s_waitcnt vmcnt(0)")
    A.label(Lc)
    tagcheck(regs, vmin, vmax)
    A(f"""
s_add_u32 s15, s15, 1
s_cbranch_vccz {Ld}
s_cmp_lt_u32 s15, {SPINMAX}
""" + (f"s_sleep {sleep}\n" if sleep else "") + f"s_cbranch_scc1 {L}")
    A.label(Ld)
    if cntreg is not None: A(f"s_mov_b32 s{cntreg}, s15")

def pub(regs, voff, soff, off=0, fast=True):
    o = f" offset:{off}" if off else ""
    if fast and FAST:
        A(f"s_add_u32 s29, s{soff}, {FASTD}")
        A(f"buffer_store_dwordx4 {regs}, v{voff}, s[52:55], s29 offen{o}")
    A(f"buffer_store_dwordx4 {regs}, v{voff}, s[52:55], s{soff} offen{o} sc1")

D0 = FASTD if FAST else 0
def tile_off(t):
    if KVROT:
        A(f"s_add_u32 s10, s7, {t}\ns_and_b32 s10, s10, 3\ns_lshl_b32 s10, s10, 12\ns_add_u32 s10, s10, s8")
    else:
        A(f"s_add_u32 s10, s8, {t*4096}")
A("""
s_cmp_ge_u32 s2, 256
s_cbranch_scc1 L_end
v_lshrrev_b32 v1, 6, v0
v_and_b32 v2, 63, v0
v_readfirstlane_b32 s3, v1
s_and_b32 s4, s2, 7
s_lshr_b32 s5, s2, 3                     ; r
s_lshr_b32 s6, s5, 3                     ; b
s_and_b32 s7, s5, 7                      ; s (split)
s_lshl_b32 s18, s4, 3
s_add_u32 s18, s18, s7                   ; j = x*8 + s
s_mov_b32 s66, 0x05040100
s_mov_b32 s67, 0x07060302
s_load_dwordx2 s[52:53], s[0:1], 96      ; ws
""")
if CPF:
    A(f"""
s_cmp_eq_u32 s3, 11
s_cbranch_scc0 L_nocpf
s_getpc_b64 s[40:41]
L_cpf_pc:
s_sub_u32 s40, s40, L_cpf_pc-{NAME}_kernel
s_subb_u32 s41, s41, 0
s_lshl_b32 s8, s5, 9
v_lshlrev_b32 v8, 4, v2
v_add_u32 v8, s8, v8
v_min_u32 v8, L_end-{NAME}_kernel-12, v8
s_mov_b64 exec, 0xffffffff
global_load_dwordx4 v[16:19], v8, s[40:41]
s_mov_b64 exec, -1
L_nocpf:
""")
stamp(0)
if CLK: A("s_memtime s[90:91]")
srd_consts(52, WS_SIZE)
A("""
s_mov_b32 s99, s3
s_cmp_lt_u32 s3, 4
s_cbranch_scc1 L_K
s_cmp_ge_u32 s3, 8
s_cbranch_scc1 L_O
s_load_dwordx2 s[40:41], s[0:1], 16      ; V
s_sub_u32 s3, s3, 4                      ; a
s_cmp_ge_u32 s3, 2
s_cbranch_scc1 L_V23
""")
A("s_load_dwordx2 s[48:49], s[0:1], 0")
A("s_setprio 3")
A("""
s_cmp_eq_u32 s3, 0
s_cbranch_scc0 L_W1setup
s_load_dwordx2 s[44:45], s[0:1], 24
s_mov_b32 s46, 4194304
s_movk_i32 s10, 8192
s_lshl_b32 s9, s6, 20
s_lshl_b32 s11, s7, 7
s_add_u32 s9, s9, s11
s_lshl_b32 s11, s4, 10
s_add_u32 s9, s9, s11
s_lshl_b32 s11, s6, 8
s_lshl_b32 s12, s4, 16
s_lshl_b32 s13, s6, 12
s_add_u32 s12, s12, s13
s_lshl_b32 s13, s7, 9
s_add_u32 s12, s12, s13
""" + f"""
s_add_u32 s12, s12, {WS_QP}
s_movk_i32 s13, 16384
s_movk_i32 s16, 256
s_mov_b32 s19, 0
s_branch L_prod
""")
A.label("L_W1setup")
if HSKIP >= 0:
    A(f"s_add_u32 s19, s5, {7-HSKIP}\ns_lshr_b32 s19, s19, 3\ns_sub_u32 s19, s5, s19\ns_mul_i32 s8, s4, 28\ns_add_u32 s19, s19, s8")
    A(f"s_cmp_eq_u32 s7, {HSKIP}\ns_cselect_b32 s19, 255, s19")
else:
    A("s_mov_b32 s19, s2")
A(f"""
s_and_b32 s8, s19, 1
s_cmp_eq_u32 s8, 0
s_cbranch_scc0 L_W1b
s_load_dwordx2 s[44:45], s[0:1], 48
s_branch L_W1c
""")
A.label("L_W1b")
A("s_load_dwordx2 s[44:45], s[0:1], 56")
A.label("L_W1c")
A(f"""
s_mov_b32 s46, 1835008
s_movk_i32 s10, 3584
s_lshr_b32 s9, s19, 1
s_mul_i32 s11, s9, 2341
s_lshr_b32 s11, s11, 16
s_mul_i32 s12, s11, 28
s_sub_u32 s12, s9, s12
s_mul_i32 s9, s11, {128*3584}
s_lshl_b32 s13, s12, 7
s_add_u32 s9, s9, s13
s_mul_i32 s13, s8, 229376
s_lshl_b32 s12, s12, 9
s_add_u32 s12, s12, s13
s_mul_i32 s13, s11, 57344
s_add_u32 s12, s12, s13
s_add_u32 s12, s12, {WS_HP}
s_movk_i32 s13, 14336
s_lshl_b32 s11, s11, 8
s_movk_i32 s16, 224
""")
A.label("L_prod")
srd_consts(48, 4096)
A(f"""
s_mov_b32 s47, 0x20000
v_lshrrev_b32 v3, 3, v2
v_and_b32 v4, 7, v2
v_lshlrev_b32 v4, 4, v4
s_lshl_b32 s8, s10, 3
v_mul_lo_u32 v5, v3, s8
v_add_u32 v5, v5, v4
v_and_b32 v6, 15, v2
v_lshrrev_b32 v7, 2, v6
v_lshlrev_b32 v7, 10, v7
v_and_b32 v8, 1, v2
v_lshrrev_b32 v9, 4, v2
v_lshl_add_u32 v8, v9, 1, v8
v_lshl_add_u32 v7, v8, 4, v7
v_mul_lo_u32 v10, v9, s13
v_lshl_add_u32 v10, v6, 4, v10
v_cmp_le_u32 s[68:69], 8, v6
s_mul_i32 s17, s10, 57
s_cmp_ge_u32 s19, s16
s_waitcnt lgkmcnt(0)
s_cbranch_scc1 L_prod_skip
""")
XA = 80
RAW = 16
A(f"buffer_load_dwordx4 v[{XA}:{XA+3}], v7, s[48:51], s11 offen")
A(f"buffer_load_dwordx4 v[{XA+4}:{XA+7}], v7, s[48:51], s11 offen offset:128")
A("s_mov_b32 s14, s9")
for e in range(2):
    for i in range(8):
        r = RAW + (e * 8 + i) * 4
        A(f"buffer_load_dwordx4 v[{r}:{r+3}], v5, s[44:47], s14 offen{ntw}")
        if not (e == 1 and i == 7):
            A("s_add_u32 s14, s14, s17" if i == 7 else "s_add_u32 s14, s14, s10")
A(f"s_load_dword s65, s[52:53], {WS_E}")
A("s_barrier")
A(f"""
s_cmp_eq_u32 s3, 0
s_cbranch_scc0 L_prod_notag
s_waitcnt lgkmcnt(0)
s_mul_i32 s64, s65, 0x9E3779B1
s_add_u32 s64, s64, 0x7F4A7C15
v_mov_b32 v96, s64
v_mov_b32 v97, 1
v_mov_b32 v98, {L_TAG}
ds_write_b64 v98, v[96:97]
s_branch L_prod_havetag
""")
A.label("L_prod_notag")
get_tag(96)
A.label("L_prod_havetag")
PUB = 88
for k in range(4):
    A(f"v_mov_b32 v{PUB+2*k+1}, s64")
stamp(1)
ACC = 112; TMP = 96
A("s_waitcnt vmcnt(8)")
transpose_mfma(RAW, ACC, XA, TMP, True)
A("s_waitcnt vmcnt(0)")
transpose_mfma(RAW + 32, ACC, XA + 4, TMP, False)
for k in range(4):
    A(f"v_cndmask_b32 v{144+k}, v{ACC+4*k+0}, v{ACC+4*(4+k)+1}, s[68:69]")
    A(f"v_cndmask_b32 v{148+k}, v{ACC+4*(4+k)+0}, v{ACC+4*k+1}, s[68:69]")
for k in range(4):
    A(f"v_add_f32_dpp v{PUB+2*k}, v{148+k}, v{144+k} row_ror:8 row_mask:0xf bank_mask:0xf")
if FAST:
    A(f"s_cmp_eq_u32 s3, 0\ns_cbranch_scc0 L_nofastq\ns_add_u32 s29, s12, {FASTD}")
    A(f"buffer_store_dwordx4 v[{PUB}:{PUB+3}], v10, s[52:55], s29 offen")
    A(f"buffer_store_dwordx4 v[{PUB+4}:{PUB+7}], v10, s[52:55], s29 offen offset:256")
    A.label("L_nofastq")
A(f"buffer_store_dwordx4 v[{PUB}:{PUB+3}], v10, s[52:55], s12 offen sc1")
A(f"buffer_store_dwordx4 v[{PUB+4}:{PUB+7}], v10, s[52:55], s12 offen offset:256 sc1")
stamp(2)
A("s_branch L_V")
A.label("L_prod_skip")
A("s_barrier\ns_branch L_V")
A.label("L_V23")
A("""
s_cmp_eq_u32 s3, 3
s_cbranch_scc1 L_W3
s_barrier
s_branch L_V
""")
A.label("L_W3")
A(f"""
s_load_dwordx2 s[48:49], s[0:1], 0       ; x
s_load_dwordx2 s[44:45], s[0:1], 72      ; gate_w
s_setprio 3
v_mov_b32 v4, 0
v_mov_b32 v5, 0
v_mov_b32 v6, 0
v_mov_b32 v7, 0
v_mov_b32 v8, 0
ds_write_b128 v8, v[4:7]
ds_write_b128 v8, v[4:7] offset:16
ds_write_b128 v8, v[4:7] offset:32
ds_write_b128 v8, v[4:7] offset:48
s_mov_b32 s50, 4096
s_mov_b32 s51, 0x20000
s_mov_b32 s46, 1024
s_mov_b32 s47, 0x20000
v_and_b32 v4, 31, v2
v_lshlrev_b32 v4, 5, v4                  ; (l%32)*32 B : gate_w offset
v_lshrrev_b32 v5, 5, v2                  ; bb
v_lshl_add_u32 v3, v5, 10, v4
s_lshr_b32 s8, s6, 1
s_lshl_b32 s8, s8, 11                    ; 2bp*1024
s_waitcnt lgkmcnt(0)
buffer_load_dwordx4 v[16:19], v3, s[48:51], s8 offen
buffer_load_dwordx4 v[20:23], v3, s[48:51], s8 offen offset:16
buffer_load_dwordx4 v[24:27], v4, s[44:47], 0 offen
buffer_load_dwordx4 v[28:31], v4, s[44:47], 0 offen offset:16
s_barrier
s_waitcnt vmcnt(0)
v_mov_b32 v44, 0
v_mov_b32 v43, 0
s_mov_b32 s22, 0xffff0000
""")
for k in range(8):
    A(f"""
v_lshlrev_b32 v32, 16, v{16+k}
v_and_b32 v33, s22, v{16+k}
v_lshlrev_b32 v34, 16, v{24+k}
v_and_b32 v35, s22, v{24+k}
v_mul_f32 v32, v32, v34
v_mul_f32 v33, v33, v35
v_cvt_pk_bf16_f32 v36, v32, v33
v_lshlrev_b32 v37, 16, v36
v_and_b32 v38, s22, v36
v_add_f32 v44, v44, v37
v_add_f32 v43, v43, v38
""")
A("v_add_f32 v44, v44, v43")
for sh in (1, 2, 4, 8):
    A(f"v_add_f32_dpp v45, v44, v44 row_ror:{sh} row_mask:0xf bank_mask:0xf\nv_mov_b32 v44, v45")
A("""
v_mov_b32 v45, v44
v_permlane16_swap_b32 v44, v45
v_add_f32 v44, v44, v45
v_cvt_pk_bf16_f32 v44, v44, v44
v_lshlrev_b32 v44, 16, v44
v_mul_f32 v45, 0xbfb8aa3b, v44
v_exp_f32 v45, v45
v_add_f32 v45, 1.0, v45
v_rcp_f32 v45, v45
v_cvt_pk_bf16_f32 v45, v45, v45
v_lshlrev_b32 v46, 16, v45
v_sub_f32 v47, 1.0, v46
v_cvt_pk_bf16_f32 v47, v47, v47
v_lshlrev_b32 v47, 16, v47
""" + f"""
v_lshlrev_b32 v4, 3, v5                  ; bb*8
ds_write_b64 v4, v[46:47] offset:{L_G}
v_mov_b32 v5, {L_GRDY}
v_mov_b32 v6, 1
ds_write_b32 v5, v6
""")
stamp(2)
A.label("L_V")
VR = 16; ACC = 112; TMP = 96; PB = 144
A("s_setprio 1")
A(f"""
s_waitcnt lgkmcnt(0)
s_mov_b32 s48, s40
s_mov_b32 s49, s41
s_mov_b32 s50, 67108864
s_mov_b32 s51, 0x20000
s_lshl_b32 s8, s6, 3
s_add_u32 s8, s8, s4                     ; b*8+x
s_lshl_b32 s8, s8, 21
s_add_u32 s8, s8, 0x180000
s_lshl_b32 s9, s7, 16
s_add_u32 s8, s8, s9
s_lshl_b32 s9, s3, 14
s_add_u32 s8, s8, s9                     ; V base
v_and_b32 v3, 15, v2
v_lshrrev_b32 v4, 4, v2
v_lshlrev_b32 v6, 10, v4
v_lshl_add_u32 v6, v3, 4, v6             ; voffV
""")
reg = VR
for u in range(2):
    for hi in range(2):
        tile_off(2*u+hi)
        for i4 in range(4):
            A(f"buffer_load_dwordx4 v[{reg}:{reg+3}], v6, s[48:51], s10 offen offset:{i4*256}{ntf}")
            reg += 4
def viss_inc():
    A(f"v_mov_b32 v8, {L_VISS}\ns_mov_b64 exec, 1\nds_add_u32 v8, v14\ns_mov_b64 exec, -1")
A("v_mov_b32 v14, 1")
if OGATE == 0: viss_inc()
A("s_setprio 2")
stamp(3)
get_tag(8)
A(f"""
s_lshl_b32 s16, s4, 1
s_lshr_b32 s13, s6, 1
s_add_u32 s16, s16, s13                  ; x*2+bp
s_lshl_b32 s16, s16, 16                  ; *8*8192
s_and_b32 s13, s6, 1
s_lshl_b32 s13, s13, 12
s_add_u32 s16, s16, s13
s_lshl_b32 s13, s7, 9
s_add_u32 s16, s16, s13
s_lshl_b32 s13, s3, 7
s_add_u32 s16, s16, s13
s_add_u32 s16, s16, {WS_OP}
s_lshl_b32 s9, s3, 11
v_lshlrev_b32 v10, 4, v3
v_add_u32 v10, s9, v10
v_and_b32 v11, 3, v2
v_lshlrev_b32 v11, 9, v11
v_lshrrev_b32 v9, 2, v2
v_lshl_add_u32 v11, v9, 4, v11
s_lshl_b32 s9, s3, 2
s_add_u32 s9, s9, {L_OW}
v_add_u32 v11, s9, v11
v_lshrrev_b32 v12, 3, v2
v_lshlrev_b32 v12, 13, v12
v_and_b32 v9, 7, v2
v_lshl_add_u32 v12, v9, 4, v12
v_mov_b32 v153, s64
v_mov_b32 v155, s64
v_mov_b32 v13, {L_OWC}
s_lshl_b32 s9, s3, 2
s_add_u32 s9, s9, {L_PRDY}
v_mov_b32 v15, s9
s_lshl_b32 s9, s3, 11
v_lshlrev_b32 v5, 4, v2
v_add_u32 v5, s9, v5
s_lshl_b32 s9, s3, 4
v_mov_b32 v7, s9
""")
if OGATE == 1:
    A("s_waitcnt vmcnt(8)"); viss_inc()
if OGATE == 2:
    A("s_waitcnt vmcnt(0)"); viss_inc()
lds_wait(None, 1, 8, name="prdy", sleep=1, addr_is_vreg=15)
A(f"""
ds_read_b128 v[{PB}:{PB+3}], v5 offset:{L_P}
ds_read_b128 v[{PB+4}:{PB+7}], v5 offset:{L_P+1024}
""")
stamp(5)
A("s_waitcnt vmcnt(8) lgkmcnt(0)")
transpose_mfma(VR, ACC, PB, TMP, True)
lds_wait(L_FRDY, 4, 8, name="frdy", sleep=0)
A(f"ds_read_b128 v[156:159], v7 offset:{L_F}")
if FINE:
    T1 = 64 if False else 120 + 40
    T1 = 16
    for p in range(4):
        A(f"s_waitcnt vmcnt({6-2*p})")
        for j in range(8):
            k = j // 2; sel = "s66" if j % 2 == 0 else "s67"
            A(f"v_perm_b32 v{T1+4*j+p}, v{VR+32+(2*p+1)*4+k}, v{VR+32+(2*p)*4+k}, {sel}")
    stamp(6)
    for j in range(8):
        A(f"v_mfma_f32_16x16x32_bf16 v[{ACC+4*j}:{ACC+4*j+3}], v[{PB+4}:{PB+7}], v[{T1+4*j}:{T1+4*j+3}], v[{ACC+4*j}:{ACC+4*j+3}]")
else:
    A("s_waitcnt vmcnt(0)")
    stamp(6)
    transpose_mfma(VR + 32, ACC, PB + 4, TMP, False)
A("s_mov_b64 exec, 0xffff")
for j in range(8):
    A(f"ds_write_b128 v10, v[{ACC+4*j}:{ACC+4*j+3}] offset:{L_OW+j*256}")
A(f"""
ds_add_u32 v13, v14
s_mov_b64 exec, -1
""")
lds_wait(L_OWC, 64, 8, name="owc", sleep=0)
for w in range(4):
    A(f"ds_read2st64_b32 v[{16+2*w}:{17+2*w}], v11 offset0:{w*8} offset1:{w*8+1}")
A(f"""
s_waitcnt lgkmcnt(0)
v_mul_f32 v152, v16, v156
v_mul_f32 v154, v17, v156
v_fmac_f32 v152, v18, v157
v_fmac_f32 v154, v19, v157
v_fmac_f32 v152, v20, v158
v_fmac_f32 v154, v21, v158
v_fmac_f32 v152, v22, v159
v_fmac_f32 v154, v23, v159
""")
if FLAGFIRST and FAST:
    A(f"s_add_u32 s29, s16, {FASTD}\nv_mov_b32 v8, {L_OPUB}")
    A("buffer_store_dwordx4 v[152:155], v12, s[52:55], s29 offen")
    A("s_mov_b64 exec, 1\nds_add_u32 v8, v14\ns_mov_b64 exec, -1")
    A("buffer_store_dwordx4 v[152:155], v12, s[52:55], s16 offen sc1")
else:
    pub("v[152:155]", 12, 16)
    A(f"v_mov_b32 v8, {L_OPUB}\ns_mov_b64 exec, 1\nds_add_u32 v8, v14\ns_mov_b64 exec, -1")
stamp(7)
A("s_branch L_stamp")
A.label("L_O")
RW2 = 16; R0 = 32; TH = 64; TO = 80; ACC = 112; AH = 144; AO = 148
A(f"""
s_load_dwordx2 s[56:57], s[0:1], 32      ; wo
s_load_dwordx2 s[60:61], s[0:1], 64      ; w2
s_sub_u32 s3, s3, 8                      ; cw
s_mov_b32 s58, 4194304
s_mov_b32 s59, 0x20000
s_mov_b32 s62, 1835008
s_mov_b32 s63, 0x20000
v_lshrrev_b32 v4, 4, v2                  ; g
v_bfe_u32 v3, v2, 3, 1                   ; sub'
v_and_b32 v8, 7, v2
v_lshlrev_b32 v8, 4, v8                  ; c*16
v_lshlrev_b32 v5, 17, v4
v_lshl_add_u32 v5, v3, 13, v5
v_add_u32 v5, v5, v8                     ; voffO
v_lshrrev_b32 v6, 3, v2
v_lshlrev_b32 v6, 12, v6
v_add_u32 v6, v6, v8                     ; voffW2
s_and_b32 s8, s6, 1                      ; ch
s_lshl_b32 s10, s8, 9
s_lshl_b32 s9, s3, 7
s_add_u32 s10, s10, s9
s_lshl_b32 s9, s4, 19
s_lshl_b32 s11, s7, 14
s_add_u32 s9, s9, s11
s_add_u32 s9, s9, s10
s_mul_i32 s11, s18, {28*1024}
s_add_u32 s11, s11, s10                  ; w2 base
s_lshr_b32 s17, s6, 1
s_lshl_b32 s17, s17, 7
s_lshl_b32 s13, s8, 5
s_add_u32 s17, s17, s13
s_lshl_b32 s13, s3, 3
s_add_u32 s17, s17, s13
s_lshl_b32 s17, s17, 12
s_lshl_b32 s13, s18, 6
s_add_u32 s17, s17, s13
s_add_u32 s17, s17, {WS_FP}
v_bfe_u32 v9, v2, 2, 1
v_and_b32 v11, 1, v2
v_lshl_add_u32 v11, v4, 1, v11           ; 2g+sub
v_lshlrev_b32 v7, 7, v9
v_lshl_add_u32 v7, v11, 4, v7
v_lshlrev_b32 v12, 6, v9
v_lshl_add_u32 v15, v11, 3, v12
v_cmp_eq_u32 s[20:21], 1, v3
v_cmp_le_u32 s[22:23], 32, v2            ; e = l/32
""")
if PRETOUCH:
    A("""
s_load_dwordx2 s[40:41], s[0:1], 16
s_load_dwordx2 s[44:45], s[0:1], 80
s_lshl_b32 s8, s6, 3
s_add_u32 s8, s8, s4
s_lshl_b32 s8, s8, 21
s_add_u32 s8, s8, 0x180000
s_lshl_b32 s13, s7, 16
s_add_u32 s8, s8, s13
v_mov_b32 v8, 0
s_waitcnt lgkmcnt(0)
s_mov_b32 s48, s40
s_mov_b32 s49, s41
s_mov_b32 s50, 67108864
s_mov_b32 s51, 0x20000
s_mov_b32 s46, 4096
s_mov_b32 s47, 0x20000
s_mov_b64 exec, 1
s_cmp_eq_u32 s3, 0
s_cbranch_scc0 L_pt1
buffer_load_dword v144, v8, s[48:51], s8 offen
buffer_load_dword v145, v8, s[60:63], s11 offen
buffer_load_dword v146, v8, s[44:47], 0 offen
L_pt1:
s_cmp_eq_u32 s3, 1
s_cbranch_scc0 L_pt2
buffer_load_dword v144, v8, s[56:59], s9 offen
s_add_u32 s13, s9, 0x20000
buffer_load_dword v145, v8, s[56:59], s13 offen
s_add_u32 s13, s9, 0x40000
buffer_load_dword v146, v8, s[56:59], s13 offen
s_add_u32 s13, s9, 0x60000
buffer_load_dword v147, v8, s[56:59], s13 offen
L_pt2:
s_cmp_eq_u32 s3, 2
s_cbranch_scc0 L_pt3
s_mov_b32 s13, 0x3f0000
buffer_load_dword v144, v8, s[52:55], s13 offen
s_mov_b32 s13, 0x5f0000
buffer_load_dword v145, v8, s[52:55], s13 offen
s_mov_b32 s13, 0x6f0000
buffer_load_dword v146, v8, s[52:55], s13 offen
L_pt3:
s_mov_b64 exec, -1
""")
A("s_barrier")
A(f"""
""")
lds_wait(L_VISS, 4, 8, name="viss", sleep=2)
stamp(3)
oc = 0
for i in range(4):
    if OTH and oc >= OTH: A(f"s_waitcnt vmcnt({OTH-1})")
    A(f"buffer_load_dwordx4 v[{RW2+4*i}:{RW2+4*i+3}], v6, s[60:63], s11 offen offset:{i*1024}{nto}"); oc += 1
A("s_add_u32 s12, s9, 4096")
for i in range(8):
    if OTH and oc >= OTH: A(f"s_waitcnt vmcnt({OTH-1})")
    A(f"buffer_load_dwordx4 v[{R0+4*i}:{R0+4*i+3}], v5, s[56:59], {'s9' if i < 4 else 's12'} offen offset:{(i%4)*1024}{nto}"); oc += 1
A("s_setprio 2")
stamp(4)
get_tag(8)
A(f"""
; FP voff = ((l/16)%2)*262144 + (e*4 + half*2 + q)*4096 + t*16
v_bfe_u32 v8, v2, 4, 1
v_lshlrev_b32 v10, 18, v8
v_lshrrev_b32 v9, 5, v2
v_lshl_add_u32 v10, v9, 14, v10
v_bfe_u32 v9, v2, 3, 1
v_lshl_add_u32 v10, v9, 13, v10
v_bfe_u32 v9, v2, 2, 1
v_lshl_add_u32 v10, v9, 12, v10
v_and_b32 v9, 3, v2
v_lshl_add_u32 v10, v9, 4, v10
v_lshlrev_b32 v11, 3, v8                 ; G addr = bb(u%2)*8
v_mov_b32 v161, s64
v_mov_b32 v163, s64
""")
lds_wait(L_HRDY, 1, 8, name="hrdy")
A(f"ds_read_b64 v[{AH}:{AH+1}], v15 offset:{L_H}")
lds_wait(L_GRDY, 1, 8, name="grdy")
A(f"""
ds_read_b64 v[12:13], v11 offset:{L_G}
s_waitcnt lgkmcnt(0)
s_waitcnt vmcnt(8)
""")
for j in range(8): Pj(RW2, j, TH + 2 * j, npair=2)
for j in range(8):
    A(f"v_mfma_f32_16x16x16_bf16 v[{ACC+4*j}:{ACC+4*j+3}], v[{AH}:{AH+1}], v[{TH+2*j}:{TH+2*j+1}], 0")
def reduce2(d0, d1):
    for k in range(4):
        A(f"v_cndmask_b32 v{152+k}, v{ACC+4*k+0}, v{ACC+4*(4+k)+1}, s[20:21]")
        A(f"v_cndmask_b32 v{156+k}, v{ACC+4*(4+k)+0}, v{ACC+4*k+1}, s[20:21]")
    A(f"v_cndmask_b32 v152, v152, v154, s[22:23]\nv_cndmask_b32 v153, v153, v155, s[22:23]")
    A(f"v_cndmask_b32 v156, v156, v158, s[22:23]\nv_cndmask_b32 v157, v157, v159, s[22:23]")
    A(f"v_add_f32_dpp v{d0}, v156, v152 row_ror:8 row_mask:0xf bank_mask:0xf")
    A(f"v_add_f32_dpp v{d1}, v157, v153 row_ror:8 row_mask:0xf bank_mask:0xf")
A("s_waitcnt vmcnt(0)")
for j in range(8): Pj(R0, j, TO + 4 * j)
reduce2(14, 15)
A("v_mul_f32 v14, v14, v13\nv_mul_f32 v15, v15, v13")
A(f"v_mov_b32 v11, {L_OPUB}\nv_mov_b32 v6, 1")
stamp(8)
lds_wait(L_OCR, 2, 8, name="ocr", sleep=0)
A(f"""
ds_read_b128 v[{AO}:{AO+3}], v7 offset:{L_OC}
s_waitcnt lgkmcnt(0)
""")
for j in range(8):
    A(f"v_mfma_f32_16x16x32_bf16 v[{ACC+4*j}:{ACC+4*j+3}], v[{AO}:{AO+3}], v[{TO+4*j}:{TO+4*j+3}], 0")
reduce2(160, 162)
A(f"""
v_fma_f32 v160, v160, v12, v14
v_fma_f32 v162, v162, v12, v15
buffer_store_dwordx4 v[160:163], v10, s[52:55], s17 offen sc1
""" + ("s_waitcnt vmcnt(0)\n" if FACK else "") + f"""
s_mov_b64 exec, 1
ds_add_u32 v11, v6
s_mov_b64 exec, -1
""")
stamp(9)
A("s_branch L_stamp")
A.label("L_K")
A(f"""
s_load_dwordx2 s[44:45], s[0:1], 8       ; K
s_setprio 2
""")
srd_consts(44, 67108864)
A(f"""
s_lshl_b32 s8, s6, 3
s_add_u32 s8, s8, s4                     ; b*8+x
s_lshl_b32 s17, s8, 9
s_lshl_b32 s8, s8, 21
s_add_u32 s8, s8, 0x180000
s_lshl_b32 s9, s7, 16
s_add_u32 s8, s8, s9
s_lshl_b32 s9, s3, 14
s_add_u32 s8, s8, s9                     ; K base
s_lshl_b32 s13, s7, 6
s_add_u32 s17, s17, s13
s_lshl_b32 s13, s3, 4
s_add_u32 s17, s17, s13
s_add_u32 s17, s17, {WS_ML}
s_lshl_b32 s12, s4, 2
s_add_u32 s12, s12, s6
s_lshl_b32 s12, s12, 14
s_lshl_b32 s13, s3, 10
s_add_u32 s12, s12, s13
s_add_u32 s12, s12, {WS_QP}
s_mov_b32 s27, {D0}
v_and_b32 v3, 15, v2
v_lshrrev_b32 v4, 4, v2
v_lshlrev_b32 v5, 8, v3
v_lshl_add_u32 v5, v4, 4, v5             ; voffK
v_lshlrev_b32 v7, 4, v2                  ; l*16
s_waitcnt lgkmcnt(0)
s_barrier
""")
KR = 16; QB = 80; S = 96; PB = 128; QG = 112
reg = KR
for t in range(4):
    tile_off(t)
    for i in range(4):
        A(f"buffer_load_dwordx4 v[{reg}:{reg+3}], v5, s[44:47], s10 offen offset:{i*64}{ntf}")
        reg += 4
stamp(1)
def qloads():
    A("s_add_u32 s28, s12, s27")
    for ks in range(4):
        A(f"s_add_u32 s13, s28, {ks*4096}")
        A(f"buffer_load_dwordx4 v[{QG+4*ks}:{QG+4*ks+3}], v7, s[52:55], s13 offen sc1")
get_tag(8)
A(f"""
v_lshrrev_b32 v10, 5, v2
v_lshlrev_b32 v10, 7, v10
v_and_b32 v11, 7, v2
v_lshl_add_u32 v10, v11, 4, v10
v_bfe_u32 v11, v2, 3, 1
v_lshl_add_u32 v10, v11, 3, v10
v_bfe_u32 v11, v2, 4, 1
v_lshl_add_u32 v10, v11, 2, v10
s_lshl_b32 s9, s3, 8
v_add_u32 v10, s9, v10
v_and_b32 v8, 3, v2
v_lshlrev_b32 v9, 8, v8
v_lshl_add_u32 v15, v4, 4, v9
v_mov_b32 v14, 1
s_lshl_b32 s9, s3, 11
v_add_u32 v6, s9, v7
s_lshl_b32 s9, s3, 5
v_lshl_add_u32 v12, v8, 3, s9
s_lshl_b32 s9, s3, 2
s_add_u32 s9, s9, {L_PRDY}
v_mov_b32 v11, s9
""")
A(f"s_waitcnt vmcnt({QPOS})")
stamp(2)
qloads()
poll_loop("q", qloads, [QG + 4 * n for n in range(4)], 8, 9, sleep=1, cntreg=96, preissued=0, fast=("alt" if FAST else False))
A("s_mov_b32 s31, s27")
NS = 2 if FAST else 1
G = 136
def haddr():
    A(f"""
    s_mul_i32 s8, s18, 28
    v_and_b32 v152, 15, v2
    v_min_u32 v152, 13, v152
    v_lshl_add_u32 v152, v152, 1, s8
    v_lshrrev_b32 v153, 6, v152
    v_lshlrev_b32 v153, 9, v153
    v_bfe_u32 v154, v152, 1, 1
    v_lshl_add_u32 v153, v154, 8, v153
    v_bfe_u32 v154, v152, 2, 1
    v_lshl_add_u32 v153, v154, 7, v153
    v_bfe_u32 v154, v152, 3, 3
    v_lshl_add_u32 v153, v154, 4, v153
    v_lshrrev_b32 v154, 5, v2
    s_mov_b32 s8, 229376
    v_mul_lo_u32 v154, v154, s8
    v_add_u32 v153, v153, v154
    v_bfe_u32 v154, v2, 4, 1                 ; bb
    s_movk_i32 s8, 14336
    v_mul_lo_u32 v154, v154, s8
    v_add_u32 v153, v153, v154
    s_and_b32 s19, s6, 2                     ; 2bp
    s_mul_i32 s19, s19, 14336
    s_add_u32 s19, s19, {WS_HP}
    """)
def hloads():
    for ks in range(4):
        A(f"s_add_u32 s8, s19, {ks*57344}")
        A(f"buffer_load_dwordx4 v[{G+4*ks}:{G+4*ks+3}], v153, s[52:55], s8 offen sc1")
stamp(3)
if HEARLY:
    haddr()
    A("s_cmp_eq_u32 s3, 1\ns_cbranch_scc0 L_nohl")
    hloads()
    A.label("L_nohl")
for c in (0, 2):
    A(f"v_add_f32 v{QG+c}, v{QG+c}, v{QG+4+c}\nv_add_f32 v{QG+8+c}, v{QG+8+c}, v{QG+12+c}")
for c in (0, 2):
    A(f"v_add_f32 v{QG+c}, v{QG+c}, v{QG+8+c}")
A(f"""
v_cvt_pk_bf16_f32 v8, v{QG}, v{QG+2}
v_mov_b32 v13, {L_QRDY}
ds_write_b32 v10, v8 offset:{L_Q}
ds_add_u32 v13, v14
""")
lds_wait(L_QRDY, 256, 8, name="qrdy", sleep=0)
for i in range(4):
    A(f"ds_read_b128 v[{QB+4*i}:{QB+4*i+3}], v15 offset:{L_Q+i*64}")
A("s_waitcnt lgkmcnt(0)")
for i in range(4):
    for t in range(4):
        r = KR + (t * 4 + i) * 4
        c = "0" if i == 0 else f"v[{S+4*t}:{S+4*t+3}]"
        A(f"v_mfma_f32_16x16x32_bf16 v[{S+4*t}:{S+4*t+3}], v[{r}:{r+3}], v[{QB+4*i}:{QB+4*i+3}], {c}")
A("s_mov_b32 s24, 0x3db504f3\ns_mov_b32 s25, 0x3fb8aa3b\ns_mov_b32 s26, 0xffff0000")
if MIMIC:
    T = 16
    for k in range(8): A(f"v_cvt_pk_bf16_f32 v{T+k}, v{S+2*k}, v{S+2*k+1}")
    for k in range(8): A(f"v_lshlrev_b32 v{S+2*k}, 16, v{T+k}\nv_and_b32 v{S+2*k+1}, s26, v{T+k}")
    for k in range(16): A(f"v_mul_f32 v{S+k}, s24, v{S+k}")
    for k in range(8): A(f"v_cvt_pk_bf16_f32 v{T+k}, v{S+2*k}, v{S+2*k+1}")
    for k in range(8): A(f"v_lshlrev_b32 v{S+2*k}, 16, v{T+k}\nv_and_b32 v{S+2*k+1}, s26, v{T+k}")
    A(f"v_max3_f32 v10, v{S}, v{S+1}, v{S+2}\nv_max3_f32 v9, v{S+3}, v{S+4}, v{S+5}")
    A(f"v_max3_f32 v10, v10, v{S+6}, v{S+7}\nv_max3_f32 v9, v9, v{S+8}, v{S+9}")
    A(f"v_max3_f32 v10, v10, v{S+10}, v{S+11}\nv_max3_f32 v9, v9, v{S+12}, v{S+13}")
    A(f"v_max3_f32 v10, v10, v{S+14}, v{S+15}\nv_max_f32 v10, v10, v9")
    SC = "s25"
else:
    A(f"v_max3_f32 v10, v{S}, v{S+1}, v{S+2}\nv_max3_f32 v9, v{S+3}, v{S+4}, v{S+5}")
    A(f"v_max3_f32 v10, v10, v{S+6}, v{S+7}\nv_max3_f32 v9, v9, v{S+8}, v{S+9}")
    A(f"v_max3_f32 v10, v10, v{S+10}, v{S+11}\nv_max3_f32 v9, v9, v{S+12}, v{S+13}")
    A(f"v_max3_f32 v10, v10, v{S+14}, v{S+15}\nv_max_f32 v10, v10, v9")
    A("s_mov_b32 s25, 0x3e0293ee")
    SC = "s25"
A(f"""
v_mov_b32 v9, v10
v_permlane16_swap_b32 v10, v9
v_max_f32 v10, v10, v9
v_mov_b32 v9, v10
v_permlane32_swap_b32 v10, v9
v_max_f32 v10, v10, v9
v_mul_f32 v10, {SC}, v10
""")
for k in range(16):
    A(f"v_fma_f32 v{S+k}, v{S+k}, {SC}, -v10")
for k in range(16):
    A(f"v_exp_f32 v{S+k}, v{S+k}")
for k in range(8):
    A(f"v_cvt_pk_bf16_f32 v{PB+k}, v{S+2*k}, v{S+2*k+1}")
A(f"""
ds_write_b128 v6, v[{PB}:{PB+3}] offset:{L_P}
ds_write_b128 v6, v[{PB+4}:{PB+7}] offset:{L_P+1024}
ds_write_b32 v11, v14
""")
stamp(4)
A(f"v_add_f32 v9, v{S}, v{S+1}\nv_add_f32 v8, v{S+2}, v{S+3}")
for k in range(4, 16, 2):
    A(f"v_add_f32 v9, v9, v{S+k}\nv_add_f32 v8, v8, v{S+k+1}")
A(f"""
v_add_f32 v11, v9, v8
v_mov_b32 v9, v11
v_permlane16_swap_b32 v11, v9
v_add_f32 v11, v11, v9
v_mov_b32 v9, v11
v_permlane32_swap_b32 v11, v9
v_add_f32 v11, v11, v9                   ; l (wave)
v_mov_b32 v13, {L_MLC}
ds_write_b64 v12, v[10:11] offset:{L_ML}
ds_add_u32 v13, v14
""")
lds_wait(L_MLC, 256, 8, name="mlc", sleep=0)
A(f"""
s_lshl_b32 s9, s3, 3
v_mov_b32 v8, s9
ds_read_b64 v[16:17], v8 offset:{L_ML}
ds_read_b64 v[18:19], v8 offset:{L_ML+32}
ds_read_b64 v[20:21], v8 offset:{L_ML+64}
ds_read_b64 v[22:23], v8 offset:{L_ML+96}
s_waitcnt lgkmcnt(0)
v_max_f32 v24, v16, v18
v_max3_f32 v24, v24, v20, v22            ; M
v_sub_f32 v28, v16, v24
v_sub_f32 v29, v18, v24
v_sub_f32 v30, v20, v24
v_sub_f32 v31, v22, v24
v_exp_f32 v28, v28
v_exp_f32 v29, v29
v_exp_f32 v30, v30
v_exp_f32 v31, v31
v_mov_b32 v25, s64
v_mov_b32 v27, s64
v_mul_f32 v26, v28, v17
v_fmac_f32 v26, v29, v19
v_fmac_f32 v26, v30, v21
v_fmac_f32 v26, v31, v23                 ; L
s_lshl_b32 s9, s3, 4
v_mov_b32 v8, s9
v_mov_b32 v9, {L_FRDY}
s_mov_b64 exec, 1
ds_write_b128 v8, v[28:31] offset:{L_F}
ds_add_u32 v9, v14
v_mov_b32 v8, 0
""")
pub("v[24:27]", 8, 17)
A("s_mov_b64 exec, -1")
stamp(5)
A("""
s_cmp_eq_u32 s3, 1
s_cbranch_scc1 L_hg
s_cmp_eq_u32 s3, 3
s_cbranch_scc1 L_fin
s_branch L_mo
""")
A.label("L_hg")
if not HEARLY: haddr()
poll_loop("h", hloads, [G + 4 * n for n in range(4)], 8, 9, cntreg=96, preissued=(NS if HEARLY else None))
for c in (0, 2):
    A(f"v_add_f32 v{G+c}, v{G+c}, v{G+4+c}\nv_add_f32 v{G+8+c}, v{G+8+c}, v{G+12+c}")
for c in (0, 2):
    A(f"v_add_f32 v{G+c}, v{G+c}, v{G+8+c}")
A(f"""
v_cvt_pk_bf16_f32 v156, v{G}, v{G+2}
v_mov_b32 v157, v156
v_permlane32_swap_b32 v156, v157
v_lshlrev_b32 v158, 16, v156
v_and_b32 v159, 0xffff0000, v156
v_lshlrev_b32 v160, 16, v157
v_and_b32 v161, 0xffff0000, v157
v_mul_f32 v162, 0xbfb8aa3b, v158
v_mul_f32 v163, 0xbfb8aa3b, v159
v_exp_f32 v162, v162
v_exp_f32 v163, v163
v_add_f32 v162, 1.0, v162
v_add_f32 v163, 1.0, v163
v_rcp_f32 v162, v162
v_rcp_f32 v163, v163
v_mul_f32 v162, v158, v162
v_mul_f32 v163, v159, v163
v_cvt_pk_bf16_f32 v162, v162, v163
v_lshlrev_b32 v163, 16, v162
v_and_b32 v162, 0xffff0000, v162
v_mul_f32 v163, v163, v160
v_mul_f32 v162, v162, v161
v_cvt_pk_bf16_f32 v162, v163, v162
v_and_b32 v164, 15, v2
v_cmp_gt_u32 vcc, 14, v164
v_cndmask_b32 v162, 0, v162, vcc
v_lshlrev_b32 v164, 2, v2                ; (bb*16 + p)*4
v_cmp_gt_u32 vcc, 32, v2
s_and_saveexec_b64 s[20:21], vcc
ds_write_b32 v164, v162 offset:{L_H}
s_mov_b64 exec, s[20:21]
v_mov_b32 v8, {L_HRDY}
v_mov_b32 v9, 1
ds_write_b32 v8, v9
""")
stamp(6)
A("s_branch L_stamp")
A.label("L_mo")
A(f"""
s_setprio 3
s_lshr_b32 s19, s3, 1                    ; bb
s_and_b32 s13, s6, 2
s_add_u32 s13, s13, s19
s_lshl_b32 s16, s13, 3
s_add_u32 s16, s16, s4
s_lshl_b32 s16, s16, 9
s_add_u32 s16, s16, {WS_ML}
s_lshl_b32 s12, s4, 1
s_lshr_b32 s13, s6, 1
s_add_u32 s12, s12, s13
s_lshl_b32 s12, s12, 3
s_add_u32 s12, s12, s7
s_lshl_b32 s12, s12, 13
s_lshl_b32 s13, s19, 12
s_add_u32 s12, s12, s13
s_add_u32 s12, s12, {WS_OP}
v_lshrrev_b32 v8, 5, v2
v_bfe_u32 v10, v2, 3, 2
v_lshlrev_b32 v8, 6, v8
v_lshl_add_u32 v152, v10, 4, v8
v_and_b32 v13, 31, v2
v_lshlrev_b32 v13, 2, v13
s_lshl_b32 s13, s19, 7
v_add_u32 v13, s13, v13
v_mov_b32 v14, {L_OCR}
v_mov_b32 v15, 1
""")
GM = 136; GO = 16
def moloads():
    A("s_add_u32 s28, s12, s27\ns_add_u32 s29, s16, s27")
    for i in range(4):
        A(f"buffer_load_dwordx4 v[{GO+4*i}:{GO+4*i+3}], v7, s[52:55], s28 offen offset:{i*1024} sc1")
    for i in range(4):
        A(f"buffer_load_dwordx4 v[{GM+4*i}:{GM+4*i+3}], v152, s[52:55], s29 offen offset:{i*128} sc1")
lds_wait(L_OPUB, 4, 8, name="opub", sleep=1)
stamp(6)
A("s_mov_b32 s27, s31")
poll_loop("mo", moloads, [GO + 4 * i for i in range(4)] + [GM + 4 * i for i in range(4)], 153, 154, sleep=0, cntreg=96, fast=FAST)
stamp(7)
A(f"""
v_max_f32 v153, v{GM}, v{GM+4}
v_max3_f32 v153, v153, v{GM+8}, v{GM+12}
v_mov_b32 v154, v153
v_permlane32_swap_b32 v153, v154
v_max_f32 v153, v153, v154
""")
for i in range(4):
    A(f"v_sub_f32 v{GM+4*i}, v{GM+4*i}, v153")
for i in range(4):
    A(f"v_exp_f32 v{GM+4*i}, v{GM+4*i}")
A(f"""
v_mul_f32 v155, v{GM}, v{GM+2}
v_mul_f32 v161, v{GM}, v{GO}
v_mul_f32 v162, v{GM}, v{GO+2}
""")
for i in range(1, 4):
    A(f"v_fmac_f32 v155, v{GM+4*i}, v{GM+4*i+2}\nv_fmac_f32 v161, v{GM+4*i}, v{GO+4*i}\nv_fmac_f32 v162, v{GM+4*i}, v{GO+4*i+2}")
A(f"""
v_mov_b32 v156, v155
v_mov_b32 v163, v161
v_mov_b32 v164, v162
v_permlane32_swap_b32 v155, v156
v_permlane32_swap_b32 v161, v163
v_permlane32_swap_b32 v162, v164
v_add_f32 v155, v155, v156
v_add_f32 v161, v161, v163
v_add_f32 v162, v162, v164
v_rcp_f32 v155, v155
s_nop 0
v_mul_f32 v161, v161, v155
v_mul_f32 v162, v162, v155
v_cvt_pk_bf16_f32 v161, v161, v162
ds_write_b32 v13, v161 offset:{L_OC}
s_mov_b64 exec, 1
ds_add_u32 v14, v15
s_mov_b64 exec, -1
""")
stamp(8)
A("s_branch L_stamp")
A.label("L_fin")
A(f"""
s_setprio 3
s_load_dwordx2 s[44:45], s[0:1], 80
s_lshl_b32 s12, s6, 18
s_lshl_b32 s8, s18, 12
s_add_u32 s12, s12, s8
s_add_u32 s12, s12, {WS_FP}
s_mov_b32 s46, 4096
s_mov_b32 s47, 0x20000
s_lshr_b32 s8, s18, 5                    ; ch'
s_lshl_b32 s8, s8, 9
s_bfe_u32 s9, s18, 0x20003               ; cw'
s_lshl_b32 s9, s9, 7
s_add_u32 s8, s8, s9
s_and_b32 s9, s18, 1                     ; q'
s_lshl_b32 s9, s9, 6
s_add_u32 s8, s8, s9
s_bfe_u32 s9, s18, 0x10001               ; half'
s_lshl_b32 s9, s9, 3
s_add_u32 s8, s8, s9
s_bfe_u32 s9, s18, 0x10002               ; e'
s_lshl_b32 s9, s9, 2
s_add_u32 s8, s8, s9
s_lshl_b32 s9, s6, 10
s_add_u32 s28, s8, s9
v_lshlrev_b32 v10, 4, v2
""")
lds_wait(L_OPUB, 8, 8, name="fpub", sleep=1)
if FDELAY: A(f"s_sleep {FDELAY}")
stamp(6)
GF = 16
def floads():
    for i in range(4):
        A(f"buffer_load_dwordx4 v[{GF+4*i}:{GF+4*i+3}], v7, s[52:55], s12 offen offset:{i*1024} sc1")
poll_loop("f", floads, [GF + 4 * i for i in range(4)], 8, 9, sleep=0, cntreg=96)
stamp(7)
for c in (0, 2):
    A(f"v_add_f32 v{GF+c}, v{GF+c}, v{GF+4+c}\nv_add_f32 v{GF+8+c}, v{GF+8+c}, v{GF+12+c}")
for c in (0, 2):
    A(f"v_add_f32 v{GF+c}, v{GF+c}, v{GF+8+c}")
for sh in (4, 8):
    for c in (0, 2):
        A(f"v_add_f32_dpp v{48+c}, v{GF+c}, v{GF+c} row_ror:{sh} row_mask:0xf bank_mask:0xf")
    for c in (0, 2):
        A(f"v_mov_b32 v{GF+c}, v{48+c}")
for sw in ("16", "32"):
    for c in (0, 2):
        A(f"v_mov_b32 v{48+c}, v{GF+c}")
    for c in (0, 2):
        A(f"v_permlane{sw}_swap_b32 v{GF+c}, v{48+c}")
    for c in (0, 2):
        A(f"v_add_f32 v{GF+c}, v{GF+c}, v{48+c}")
A(f"""
v_cvt_pk_bf16_f32 v8, v{GF}, v{GF+2}
v_cmp_gt_u32 vcc, 4, v2
s_waitcnt lgkmcnt(0)
s_and_saveexec_b64 s[20:21], vcc
buffer_store_dword v8, v10, s[44:47], s28 offen
s_mov_b64 exec, s[20:21]
s_cmp_eq_u32 s2, 0
s_cbranch_scc0 L_stamp
v_mov_b32 v8, s64
v_mov_b32 v9, {WS_E}
v_cmp_eq_u32 vcc, 0, v2
s_and_saveexec_b64 s[20:21], vcc
buffer_store_dword v8, v9, s[52:55], 0 offen
s_mov_b64 exec, s[20:21]
""")
A.label("L_stamp")
if DBG:
    A("s_memrealtime s[94:95]\ns_load_dwordx2 s[44:45], s[0:1], 88\ns_mov_b32 s46, 256\ns_mov_b32 s47, 0x20000\ns_waitcnt lgkmcnt(0)\ns_mov_b64 exec, 1")
    A("s_not_b32 s8, s70\nv_mov_b32 v10, s8\nv_mov_b32 v4, 0\nbuffer_atomic_umax v10, v4, s[44:47], 0 offen")
    A("v_mov_b32 v10, s94\nv_mov_b32 v4, 4\nbuffer_atomic_umax v10, v4, s[44:47], 0 offen")
    A("s_cmp_lt_u32 s99, 4\ns_cbranch_scc0 L_dbgV")
    for sl, d in ((3, 2), (4, 3), (1, 10), (7, 8)):
        A(f"v_mov_b32 v10, s{70+2*sl}\nv_mov_b32 v4, {4*d}\nbuffer_atomic_umax v10, v4, s[44:47], 0 offen")
    A("s_branch L_dbgE\nL_dbgV:\ns_cmp_lt_u32 s99, 8\ns_cbranch_scc0 L_dbgO")
    for sl, d in ((6, 4), (7, 5), (2, 9), (3, 11)):
        A(f"v_mov_b32 v10, s{70+2*sl}\nv_mov_b32 v4, {4*d}\nbuffer_atomic_umax v10, v4, s[44:47], 0 offen")
    A("s_branch L_dbgE\nL_dbgO:")
    for sl, d in ((8, 6), (9, 7), (4, 12)):
        A(f"v_mov_b32 v10, s{70+2*sl}\nv_mov_b32 v4, {4*d}\nbuffer_atomic_umax v10, v4, s[44:47], 0 offen")
    A("L_dbgE:\ns_endpgm")
if STAMPS:
    A("s_memrealtime s[94:95]")
    if CLK: A("s_memtime s[92:93]")
    A("s_waitcnt lgkmcnt(0)")
    if CLK: A("s_sub_u32 s96, s92, s90")
    A(f"""
s_lshl_b32 s9, s2, 4
s_add_u32 s9, s9, s99
s_mul_i32 s9, s9, {NST*8}
s_add_u32 s9, s9, {STAMPOFF}
v_mov_b32 v4, 0
s_mov_b64 exec, 1
""")
    if CLK: A("s_mov_b64 s[90:91], 0\ns_mov_b64 s[92:93], 0")
    for k in range(0, NST, 2):
        A(f"v_mov_b32 v10, s{70+2*k}\nv_mov_b32 v11, s{71+2*k}\nv_mov_b32 v12, s{72+2*k}\nv_mov_b32 v13, s{73+2*k}")
        A(f"buffer_store_dwordx4 v[10:13], v4, s[52:55], s9 offen offset:{k*8}")
        A("s_nop 1")
A.label("L_end")
body = A.text()
if STAMPS:
    z = "".join(f"    s_mov_b64 s[{70+2*k}:{71+2*k}], 0\n" for k in range(NST))
    body = z + body
body = hazard.fix(body, verbose=True)
open(sys.argv[1], "w").write(wrap(body, 256, 768, LDS_BYTES, 168, 102, extra_header=HDR))
```
